```python
import torch

def _softmax(x, axis=-1):
    return torch.softmax(x, dim=axis)
def _gelu(x):
    return torch.nn.functional.gelu(x, approximate="tanh")
def _silu(x):
    return torch.nn.functional.silu(x)
def _sigmoid(x):
    return torch.sigmoid(x)
def _layernorm(x, axis=-1, eps=1e-5):
    m = x.mean(dim=axis, keepdim=True)
    v = x.var(dim=axis, keepdim=True, unbiased=False)
    return (x - m) / torch.sqrt(v + eps)
def _scatter_add(tgt, idx, src, axis=0):
    return tgt.clone().index_add_(axis, idx, src)
def _segment_sum(src, seg, n):
    out = torch.zeros((n,) + src.shape[1:], dtype=src.dtype)
    return out.index_add_(0, seg, src)
def _pad(x, pw):
    flat = tuple(v for pair in reversed(pw) for v in pair)
    return torch.nn.functional.pad(x, flat)

kernel_name = 'standalone__gqa_block_cached__near_ridge'

def setup_inputs():

    _w = (lambda a: (lambda t: t.to(torch.bfloat16) if t.is_floating_point() else t)(torch.as_tensor(a)))
    B, Sq, D = 16, 64, 576
    Hq, Hkv, Sk, Dh = 32, 16, 1024, 128
    assert Hq % Hkv == 0, (Hq, Hkv)
    return {
        "x": _w((lambda *s: torch.randn(*s, dtype=torch.bfloat16) * 0.8)(B, Sq, D)),
        "k_cache": _w((lambda *s: torch.randn(*s, dtype=torch.bfloat16) * 0.8)(B, Hkv, Sk, Dh)),
        "v_cache": _w((lambda *s: torch.randn(*s, dtype=torch.bfloat16) * 0.05)(B, Hkv, Sk, Dh)),
        "wq": _w((lambda *s: torch.randn(*s, dtype=torch.bfloat16) * 0.8)(D, Hq * Dh) * (D ** -0.5)),
        "wo": _w((lambda *s: torch.randn(*s, dtype=torch.bfloat16) * 0.05)(Hq * Dh, D) * ((Hq * Dh) ** -0.5)),
    }

def reference(x, k_cache, v_cache, wq, wo):
    B, Sq, D = x.shape
    Hq, Dh = 32, 128
    Hkv = k_cache.shape[1]
    rep = Hq // Hkv
    q = (lambda x, *d: x.permute(*d))((x @ wq).reshape(B, Sq, Hq, Dh), 0, 2, 1, 3)
    k = (lambda x, n, axis: torch.repeat_interleave(x, n, dim=axis))(k_cache, rep, axis=1)
    v = (lambda x, n, axis: torch.repeat_interleave(x, n, dim=axis))(v_cache, rep, axis=1)
    scores = torch.einsum("bhqd,bhkd->bhqk", q, k) * (Dh ** -0.5)
    p = _softmax(scores, axis=-1)
    o = torch.einsum("bhqk,bhkd->bhqd", p, v)
    return (lambda x, *d: x.permute(*d))(o, 0, 2, 1, 3).reshape(B, Sq, Hq * Dh) @ wo
```

```python
import sys

class Em:
    def __init__(self):
        self.lines = []
    def __call__(self, s):
        self.lines.append("    " + s)
    def label(self, s):
        self.lines.append(s + ":")
    def raw(self, s):
        self.lines.append(s)
    def nop(self, n):
        while n > 0:
            k = min(n, 16)
            self(f"s_nop {k-1}")
            n -= k
    def text(self):
        return "\n".join(self.lines) + "\n"

def vr(b, n=1):
    return f"v{b}" if n == 1 else f"v[{b}:{b+n-1}]"
def ar(b, n=1):
    return f"a{b}" if n == 1 else f"a[{b}:{b+n-1}]"
def sr(b, n=1):
    return f"s{b}" if n == 1 else f"s[{b}:{b+n-1}]"

LOG2E = 1.4426950408889634
SCALE = 128 ** -0.5
import struct
def f32hex(x):
    return "0x%08x" % struct.unpack("<I", struct.pack("<f", x))[0]

def gen_attn(e):
    name = "attn_kernel"
    e.raw(f".globl {name}")
    e.raw(".p2align 8")
    e.raw(f".type {name},@function")
    e.label(name)
    S_X, S_K, S_V, S_WQ, S_WS = 4, 6, 8, 10, 16
    SRD_K, SRD_V, SRD_X, SRD_WQ, SRD_O = 20, 24, 28, 32, 36
    S_WAVE, S_HKV, S_B = 40, 41, 42
    S_T0, S_T1, S_T2, S_SOFF, S_C = 43, 44, 45, 46, 47
    V_LANE = 1
    V_KA = 8
    V_VA = 24
    V_KD = 32
    V_VD = 36
    V_WD = 37
    V_WA = 39
    V_XO = 43
    V_M, V_L, V_AL = 44, 45, 46
    V_T0, V_T1, V_T2, V_T3 = 47, 48, 49, 50
    V_OO = 51
    V_AL2 = 52
    V_O = 64
    V_S = 128
    V_Q = 160
    V_KF = 192
    V_VF = 208
    V_P = 224
    A_X = 0

    STAGE = 32768
    WQBUF = [98304, 131072]

    e("s_cmp_ge_u32 s2, 256")
    e("s_cbranch_scc1 attn_end")
    e("s_load_dwordx4 s[4:7], s[0:1], 0")
    e("s_load_dwordx4 s[8:11], s[0:1], 16")
    e("s_load_dwordx2 s[16:17], s[0:1], 56")
    e(f"v_and_b32 v{V_LANE}, 63, v0")
    e(f"v_lshrrev_b32 v2, 6, v0")
    e("s_nop 0")
    e(f"v_readfirstlane_b32 s{S_WAVE}, v2")
    e(f"s_and_b32 s{S_HKV}, s2, 15")
    e(f"s_lshr_b32 s{S_B}, s2, 4")
    e("s_waitcnt lgkmcnt(0)")
    e(f"s_lshl_b32 s{S_T0}, s2, 18")
    e(f"s_add_u32 s{SRD_K}, s{S_K}, s{S_T0}")
    e(f"s_addc_u32 s{SRD_K+1}, s{S_K+1}, 0")
    e(f"s_mov_b32 s{SRD_K+2}, 0x40000")
    e(f"s_mov_b32 s{SRD_K+3}, 0x20000")
    e(f"s_add_u32 s{SRD_V}, s{S_V}, s{S_T0}")
    e(f"s_addc_u32 s{SRD_V+1}, s{S_V+1}, 0")
    e(f"s_mov_b32 s{SRD_V+2}, 0x40000")
    e(f"s_mov_b32 s{SRD_V+3}, 0x20000")
    e(f"s_mul_i32 s{S_T0}, s{S_B}, 73728")
    e(f"s_add_u32 s{SRD_X}, s{S_X}, s{S_T0}")
    e(f"s_addc_u32 s{SRD_X+1}, s{S_X+1}, 0")
    e(f"s_mov_b32 s{SRD_X+2}, 73728")
    e(f"s_mov_b32 s{SRD_X+3}, 0x20000")
    e(f"s_lshl_b32 s{S_T0}, s{S_HKV}, 9")
    e(f"s_add_u32 s{SRD_WQ}, s{S_WQ}, s{S_T0}")
    e(f"s_addc_u32 s{SRD_WQ+1}, s{S_WQ+1}, 0")
    e(f"s_sub_u32 s{SRD_WQ+2}, {576*8192}, s{S_T0}")
    e(f"s_mov_b32 s{SRD_WQ+3}, 0x20000")
    e(f"s_mov_b32 s{SRD_O}, s{S_WS}")
    e(f"s_mov_b32 s{SRD_O+1}, s{S_WS+1}")
    e(f"s_mov_b32 s{SRD_O+2}, 0x800000")
    e(f"s_mov_b32 s{SRD_O+3}, 0x20000")

    L = f"v{V_LANE}"
    T0, T1, T2, T3 = (f"v{x}" for x in (V_T0, V_T1, V_T2, V_T3))
    e(f"v_lshrrev_b32 {T0}, 5, {L}")
    e(f"v_and_b32 {T1}, 15, {L}")
    e(f"v_xor_b32 {T0}, {T0}, {T1}")
    e(f"v_and_b32 {T1}, 31, {L}")
    e(f"v_lshlrev_b32 {T1}, 8, {T1}")
    for ks in range(8):
        e(f"v_xor_b32 {T2}, {2*ks}, {T0}")
        e(f"v_lshl_add_u32 v{V_KA+ks}, {T2}, 4, {T1}")
        e(f"v_add_u32 v{V_KA+8+ks}, 0x10000, v{V_KA+ks}")
    e(f"v_lshrrev_b32 {T0}, 5, {L}")
    e(f"v_bfe_u32 {T1}, {L}, 2, 2")
    e(f"v_lshl_add_u32 {T2}, {T0}, 2, {T1}")
    e(f"v_lshlrev_b32 {T2}, 8, {T2}")
    e(f"v_add_u32 {T2}, 16384, {T2}")
    e(f"v_bfe_u32 {T0}, {L}, 4, 1")
    e(f"v_bfe_u32 {T3}, {L}, 1, 1")
    e(f"v_lshl_add_u32 {T0}, {T0}, 1, {T3}")
    e(f"v_lshl_add_u32 {T2}, {T0}, 4, {T2}")
    e(f"v_and_b32 {T3}, 1, {L}")
    e(f"v_lshl_add_u32 {T2}, {T3}, 3, {T2}")
    for db in range(4):
        e(f"v_xor_b32 {T3}, {db}, {T1}")
        e(f"v_lshl_add_u32 v{V_VA+db}, {T3}, 6, {T2}")
        e(f"v_add_u32 v{V_VA+4+db}, 0x10000, v{V_VA+db}")
    e(f"v_lshrrev_b32 {T0}, 4, {L}")
    e(f"v_and_b32 {T1}, 15, {L}")
    e(f"v_xor_b32 {T1}, {T1}, {T0}")
    e(f"v_lshlrev_b32 {T2}, 8, {T0}")
    for i in range(4):
        e(f"v_xor_b32 {T3}, {4*i}, {T1}")
        e(f"v_lshl_add_u32 v{V_KD+i}, {T3}, 4, {T2}")
    e(f"v_and_b32 {T1}, 15, {L}")
    e(f"v_lshlrev_b32 {T3}, 2, {T0}")
    e(f"v_xor_b32 {T1}, {T1}, {T3}")
    e(f"v_lshl_add_u32 v{V_VD}, {T1}, 4, {T2}")
    e(f"v_lshrrev_b32 {T0}, 5, {L}")
    e(f"v_and_b32 {T1}, 31, {L}")
    e(f"v_lshlrev_b32 {T2}, 13, {T0}")
    for odd in range(2):
        e(f"v_add_u32 {T3}, {2*odd}, {T0}")
        e(f"v_lshlrev_b32 {T3}, 2, {T3}")
        e(f"v_xor_b32 {T3}, {T3}, {T1}")
        e(f"v_lshl_add_u32 v{V_WD+odd}, {T3}, 4, {T2}")
    e(f"v_lshrrev_b32 {T0}, 5, {L}")
    e(f"v_bfe_u32 {T1}, {L}, 2, 2")
    e(f"v_lshl_add_u32 {T2}, {T0}, 3, {T1}")
    e(f"v_lshlrev_b32 {T2}, 9, {T2}")
    e(f"v_bfe_u32 {T0}, {L}, 4, 1")
    e(f"v_bfe_u32 {T3}, {L}, 1, 1")
    e(f"v_lshl_add_u32 {T0}, {T0}, 1, {T3}")
    e(f"v_lshl_add_u32 {T2}, {T0}, 4, {T2}")
    e(f"v_and_b32 {T3}, 1, {L}")
    e(f"v_lshl_add_u32 {T2}, {T3}, 3, {T2}")
    e(f"s_lshr_b32 s{S_T0}, s{S_WAVE}, 1")
    e(f"s_lshl_b32 s{S_T0}, s{S_T0}, 2")
    for db in range(4):
        e(f"s_add_u32 s{S_T1}, s{S_T0}, {db}")
        e(f"v_xor_b32 {T3}, s{S_T1}, {T1}")
        e(f"v_lshl_add_u32 v{V_WA+db}, {T3}, 6, {T2}")
    e(f"s_and_b32 s{S_T0}, s{S_WAVE}, 1")
    e(f"s_lshl_b32 s{S_T0}, s{S_T0}, 5")
    e(f"v_and_b32 {T0}, 31, {L}")
    e(f"v_add_u32 {T0}, s{S_T0}, {T0}")
    e(f"s_movk_i32 s{S_T1}, 1152")
    e(f"v_mul_lo_u32 {T0}, {T0}, s{S_T1}")
    e(f"v_lshrrev_b32 {T1}, 5, {L}")
    e(f"v_lshl_add_u32 v{V_XO}, {T1}, 4, {T0}")
    e(f"s_lshl_b32 s{S_T1}, s{S_B}, 6")
    e(f"s_add_u32 s{S_T0}, s{S_T0}, s{S_T1}")
    e(f"v_and_b32 {T0}, 31, {L}")
    e(f"v_add_u32 {T0}, s{S_T0}, {T0}")
    e(f"v_lshlrev_b32 {T0}, 13, {T0}")
    e(f"s_lshl_b32 s{S_T0}, s{S_HKV}, 1")
    e(f"s_lshr_b32 s{S_T1}, s{S_WAVE}, 1")
    e(f"s_add_u32 s{S_T0}, s{S_T0}, s{S_T1}")
    e(f"s_lshl_b32 s{S_T0}, s{S_T0}, 8")
    e(f"v_add_u32 {T0}, s{S_T0}, {T0}")
    e(f"v_lshrrev_b32 {T1}, 5, {L}")
    e(f"v_lshl_add_u32 v{V_OO}, {T1}, 4, {T0}")

    for ks in range(36):
        e(f"buffer_load_dwordx4 {ar(A_X+4*ks,4)}, v{V_XO}, {sr(SRD_X,4)}, 0 offen offset:{ks*32}")

    def kv_dma(tile, ww_expr_sgpr, ww_const):
        stage = tile % 4
        if ww_expr_sgpr is not None:
            e(f"s_add_u32 s{S_SOFF}, s{ww_expr_sgpr}, {tile*16384}")
            e(f"s_add_u32 m0, s{ww_expr_sgpr}, {stage*STAGE}")
        else:
            e(f"s_mov_b32 s{S_SOFF}, {tile*16384 + ww_const*4096}")
            e(f"s_mov_b32 m0, {stage*STAGE + ww_const*4096}")
        e("s_nop 0")
        for i in range(4):
            e(f"buffer_load_dwordx4 v{V_KD+i}, {sr(SRD_K,4)}, s{S_SOFF} offen offset:{i*1024} lds")
        if ww_expr_sgpr is not None:
            e(f"s_add_u32 m0, s{ww_expr_sgpr}, {stage*STAGE + 16384}")
        else:
            e(f"s_mov_b32 m0, {stage*STAGE + 16384 + ww_const*4096}")
        e("s_nop 0")
        for i in range(4):
            e(f"buffer_load_dwordx4 v{V_VD}, {sr(SRD_V,4)}, s{S_SOFF} offen offset:{i*1024} lds")

    S_W4K = 48
    e(f"s_lshl_b32 s{S_W4K}, s{S_WAVE}, 12")

    def wq_dma(c):
        buf = WQBUF[c % 2]
        for i in range(16):
            e(f"s_lshl_b32 s{S_T0}, s{S_WAVE}, 18")
            e(f"s_add_u32 s{S_SOFF}, s{S_T0}, {c*64*8192 + i*16384}")
            e(f"s_lshl_b32 s{S_T0}, s{S_WAVE}, 14")
            e(f"s_add_u32 m0, s{S_T0}, {buf + i*1024}")
            e("s_nop 0")
            e(f"buffer_load_dwordx4 v{V_WD + (i%2)}, {sr(SRD_WQ,4)}, s{S_SOFF} offen lds")

    e(f"s_cmp_ge_u32 s{S_WAVE}, 2")
    e("s_cbranch_scc1 attn_role_kv")
    wq_dma(0)
    wq_dma(1)
    e("s_branch attn_role_done")
    e.label("attn_role_kv")
    S_WW = 49
    e(f"s_sub_u32 s{S_WW}, s{S_WAVE}, 2")
    e(f"s_lshl_b32 s{S_WW}, s{S_WW}, 13")
    e(f"s_add_u32 s{S_WW+1}, s{S_WW}, 4096")
    for t in range(3):
        kv_dma(t, S_WW, None)
        kv_dma(t, S_WW+1, None)
    e.label("attn_role_done")

    for c in range(9):
        buf = WQBUF[c % 2]
        e(f"s_cmp_ge_u32 s{S_WAVE}, 2")
        e(f"s_cbranch_scc1 attn_qw_{c}")
        e(f"s_waitcnt vmcnt({16 if c < 8 else 0})")
        e(f"s_branch attn_qw2_{c}")
        e.label(f"attn_qw_{c}")
        e("s_waitcnt vmcnt(48)")
        e.label(f"attn_qw2_{c}")
        e("s_barrier")
        seq = [(ks, db) for ks in range(4) for db in range(4)]
        def rd(idx):
            ks, db = seq[idx]
            f = V_KF + 4*(idx % 8)
            for u in range(2):
                e(f"ds_read_b64_tr_b16 {vr(f+2*u,2)}, v{V_WA+db} offset:{buf - 98304 + (ks*16+4*u)*512}")
        if c == 0:
            for db in range(4):
                e(f"v_add_u32 v{V_WA+db}, 0x18000, v{V_WA+db}")
        for idx in range(6):
            rd(idx)
        for idx in range(16):
            ks, db = seq[idx]
            f = V_KF + 4*(idx % 8)
            outstanding_after = min(16, idx + 6) - idx - 1
            e(f"s_waitcnt lgkmcnt({2*outstanding_after})")
            acc = vr(V_O + 16*db, 16)
            cc = "0" if (c == 0 and ks == 0) else acc
            e(f"v_mfma_f32_32x32x16_bf16 {acc}, {vr(f,4)}, {ar(A_X + 4*(4*c+ks),4)}, {cc}")
            if idx + 6 < 16:
                rd(idx + 6)
        e("s_barrier")
        if c + 2 < 9:
            e(f"s_cmp_ge_u32 s{S_WAVE}, 2")
            e(f"s_cbranch_scc1 attn_qd_{c}")
            wq_dma(c + 2)
            e.label(f"attn_qd_{c}")
    e.nop(16)
    for ks in range(8):
        db, hf = ks // 2, ks % 2
        src = V_O + 16*db + 8*hf
        q = V_Q + 4*ks
        for j in range(4):
            e(f"v_cvt_pk_bf16_f32 v{q+j}, v{src+2*j}, v{src+2*j+1}")
        e("s_nop 1")
        e(f"v_permlane32_swap_b32 v{q}, v{q+2}")
        e(f"v_permlane32_swap_b32 v{q+1}, v{q+3}")
    e(f"v_mov_b32 v{V_M}, 0xff800000")
    e(f"v_mov_b32 v{V_L}, 0")
    for i in range(64):
        e(f"v_mov_b32 v{V_O+i}, 0")
    e(f"s_mov_b32 s{S_C}, {f32hex(SCALE*LOG2E)}")

    NT = 16
    for t in range(NT):
        stage = t % 4
        hi = 8 if stage >= 2 else 0
        soff = (stage % 2) * STAGE
        if t == 0: n = 32
        elif t == 1: n = 24
        elif t <= 13: n = 16
        elif t == 14: n = 8
        else: n = 0
        e(f"s_waitcnt vmcnt({n})")
        e("s_barrier")
        if t + 3 < NT:
            kv_dma(t + 3, S_W4K, None)
        seq = [(kb, ks) for kb in range(2) for ks in range(8)]
        def rdk(idx):
            kb, ks = seq[idx]
            f = V_KF + 4*(idx % 4)
            e(f"ds_read_b128 {vr(f,4)}, v{V_KA+hi+ks} offset:{soff + kb*8192}")
        for idx in range(4):
            rdk(idx)
        for idx in range(16):
            kb, ks = seq[idx]
            f = V_KF + 4*(idx % 4)
            after = min(16, idx + 4) - idx - 1
            e(f"s_waitcnt lgkmcnt({after})")
            acc = vr(V_S + 16*kb, 16)
            cc = "0" if ks == 0 else acc
            e(f"v_mfma_f32_32x32x16_bf16 {acc}, {vr(f,4)}, {vr(V_Q+4*ks,4)}, {cc}")
            if idx + 4 < 16:
                rdk(idx + 4)
        seqv = [(ks, db) for ks in range(4) for db in range(4)]
        def rdv(idx):
            ks, db = seqv[idx]
            f = V_VF + 4*(idx % 4)
            for u in range(2):
                e(f"ds_read_b64_tr_b16 {vr(f+2*u,2)}, v{V_VA+(4 if stage>=2 else 0)+db} offset:{soff + ks*4096 + u*2048}")
        for idx in range(4):
            rdv(idx)
        e.nop(12)
        S = lambda i: f"v{V_S+i}"
        e(f"v_max3_f32 {T0}, {S(0)}, {S(1)}, {S(2)}")
        e(f"v_max3_f32 {T1}, {S(3)}, {S(4)}, {S(5)}")
        for i in range(6, 30, 4):
            e(f"v_max3_f32 {T0}, {T0}, {S(i)}, {S(i+1)}")
            e(f"v_max3_f32 {T1}, {T1}, {S(i+2)}, {S(i+3)}")
        e(f"v_max3_f32 {T0}, {T0}, {S(30)}, {S(31)}")
        e(f"v_max_f32 {T0}, {T0}, {T1}")
        e(f"v_mov_b32 {T1}, {T0}")
        e("s_nop 1")
        e(f"v_permlane32_swap_b32 {T0}, {T1}")
        e("s_nop 1")
        e(f"v_max3_f32 {T0}, {T0}, {T1}, v{V_M}")
        e(f"v_sub_f32 {T1}, v{V_M}, {T0}")
        e(f"v_mul_f32 {T1}, s{S_C}, {T1}")
        e(f"v_exp_f32 v{V_AL2}, {T1}")
        e(f"v_mov_b32 v{V_M}, {T0}")
        e(f"v_mul_f32 {T0}, s{S_C}, {T0}")
        e(f"v_mov_b32 v{V_AL2+1}, v{V_AL2}")
        for i in range(32):
            e(f"v_fma_f32 {S(i)}, {S(i)}, s{S_C}, -{T0}")
        for i in range(32):
            e(f"v_exp_f32 {S(i)}, {S(i)}")
        e(f"v_mul_f32 v{V_L}, v{V_L}, v{V_AL2}")
        e(f"v_add_f32 {T1}, {S(0)}, {S(1)}")
        e(f"v_add_f32 {T2}, {S(2)}, {S(3)}")
        for i in range(4, 32, 2):
            tt = T1 if (i // 2) % 2 == 0 else T2
            e(f"v_add_f32 {tt}, {tt}, {S(i)}")
            e(f"v_add_f32 {tt}, {tt}, {S(i+1)}")
        e(f"v_add_f32 {T1}, {T1}, {T2}")
        e(f"v_add_f32 v{V_L}, v{V_L}, {T1}")
        for ks in range(4):
            for j in range(4):
                e(f"v_cvt_pk_bf16_f32 v{V_P+4*ks+j}, {S(8*ks+2*j)}, {S(8*ks+2*j+1)}")
        for i in range(0, 64, 2):
            e(f"v_pk_mul_f32 {vr(V_O+i,2)}, {vr(V_O+i,2)}, {vr(V_AL2,2)}")
        e("s_nop 1")
        for idx in range(16):
            ks, db = seqv[idx]
            f = V_VF + 4*(idx % 4)
            after = min(16, idx + 4) - idx - 1
            e(f"s_waitcnt lgkmcnt({2*after})")
            acc = vr(V_O + 16*db, 16)
            e(f"v_mfma_f32_32x32x16_bf16 {acc}, {vr(f,4)}, {vr(V_P+4*ks,4)}, {acc}")
            if idx + 4 < 16:
                rdv(idx + 4)
    e.nop(16)
    e(f"v_mov_b32 {T0}, v{V_L}")
    e(f"v_mov_b32 {T1}, v{V_L}")
    e("s_nop 1")
    e(f"v_permlane32_swap_b32 {T0}, {T1}")
    e("s_nop 1")
    e(f"v_add_f32 {T0}, {T0}, {T1}")
    e(f"v_rcp_f32 v{V_AL2}, {T0}")
    e("s_nop 1")
    e(f"v_mov_b32 v{V_AL2+1}, v{V_AL2}")
    for i in range(0, 64, 2):
        e(f"v_pk_mul_f32 {vr(V_O+i,2)}, {vr(V_O+i,2)}, {vr(V_AL2,2)}")
    for db in range(4):
        for pr in range(2):
            src = V_O + 16*db + 8*pr
            q = V_S + 4*(2*db+pr)
            for j in range(4):
                e(f"v_cvt_pk_bf16_f32 v{q+j}, v{src+2*j}, v{src+2*j+1}")
            e("s_nop 1")
            e(f"v_permlane32_swap_b32 v{q}, v{q+2}")
            e(f"v_permlane32_swap_b32 v{q+1}, v{q+3}")
            e("s_nop 1")
            e(f"buffer_store_dwordx4 {vr(q,4)}, v{V_OO}, {sr(SRD_O,4)}, 0 offen offset:{(db*32+pr*16)*2}")
    e.label("attn_end")
    e("s_endpgm")

def gen_oproj(e):
    name = "oproj_kernel"
    e.raw(f".globl {name}")
    e.raw(".p2align 8")
    e.raw(f".type {name},@function")
    e.label(name)
    SRD_O, SRD_W, SRD_OUT = 20, 24, 28
    S_WAVE, S_MB, S_NB, S_T0, S_T1, S_SOFF, S_KO = 40, 41, 42, 43, 44, 46, 47
    V_LANE = 1
    V_T0, V_T1, V_T2, V_T3 = 2, 3, 4, 5
    V_WD = 6
    V_WA = 8
    V_OA = 10
    V_RA = 12
    V_OUT = 13
    V_ACC = 64
    V_BF = 128
    V_AF = 192
    L = f"v{V_LANE}"
    T0, T1, T2, T3 = (f"v{x}" for x in (V_T0, V_T1, V_T2, V_T3))
    e("s_cmp_ge_u32 s2, 144")
    e("s_cbranch_scc1 oproj_end")
    e("s_load_dwordx4 s[4:7], s[0:1], 32")
    e("s_load_dwordx2 s[16:17], s[0:1], 56")
    e(f"v_and_b32 {L}, 63, v0")
    e(f"v_lshrrev_b32 v2, 6, v0")
    e("s_nop 0")
    e(f"v_readfirstlane_b32 s{S_WAVE}, v2")
    e(f"s_and_b32 s{S_MB}, s2, 15")
    e(f"s_lshr_b32 s{S_NB}, s2, 4")
    e("s_waitcnt lgkmcnt(0)")
    e(f"s_mov_b32 s{SRD_O}, s16")
    e(f"s_mov_b32 s{SRD_O+1}, s17")
    e(f"s_mov_b32 s{SRD_O+2}, 0x800000")
    e(f"s_mov_b32 s{SRD_O+3}, 0x20000")
    e(f"s_mov_b32 s{SRD_W}, s4")
    e(f"s_mov_b32 s{SRD_W+1}, s5")
    e(f"s_mov_b32 s{SRD_W+2}, {4096*1152}")
    e(f"s_mov_b32 s{SRD_W+3}, 0x20000")
    e(f"s_mov_b32 s{SRD_OUT}, s6")
    e(f"s_mov_b32 s{SRD_OUT+1}, s7")
    e(f"s_mov_b32 s{SRD_OUT+2}, {1024*1152}")
    e(f"s_mov_b32 s{SRD_OUT+3}, 0x20000")
    e(f"v_lshrrev_b32 {T0}, 3, {L}")
    e(f"s_movk_i32 s{S_T0}, 1152")
    e(f"v_mul_lo_u32 {T0}, {T0}, s{S_T0}")
    e(f"v_and_b32 {T1}, 7, {L}")
    e(f"v_bfe_u32 {T2}, {L}, 4, 1")
    e(f"v_lshlrev_b32 {T2}, 2, {T2}")
    e(f"v_xor_b32 {T1}, {T1}, {T2}")
    e(f"v_lshl_add_u32 v{V_WD}, {T1}, 4, {T0}")
    e(f"s_mul_i32 s{S_KO}, s{S_WAVE}, {1024*1152}")
    e(f"s_lshl_b32 s{S_T0}, s{S_NB}, 7")
    e(f"s_add_u32 s{S_KO}, s{S_KO}, s{S_T0}")
    e(f"v_lshrrev_b32 {T0}, 5, {L}")
    e(f"v_bfe_u32 {T1}, {L}, 2, 2")
    e(f"v_lshl_add_u32 {T2}, {T0}, 4, {T1}")
    e(f"v_lshlrev_b32 {T2}, 7, {T2}")
    e(f"v_bfe_u32 {T0}, {L}, 4, 1")
    e(f"v_bfe_u32 {T3}, {L}, 1, 1")
    e(f"v_lshl_add_u32 {T0}, {T0}, 1, {T3}")
    e(f"v_lshl_add_u32 {T2}, {T0}, 4, {T2}")
    e(f"v_and_b32 {T3}, 1, {L}")
    e(f"v_lshl_add_u32 {T2}, {T3}, 3, {T2}")
    e(f"s_lshl_b32 s{S_T0}, s{S_WAVE}, 14")
    e(f"v_add_u32 {T2}, s{S_T0}, {T2}")
    e(f"v_bfe_u32 {T1}, {L}, 3, 1")
    for nb2 in range(2):
        e(f"v_xor_b32 {T3}, {nb2}, {T1}")
        e(f"v_lshl_add_u32 v{V_WA+nb2}, {T3}, 6, {T2}")
    e(f"s_lshl_b32 s{S_T0}, s{S_MB}, 6")
    e(f"v_and_b32 {T0}, 31, {L}")
    e(f"v_add_u32 {T0}, s{S_T0}, {T0}")
    e(f"v_lshlrev_b32 {T0}, 13, {T0}")
    e(f"s_lshl_b32 s{S_T0}, s{S_WAVE}, 11")
    e(f"v_add_u32 {T0}, s{S_T0}, {T0}")
    e(f"v_lshrrev_b32 {T1}, 5, {L}")
    e(f"v_lshl_add_u32 v{V_OA}, {T1}, 5, {T0}")
    e(f"v_add_u32 v{V_OA+1}, 0x40000, v{V_OA}")
    S_M0W = 48
    e(f"s_lshl_b32 s{S_M0W}, s{S_WAVE}, 14")

    NCH = 32
    def issue(c):
        slot = c % 4
        e(f"s_add_u32 s{S_SOFF}, s{S_KO}, {c*32*1152}")
        for j in range(4):
            e(f"s_add_u32 m0, s{S_M0W}, {slot*4096 + j*1024}")
            if j > 0:
                e(f"s_add_u32 s{S_SOFF}, s{S_SOFF}, {8*1152}")
            e("s_nop 0")
            e(f"buffer_load_dwordx4 v{V_WD}, {sr(SRD_W,4)}, s{S_SOFF} offen lds")
        for mb2 in range(2):
            for st in range(2):
                f = V_BF + 16*slot + 8*mb2 + 4*st
                e(f"buffer_load_dwordx4 {vr(f,4)}, v{V_OA+mb2}, {sr(SRD_O,4)}, 0 offen offset:{(c*64) % 4096 + st*16}")
    for c in range(3):
        issue(c)
    for c in range(NCH):
        slot = c % 4
        rem = min(NCH - 1 - c, 2)
        e(f"s_waitcnt vmcnt({8*rem})")
        ab = V_AF + 16*(c % 2)
        for nb2 in range(2):
            for st in range(2):
                for u in range(2):
                    e(f"ds_read_b64_tr_b16 {vr(ab+8*nb2+4*st+2*u,2)}, v{V_WA+nb2} offset:{slot*4096 + (st*8+4*u)*128}")
        e("s_waitcnt lgkmcnt(0)")
        if c + 3 < NCH:
            issue(c + 3)
        for st in range(2):
            for nb2 in range(2):
                for mb2 in range(2):
                    acc = vr(V_ACC + 32*nb2 + 16*mb2, 16)
                    cc = "0" if (c == 0 and st == 0) else acc
                    e(f"v_mfma_f32_32x32x16_bf16 {acc}, {vr(ab+8*nb2+4*st,4)}, {vr(V_BF+16*slot+8*mb2+4*st,4)}, {cc}")
    e.nop(16)
    e("s_barrier")
    e(f"v_lshlrev_b32 {T0}, 2, {L}")
    e(f"s_lshl_b32 s{S_T0}, s{S_WAVE}, 14")
    e(f"v_add_u32 {T1}, s{S_T0}, {T0}")
    for i in range(64):
        e(f"ds_write_b32 {T1}, v{V_ACC+i} offset:{i*256}")
    e("s_waitcnt lgkmcnt(0)")
    e("s_barrier")
    e(f"s_lshl_b32 s{S_T0}, s{S_WAVE}, 12")
    e(f"v_add_u32 {T1}, s{S_T0}, {T0}")
    for w in range(4):
        for i in range(16):
            e(f"ds_read_b32 v{V_BF+16*w+i}, {T1} offset:{w*16384 + i*256}")
    e("s_waitcnt lgkmcnt(0)")
    for i in range(16):
        e(f"v_add_f32 v{V_BF+i}, v{V_BF+i}, v{V_BF+16+i}")
        e(f"v_add_f32 v{V_BF+32+i}, v{V_BF+32+i}, v{V_BF+48+i}")
        e(f"v_add_f32 v{V_BF+i}, v{V_BF+i}, v{V_BF+32+i}")
    e(f"s_lshl_b32 s{S_T0}, s{S_MB}, 6")
    e(f"s_and_b32 s{S_T1}, s{S_WAVE}, 1")
    e(f"s_lshl_b32 s{S_T1}, s{S_T1}, 5")
    e(f"s_add_u32 s{S_T0}, s{S_T0}, s{S_T1}")
    e(f"v_and_b32 {T0}, 31, {L}")
    e(f"v_add_u32 {T0}, s{S_T0}, {T0}")
    e(f"s_movk_i32 s{S_T1}, 1152")
    e(f"v_mul_lo_u32 {T0}, {T0}, s{S_T1}")
    e(f"s_lshl_b32 s{S_T0}, s{S_NB}, 7")
    e(f"s_lshr_b32 s{S_T1}, s{S_WAVE}, 1")
    e(f"s_lshl_b32 s{S_T1}, s{S_T1}, 6")
    e(f"s_add_u32 s{S_T0}, s{S_T0}, s{S_T1}")
    e(f"v_add_u32 {T0}, s{S_T0}, {T0}")
    e(f"v_lshrrev_b32 {T1}, 5, {L}")
    e(f"v_lshl_add_u32 v{V_OUT}, {T1}, 4, {T0}")
    for pr in range(2):
        src = V_BF + 8*pr
        q = V_AF + 4*pr
        for j in range(4):
            e(f"v_cvt_pk_bf16_f32 v{q+j}, v{src+2*j}, v{src+2*j+1}")
        e("s_nop 1")
        e(f"v_permlane32_swap_b32 v{q}, v{q+2}")
        e(f"v_permlane32_swap_b32 v{q+1}, v{q+3}")
        e("s_nop 1")
        e(f"buffer_store_dwordx4 {vr(q,4)}, v{V_OUT}, {sr(SRD_OUT,4)}, 0 offen offset:{pr*32}")
    e.label("oproj_end")
    e("s_endpgm")

def desc(name, nfv, acc, sgpr=102):
    return f""".amdhsa_kernel {name}
  .amdhsa_next_free_vgpr {nfv}
  .amdhsa_next_free_sgpr {sgpr}
  .amdhsa_accum_offset {acc}
  .amdhsa_group_segment_fixed_size 0
  .amdhsa_kernarg_size 64
  .amdhsa_user_sgpr_count 2
  .amdhsa_user_sgpr_kernarg_segment_ptr 1
  .amdhsa_system_sgpr_workgroup_id_x 1
.end_amdhsa_kernel
"""

def main():
    hdr = open("standalone__gqa_block_cached__near_ridge.s.ref").read().split("; Override launch")[0]
    e = Em()
    gen_attn(e)
    gen_oproj(e)
    out = hdr
    out += "; @launch kernel=attn_kernel grid=(256,1,1) block=(256,1,1) lds=163840\n"
    out += "; @launch kernel=oproj_kernel grid=(144,1,1) block=(256,1,1) lds=65536\n"
    out += '.amdgcn_target "amdgcn-amd-amdhsa--gfx950"\n.text\n'
    out += e.text()
    out += '.section .rodata,"a"\n.p2align 6\n'
    out += desc("attn_kernel", 400, 256)
    out += ".p2align 6\n"
    out += desc("oproj_kernel", 256, 256)
    path = sys.argv[1] if len(sys.argv) > 1 else "standalone__gqa_block_cached__near_ridge.s"
    open(path, "w").write(out)

main()
```

```python
import sys, struct

class Em:
    def __init__(self):
        self.lines = []
    def __call__(self, s):
        self.lines.append("    " + s)
    def label(self, s):
        self.lines.append(s + ":")
    def raw(self, s):
        self.lines.append(s)
    def nop(self, n):
        while n > 0:
            k = min(n, 16)
            self(f"s_nop {k-1}")
            n -= k
    def text(self):
        return "\n".join(self.lines) + "\n"

def vr(b, n=1):
    return f"v{b}" if n == 1 else f"v[{b}:{b+n-1}]"
def ar(b, n=1):
    return f"a{b}" if n == 1 else f"a[{b}:{b+n-1}]"
def sr(b, n=1):
    return f"s{b}" if n == 1 else f"s[{b}:{b+n-1}]"
def f32hex(x):
    return "0x%08x" % struct.unpack("<I", struct.pack("<f", x))[0]

LOG2E = 1.4426950408889634
SCALE = 128 ** -0.5
OPT = sys.argv[2] if len(sys.argv) > 2 else ""
STAMP = "stamp" in OPT
NT_KV = " nt" if "nt" in OPT.split("_") else ""

def stamp(e, idx):
    if not STAMP: return
    e("s_memtime s[60:61]")
    e("s_waitcnt lgkmcnt(0)")
    e(f"s_mov_b32 s{62+idx}, s60")

def stamp_flush(e, n, wavereg, tag):
    if not STAMP: return
    e("s_load_dwordx2 s[56:57], s[0:1], 48")
    e("s_waitcnt lgkmcnt(0)")
    e("s_mov_b32 s52, s56")
    e("s_mov_b32 s53, s57")
    e("s_mov_b32 s54, 256")
    e("s_mov_b32 s55, 0x20000")
    e("s_cmp_lg_u32 s2, 5")
    e(f"s_cbranch_scc1 stamp_skip_{tag}")
    e(f"s_lshl_b32 s58, s{wavereg}, 5")
    for i in range(n):
        e(f"s_sub_u32 s59, s{62+i}, s62")
        e("v_mov_b32 v2, s59")
        e(f"v_mov_b32 v3, s58")
        e(f"buffer_store_dword v2, v3, s[52:55], 0 offen offset:{4*i}")
    e.label(f"stamp_skip_{tag}")

def gen_attn(e):
    name = "attn_kernel"
    e.raw(f".globl {name}")
    e.raw(".p2align 8")
    e.raw(f".type {name},@function")
    e.label(name)
    S_X, S_K, S_V, S_WQ, S_WS = 4, 6, 8, 10, 16
    SRD_K, SRD_X, SRD_WQ, SRD_O = 20, 28, 32, 36
    S_WAVE, S_HKV, S_B = 40, 41, 42
    S_T0, S_T1, S_T2, S_SOFF, S_C = 43, 44, 45, 46, 47
    S_CNT, S_STG, S_ROT, S_XOFF = 48, 49, 50, 51
    V_LANE = 1
    V_KA = 8
    V_VA = 16
    V_KW = 20
    V_VW = 28
    V_D = 32
    V_WD = 36
    V_WA = 38
    V_WW = 42
    V_XO = 46
    V_M, V_L = 47, 48
    V_T0, V_T1, V_T2, V_T3 = 49, 50, 51, 52
    V_OO = 53
    V_AL2 = 54
    V_O = 64
    V_S = 128
    V_Q = 160
    V_KF = 192
    V_VF = 208
    V_P = 224
    V_XF = 224
    STAGE = 32768
    WQ0 = 98304
    NCH = 18

    e("s_cmp_ge_u32 s2, 256")
    e("s_cbranch_scc1 attn_end")
    e("s_load_dwordx4 s[4:7], s[0:1], 0")
    e("s_load_dwordx4 s[8:11], s[0:1], 16")
    e("s_load_dwordx2 s[16:17], s[0:1], 56")
    stamp(e, 0)
    e(f"v_and_b32 v{V_LANE}, 63, v0")
    e(f"v_lshrrev_b32 v2, 6, v0")
    e("s_nop 0")
    e(f"v_readfirstlane_b32 s{S_WAVE}, v2")
    e(f"s_and_b32 s{S_HKV}, s2, 15")
    e(f"s_lshr_b32 s{S_B}, s2, 4")
    e(f"s_add_u32 s{S_ROT}, s{S_HKV}, s{S_B}")
    L = f"v{V_LANE}"
    T0, T1, T2, T3 = (f"v{x}" for x in (V_T0, V_T1, V_T2, V_T3))
    e("s_waitcnt lgkmcnt(0)")
    e(f"s_cmp_ge_u32 s{S_WAVE}, 4")
    e("s_cbranch_scc1 attn_loader")

    e(f"s_mul_i32 s{S_T0}, s{S_B}, 73728")
    e(f"s_add_u32 s{SRD_X}, s{S_X}, s{S_T0}")
    e(f"s_addc_u32 s{SRD_X+1}, s{S_X+1}, 0")
    e(f"s_mov_b32 s{SRD_X+2}, 73728")
    e(f"s_mov_b32 s{SRD_X+3}, 0x20000")
    e(f"s_lshl_b32 s{S_T0}, s{S_HKV}, 9")
    e(f"s_add_u32 s{SRD_WQ}, s{S_WQ}, s{S_T0}")
    e(f"s_addc_u32 s{SRD_WQ+1}, s{S_WQ+1}, 0")
    e(f"s_sub_u32 s{SRD_WQ+2}, {576*8192}, s{S_T0}")
    e(f"s_mov_b32 s{SRD_WQ+3}, 0x20000")
    e(f"s_mov_b32 s{SRD_O}, s{S_WS}")
    e(f"s_mov_b32 s{SRD_O+1}, s{S_WS+1}")
    e(f"s_mov_b32 s{SRD_O+2}, 0x800000")
    e(f"s_mov_b32 s{SRD_O+3}, 0x20000")
    e(f"s_and_b32 s{S_T0}, s{S_WAVE}, 1")
    e(f"s_lshl_b32 s{S_T0}, s{S_T0}, 5")
    e(f"v_and_b32 {T0}, 31, {L}")
    e(f"v_add_u32 {T0}, s{S_T0}, {T0}")
    e(f"s_movk_i32 s{S_T1}, 1152")
    e(f"v_mul_lo_u32 {T0}, {T0}, s{S_T1}")
    e(f"v_lshrrev_b32 {T1}, 5, {L}")
    e(f"v_lshl_add_u32 v{V_XO}, {T1}, 4, {T0}")
    e(f"v_lshrrev_b32 {T0}, 5, {L}")
    e(f"v_and_b32 {T1}, 31, {L}")
    e(f"v_lshlrev_b32 {T2}, 13, {T0}")
    for odd in range(2):
        e(f"v_add_u32 {T3}, {2*odd}, {T0}")
        e(f"v_lshlrev_b32 {T3}, 2, {T3}")
        e(f"v_xor_b32 {T3}, {T3}, {T1}")
        e(f"v_lshl_add_u32 v{V_WD+odd}, {T3}, 4, {T2}")
    S_WQR, S_WQL = 52, 53
    e(f"s_lshl_b32 s{S_WQR}, s{S_WAVE}, 16")
    e(f"s_lshl_b32 s{S_WQL}, s{S_WAVE}, 12")
    e(f"s_add_u32 s{S_WQL}, s{S_WQL}, {WQ0}")

    def wq_issue(cexpr_const=None):
        pass

    def issue_chunk_const(c):
        slot = c % 4
        for st in range(2):
            e(f"buffer_load_dwordx4 {vr(V_XF+8*slot+4*st,4)}, v{V_XO}, {sr(SRD_X,4)}, 0 offen offset:{c*64+st*32}")
        for j in range(4):
            e(f"s_add_u32 s{S_SOFF}, s{S_WQR}, {c*32*8192 + j*16384}")
            e(f"s_add_u32 m0, s{S_WQL}, {slot*16384 + j*1024}")
            e("s_nop 0")
            e(f"buffer_load_dwordx4 v{V_WD+(j%2)}, {sr(SRD_WQ,4)}, s{S_SOFF} offen lds")
    for c in range(3):
        issue_chunk_const(c)

    e(f"v_lshrrev_b32 {T0}, 5, {L}")
    e(f"v_and_b32 {T1}, 15, {L}")
    e(f"v_xor_b32 {T0}, {T0}, {T1}")
    e(f"v_and_b32 {T1}, 31, {L}")
    e(f"v_lshlrev_b32 {T1}, 8, {T1}")
    for ks in range(8):
        e(f"v_xor_b32 {T2}, {2*ks}, {T0}")
        e(f"v_lshl_add_u32 v{V_KA+ks}, {T2}, 4, {T1}")
    e(f"v_lshrrev_b32 {T0}, 5, {L}")
    e(f"v_bfe_u32 {T1}, {L}, 2, 2")
    e(f"v_lshl_add_u32 {T2}, {T0}, 2, {T1}")
    e(f"v_lshlrev_b32 {T2}, 8, {T2}")
    e(f"v_add_u32 {T2}, 16384, {T2}")
    e(f"v_bfe_u32 {T0}, {L}, 4, 1")
    e(f"v_bfe_u32 {T3}, {L}, 1, 1")
    e(f"v_lshl_add_u32 {T0}, {T0}, 1, {T3}")
    e(f"v_lshl_add_u32 {T2}, {T0}, 4, {T2}")
    e(f"v_and_b32 {T3}, 1, {L}")
    e(f"v_lshl_add_u32 {T2}, {T3}, 3, {T2}")
    for db in range(4):
        e(f"v_xor_b32 {T3}, {db}, {T1}")
        e(f"v_lshl_add_u32 v{V_VA+db}, {T3}, 6, {T2}")
    e(f"v_lshrrev_b32 {T0}, 5, {L}")
    e(f"v_bfe_u32 {T1}, {L}, 2, 2")
    e(f"v_lshl_add_u32 {T2}, {T0}, 3, {T1}")
    e(f"v_lshlrev_b32 {T2}, 9, {T2}")
    e(f"v_bfe_u32 {T0}, {L}, 4, 1")
    e(f"v_bfe_u32 {T3}, {L}, 1, 1")
    e(f"v_lshl_add_u32 {T0}, {T0}, 1, {T3}")
    e(f"v_lshl_add_u32 {T2}, {T0}, 4, {T2}")
    e(f"v_and_b32 {T3}, 1, {L}")
    e(f"v_lshl_add_u32 {T2}, {T3}, 3, {T2}")
    e(f"v_add_u32 {T2}, {WQ0}, {T2}")
    e(f"s_lshr_b32 s{S_T0}, s{S_WAVE}, 1")
    e(f"s_lshl_b32 s{S_T0}, s{S_T0}, 2")
    for db in range(4):
        e(f"s_add_u32 s{S_T1}, s{S_T0}, {db}")
        e(f"v_xor_b32 {T3}, s{S_T1}, {T1}")
        e(f"v_lshl_add_u32 v{V_WA+db}, {T3}, 6, {T2}")
    e(f"s_and_b32 s{S_T0}, s{S_WAVE}, 1")
    e(f"s_lshl_b32 s{S_T0}, s{S_T0}, 5")
    e(f"s_lshl_b32 s{S_T1}, s{S_B}, 6")
    e(f"s_add_u32 s{S_T0}, s{S_T0}, s{S_T1}")
    e(f"v_and_b32 {T0}, 31, {L}")
    e(f"v_add_u32 {T0}, s{S_T0}, {T0}")
    e(f"v_lshlrev_b32 {T0}, 13, {T0}")
    e(f"s_lshl_b32 s{S_T0}, s{S_HKV}, 1")
    e(f"s_lshr_b32 s{S_T1}, s{S_WAVE}, 1")
    e(f"s_add_u32 s{S_T0}, s{S_T0}, s{S_T1}")
    e(f"s_lshl_b32 s{S_T0}, s{S_T0}, 8")
    e(f"v_add_u32 {T0}, s{S_T0}, {T0}")
    e(f"v_lshrrev_b32 {T1}, 5, {L}")
    e(f"v_lshl_add_u32 v{V_OO}, {T1}, 4, {T0}")
    for i in range(64):
        e(f"v_mov_b32 v{V_O+i}, 0")

    def qchunk(slot, issue_next, wait_n):
        e(f"s_waitcnt vmcnt({wait_n})")
        e("s_barrier")
        if issue_next:
            ns = (slot + 3) % 4
            e(f"s_add_u32 s{S_T0}, s{S_CNT}, {slot+3}")
            e(f"s_lshl_b32 s{S_XOFF}, s{S_T0}, 6")
            for st in range(2):
                e(f"buffer_load_dwordx4 {vr(V_XF+8*ns+4*st,4)}, v{V_XO}, {sr(SRD_X,4)}, s{S_XOFF} offen offset:{st*32}")
            e(f"s_lshl_b32 s{S_T0}, s{S_T0}, 18")
            e(f"s_add_u32 s{S_T0}, s{S_T0}, s{S_WQR}")
            for j in range(4):
                e(f"s_add_u32 s{S_SOFF}, s{S_T0}, {j*16384}")
                e(f"s_add_u32 m0, s{S_WQL}, {ns*16384 + j*1024}")
                e("s_nop 0")
                e(f"buffer_load_dwordx4 v{V_WD+(j%2)}, {sr(SRD_WQ,4)}, s{S_SOFF} offen lds")
        seq = [(ks, db) for ks in range(2) for db in range(4)]
        for idx, (ks, db) in enumerate(seq):
            f = V_KF + 4*idx
            for u in range(2):
                e(f"ds_read_b64_tr_b16 {vr(f+2*u,2)}, v{V_WA+db} offset:{slot*16384 + (ks*16+4*u)*512}")
        for idx, (ks, db) in enumerate(seq):
            f = V_KF + 4*idx
            e(f"s_waitcnt lgkmcnt({2*(7-idx)})")
            acc = vr(V_O + 16*db, 16)
            e(f"v_mfma_f32_32x32x16_bf16 {acc}, {vr(f,4)}, {vr(V_XF+8*slot+4*ks,4)}, {acc}")
    e(f"s_mov_b32 s{S_CNT}, 0")
    e.label("attn_qloop")
    for slot in range(4):
        qchunk(slot, True, 12)
    e(f"s_add_u32 s{S_CNT}, s{S_CNT}, 4")
    e(f"s_cmp_lt_u32 s{S_CNT}, 12")
    e("s_cbranch_scc1 attn_qloop")
    qchunk(0, True, 12)
    qchunk(1, True, 12)
    qchunk(2, True, 12)
    qchunk(3, False, 12)
    qchunk(0, False, 6)
    qchunk(1, False, 0)
    stamp(e, 1)
    e.nop(16)
    for ks in range(8):
        db, hf = ks // 2, ks % 2
        src = V_O + 16*db + 8*hf
        q = V_Q + 4*ks
        for j in range(4):
            e(f"v_cvt_pk_bf16_f32 v{q+j}, v{src+2*j}, v{src+2*j+1}")
        e("s_nop 1")
        e(f"v_permlane32_swap_b32 v{q}, v{q+2}")
        e(f"v_permlane32_swap_b32 v{q+1}, v{q+3}")
    e(f"v_mov_b32 v{V_M}, 0xff800000")
    e(f"v_mov_b32 v{V_L}, 0")
    for i in range(64):
        e(f"v_mov_b32 v{V_O+i}, 0")
    e(f"s_mov_b32 s{S_C}, {f32hex(SCALE*LOG2E)}")
    e(f"s_mov_b32 s{S_CNT}, 0")

    e.label("attn_loop")
    e(f"s_and_b32 s{S_STG}, s{S_CNT}, 3")
    e(f"s_lshl_b32 s{S_STG}, s{S_STG}, 15")
    for i in range(8):
        e(f"v_add_u32 v{V_KW+i}, s{S_STG}, v{V_KA+i}")
    for i in range(4):
        e(f"v_add_u32 v{V_VW+i}, s{S_STG}, v{V_VA+i}")
    e("s_barrier")
    seq = [(kb, ks) for kb in range(2) for ks in range(8)]
    def rdk(idx):
        kb, ks = seq[idx]
        f = V_KF + 4*(idx % 4)
        e(f"ds_read_b128 {vr(f,4)}, v{V_KW+ks} offset:{kb*8192}")
    for idx in range(4):
        rdk(idx)
    for idx in range(16):
        kb, ks = seq[idx]
        f = V_KF + 4*(idx % 4)
        after = min(16, idx + 4) - idx - 1
        e(f"s_waitcnt lgkmcnt({after})")
        acc = vr(V_S + 16*kb, 16)
        cc = "0" if ks == 0 else acc
        e(f"v_mfma_f32_32x32x16_bf16 {acc}, {vr(f,4)}, {vr(V_Q+4*ks,4)}, {cc}")
        if idx + 4 < 16:
            rdk(idx + 4)
    seqv = [(ks, db) for ks in range(4) for db in range(4)]
    def rdv(idx):
        ks, db = seqv[idx]
        f = V_VF + 4*(idx % 4)
        for u in range(2):
            e(f"ds_read_b64_tr_b16 {vr(f+2*u,2)}, v{V_VW+db} offset:{ks*4096 + u*2048}")
    for idx in range(4):
        rdv(idx)
    e.nop(12)
    S = lambda i: f"v{V_S+i}"
    e(f"v_max3_f32 {T0}, {S(0)}, {S(1)}, {S(2)}")
    e(f"v_max3_f32 {T1}, {S(3)}, {S(4)}, {S(5)}")
    for i in range(6, 30, 4):
        e(f"v_max3_f32 {T0}, {T0}, {S(i)}, {S(i+1)}")
        e(f"v_max3_f32 {T1}, {T1}, {S(i+2)}, {S(i+3)}")
    e(f"v_max3_f32 {T0}, {T0}, {S(30)}, {S(31)}")
    e(f"v_max_f32 {T0}, {T0}, {T1}")
    e(f"v_mov_b32 {T1}, {T0}")
    e("s_nop 1")
    e(f"v_permlane32_swap_b32 {T0}, {T1}")
    e("s_nop 1")
    e(f"v_max3_f32 {T0}, {T0}, {T1}, v{V_M}")
    e(f"v_sub_f32 {T1}, v{V_M}, {T0}")
    e(f"v_mul_f32 {T1}, s{S_C}, {T1}")
    e(f"v_exp_f32 v{V_AL2}, {T1}")
    e(f"v_mov_b32 v{V_M}, {T0}")
    e(f"v_mul_f32 {T0}, s{S_C}, {T0}")
    e(f"v_mov_b32 v{V_AL2+1}, v{V_AL2}")
    for i in range(32):
        e(f"v_fma_f32 {S(i)}, {S(i)}, s{S_C}, -{T0}")
    for i in range(32):
        e(f"v_exp_f32 {S(i)}, {S(i)}")
    e(f"v_mul_f32 v{V_L}, v{V_L}, v{V_AL2}")
    e(f"v_add_f32 {T1}, {S(0)}, {S(1)}")
    e(f"v_add_f32 {T2}, {S(2)}, {S(3)}")
    for i in range(4, 32, 2):
        tt = T1 if (i // 2) % 2 == 0 else T2
        e(f"v_add_f32 {tt}, {tt}, {S(i)}")
        e(f"v_add_f32 {tt}, {tt}, {S(i+1)}")
    e(f"v_add_f32 {T1}, {T1}, {T2}")
    e(f"v_add_f32 v{V_L}, v{V_L}, {T1}")
    for ks in range(4):
        for j in range(4):
            e(f"v_cvt_pk_bf16_f32 v{V_P+4*ks+j}, {S(8*ks+2*j)}, {S(8*ks+2*j+1)}")
    for i in range(0, 64, 2):
        e(f"v_pk_mul_f32 {vr(V_O+i,2)}, {vr(V_O+i,2)}, {vr(V_AL2,2)}")
    e("s_nop 1")
    for idx in range(16):
        ks, db = seqv[idx]
        f = V_VF + 4*(idx % 4)
        after = min(16, idx + 4) - idx - 1
        e(f"s_waitcnt lgkmcnt({2*after})")
        acc = vr(V_O + 16*db, 16)
        e(f"v_mfma_f32_32x32x16_bf16 {acc}, {vr(f,4)}, {vr(V_P+4*ks,4)}, {acc}")
        if idx + 4 < 16:
            rdv(idx + 4)
    e(f"s_add_u32 s{S_CNT}, s{S_CNT}, 1")
    e(f"s_cmp_lt_u32 s{S_CNT}, 16")
    e("s_cbranch_scc1 attn_loop")
    stamp(e, 2)
    e.nop(16)
    e(f"v_mov_b32 {T0}, v{V_L}")
    e(f"v_mov_b32 {T1}, v{V_L}")
    e("s_nop 1")
    e(f"v_permlane32_swap_b32 {T0}, {T1}")
    e("s_nop 1")
    e(f"v_add_f32 {T0}, {T0}, {T1}")
    e(f"v_rcp_f32 v{V_AL2}, {T0}")
    e("s_nop 1")
    e(f"v_mov_b32 v{V_AL2+1}, v{V_AL2}")
    for i in range(0, 64, 2):
        e(f"v_pk_mul_f32 {vr(V_O+i,2)}, {vr(V_O+i,2)}, {vr(V_AL2,2)}")
    for db in range(4):
        for pr in range(2):
            src = V_O + 16*db + 8*pr
            q = V_S + 4*(2*db+pr)
            for j in range(4):
                e(f"v_cvt_pk_bf16_f32 v{q+j}, v{src+2*j}, v{src+2*j+1}")
            e("s_nop 1")
            e(f"v_permlane32_swap_b32 v{q}, v{q+2}")
            e(f"v_permlane32_swap_b32 v{q+1}, v{q+3}")
            e("s_nop 1")
            e(f"buffer_store_dwordx4 {vr(q,4)}, v{V_OO}, {sr(SRD_O,4)}, 0 offen offset:{(db*32+pr*16)*2}")
    if STAMP:
        e("s_waitcnt vmcnt(0)")
    stamp(e, 3)
    stamp_flush(e, 4, S_WAVE, "c")
    e("s_endpgm")

    e.label("attn_loader")
    e(f"s_lshl_b32 s{S_T0}, s2, 18")
    e(f"s_cmp_eq_u32 s{S_WAVE}, 4")
    e(f"s_cselect_b32 s{S_T1}, s{S_K}, s{S_V}")
    e(f"s_cselect_b32 s{S_T2}, s{S_K+1}, s{S_V+1}")
    e(f"s_add_u32 s{SRD_K}, s{S_T1}, s{S_T0}")
    e(f"s_addc_u32 s{SRD_K+1}, s{S_T2}, 0")
    e(f"s_mov_b32 s{SRD_K+2}, 0x40000")
    e(f"s_mov_b32 s{SRD_K+3}, 0x20000")
    e(f"v_lshrrev_b32 {T0}, 4, {L}")
    e(f"v_and_b32 {T1}, 15, {L}")
    e(f"v_lshlrev_b32 {T2}, 8, {T0}")
    e(f"s_cmp_eq_u32 s{S_WAVE}, 4")
    e(f"s_cbranch_scc0 attn_ldv")
    e(f"v_xor_b32 {T1}, {T1}, {T0}")
    for i in range(4):
        e(f"v_xor_b32 {T3}, {4*i}, {T1}")
        e(f"v_lshl_add_u32 v{V_D+i}, {T3}, 4, {T2}")
    e(f"s_mov_b32 s{S_XOFF}, 0")
    e("s_branch attn_ld2")
    e.label("attn_ldv")
    e(f"v_lshlrev_b32 {T3}, 2, {T0}")
    e(f"v_xor_b32 {T1}, {T1}, {T3}")
    for i in range(4):
        e(f"v_lshl_add_u32 v{V_D+i}, {T1}, 4, {T2}")
    e(f"s_mov_b32 s{S_XOFF}, 16384")
    e.label("attn_ld2")
    def tile_issue():
        e(f"s_add_u32 s{S_SOFF}, s{S_ROT}, s{S_T2}")
        e(f"s_and_b32 s{S_SOFF}, s{S_SOFF}, 15")
        e(f"s_lshl_b32 s{S_SOFF}, s{S_SOFF}, 14")
        e(f"s_and_b32 s{S_STG}, s{S_T2}, 3")
        e(f"s_lshl_b32 s{S_STG}, s{S_STG}, 15")
        e(f"s_add_u32 s{S_STG}, s{S_STG}, s{S_XOFF}")
        for g in range(4):
            e(f"s_mov_b32 m0, s{S_STG}")
            e(f"s_add_u32 s{S_STG}, s{S_STG}, 4096")
            for i in range(4):
                e(f"buffer_load_dwordx4 v{V_D+i}, {sr(SRD_K,4)}, s{S_SOFF} offen offset:{i*1024}{NT_KV} lds")
            e(f"s_add_u32 s{S_SOFF}, s{S_SOFF}, 4096")
    e(f"s_mov_b32 s{S_T2}, 0")
    e.label("attn_ldpro")
    tile_issue()
    e(f"s_add_u32 s{S_T2}, s{S_T2}, 1")
    e(f"s_cmp_lt_u32 s{S_T2}, 3")
    e("s_cbranch_scc1 attn_ldpro")
    e(f"s_mov_b32 s{S_CNT}, 0")
    e.label("attn_ldbar")
    e("s_barrier")
    e(f"s_add_u32 s{S_CNT}, s{S_CNT}, 1")
    e(f"s_cmp_lt_u32 s{S_CNT}, {NCH}")
    e("s_cbranch_scc1 attn_ldbar")
    e(f"s_mov_b32 s{S_CNT}, 0")
    e.label("attn_ldloop")
    e(f"s_cmp_lt_u32 s{S_CNT}, 14")
    e("s_cbranch_scc1 attn_ldw32")
    e(f"s_cmp_eq_u32 s{S_CNT}, 14")
    e("s_cbranch_scc1 attn_ldw16")
    e("s_waitcnt vmcnt(0)")
    e("s_branch attn_ldw")
    e.label("attn_ldw16")
    e("s_waitcnt vmcnt(16)")
    e("s_branch attn_ldw")
    e.label("attn_ldw32")
    e("s_waitcnt vmcnt(32)")
    e.label("attn_ldw")
    e("s_barrier")
    e(f"s_add_u32 s{S_T2}, s{S_CNT}, 3")
    e(f"s_cmp_ge_u32 s{S_T2}, 16")
    e("s_cbranch_scc1 attn_ldskip")
    tile_issue()
    e.label("attn_ldskip")
    e(f"s_add_u32 s{S_CNT}, s{S_CNT}, 1")
    e(f"s_cmp_lt_u32 s{S_CNT}, 16")
    e("s_cbranch_scc1 attn_ldloop")
    e.label("attn_end")
    e("s_endpgm")

def gen_oproj(e):
    name = "oproj_kernel"
    e.raw(f".globl {name}")
    e.raw(".p2align 8")
    e.raw(f".type {name},@function")
    e.label(name)
    SRD_O, SRD_W, SRD_OUT = 20, 24, 28
    S_WAVE, S_MB, S_NB, S_T0, S_T1, S_SOFF, S_KO, S_CNT, S_OOFF = 40, 41, 42, 43, 44, 46, 47, 49, 50
    V_LANE = 1
    V_T0, V_T1, V_T2, V_T3 = 2, 3, 4, 5
    V_WD = 6
    V_WA = 8
    V_OA = 10
    V_OUT = 13
    V_ACC = 64
    V_BF = 128
    V_AF = 32
    NS = 8
    AHEAD = 6
    L = f"v{V_LANE}"
    T0, T1, T2, T3 = (f"v{x}" for x in (V_T0, V_T1, V_T2, V_T3))
    e("s_cmp_ge_u32 s2, 144")
    e("s_cbranch_scc1 oproj_end")
    e("s_load_dwordx4 s[4:7], s[0:1], 32")
    e("s_load_dwordx2 s[16:17], s[0:1], 56")
    e(f"v_and_b32 {L}, 63, v0")
    e(f"v_lshrrev_b32 v2, 6, v0")
    e("s_nop 0")
    e(f"v_readfirstlane_b32 s{S_WAVE}, v2")
    e(f"s_and_b32 s{S_MB}, s2, 15")
    e(f"s_lshr_b32 s{S_NB}, s2, 4")
    e("s_waitcnt lgkmcnt(0)")
    e(f"s_mov_b32 s{SRD_O}, s16")
    e(f"s_mov_b32 s{SRD_O+1}, s17")
    e(f"s_mov_b32 s{SRD_O+2}, 0x800000")
    e(f"s_mov_b32 s{SRD_O+3}, 0x20000")
    e(f"s_mov_b32 s{SRD_W}, s4")
    e(f"s_mov_b32 s{SRD_W+1}, s5")
    e(f"s_mov_b32 s{SRD_W+2}, {4096*1152}")
    e(f"s_mov_b32 s{SRD_W+3}, 0x20000")
    e(f"s_mov_b32 s{SRD_OUT}, s6")
    e(f"s_mov_b32 s{SRD_OUT+1}, s7")
    e(f"s_mov_b32 s{SRD_OUT+2}, {1024*1152}")
    e(f"s_mov_b32 s{SRD_OUT+3}, 0x20000")
    e(f"v_lshrrev_b32 {T0}, 3, {L}")
    e(f"s_movk_i32 s{S_T0}, 1152")
    e(f"v_mul_lo_u32 {T0}, {T0}, s{S_T0}")
    e(f"v_and_b32 {T1}, 7, {L}")
    e(f"v_bfe_u32 {T2}, {L}, 4, 1")
    e(f"v_lshlrev_b32 {T2}, 2, {T2}")
    e(f"v_xor_b32 {T1}, {T1}, {T2}")
    e(f"v_lshl_add_u32 v{V_WD}, {T1}, 4, {T0}")
    e(f"s_mul_i32 s{S_KO}, s{S_WAVE}, {1024*1152}")
    e(f"s_lshl_b32 s{S_T0}, s{S_NB}, 7")
    e(f"s_add_u32 s{S_KO}, s{S_KO}, s{S_T0}")
    e(f"v_lshrrev_b32 {T0}, 5, {L}")
    e(f"v_bfe_u32 {T1}, {L}, 2, 2")
    e(f"v_lshl_add_u32 {T2}, {T0}, 4, {T1}")
    e(f"v_lshlrev_b32 {T2}, 7, {T2}")
    e(f"v_bfe_u32 {T0}, {L}, 4, 1")
    e(f"v_bfe_u32 {T3}, {L}, 1, 1")
    e(f"v_lshl_add_u32 {T0}, {T0}, 1, {T3}")
    e(f"v_lshl_add_u32 {T2}, {T0}, 4, {T2}")
    e(f"v_and_b32 {T3}, 1, {L}")
    e(f"v_lshl_add_u32 {T2}, {T3}, 3, {T2}")
    e(f"s_lshl_b32 s{S_T0}, s{S_WAVE}, 15")
    e(f"v_add_u32 {T2}, s{S_T0}, {T2}")
    e(f"v_bfe_u32 {T1}, {L}, 3, 1")
    for nb2 in range(2):
        e(f"v_xor_b32 {T3}, {nb2}, {T1}")
        e(f"v_lshl_add_u32 v{V_WA+nb2}, {T3}, 6, {T2}")
    e(f"s_lshl_b32 s{S_T0}, s{S_MB}, 6")
    e(f"v_and_b32 {T0}, 31, {L}")
    e(f"v_add_u32 {T0}, s{S_T0}, {T0}")
    e(f"v_lshlrev_b32 {T0}, 13, {T0}")
    e(f"s_lshl_b32 s{S_T0}, s{S_WAVE}, 11")
    e(f"v_add_u32 {T0}, s{S_T0}, {T0}")
    e(f"v_lshrrev_b32 {T1}, 5, {L}")
    e(f"v_lshl_add_u32 v{V_OA}, {T1}, 5, {T0}")
    e(f"v_add_u32 v{V_OA+1}, 0x40000, v{V_OA}")
    S_M0W = 48
    e(f"s_lshl_b32 s{S_M0W}, s{S_WAVE}, 15")
    for i in range(64):
        e(f"v_mov_b32 v{V_ACC+i}, 0")
    NCH = 32
    e(f"s_mov_b32 s{S_SOFF}, s{S_KO}")
    e(f"s_mov_b32 s{S_OOFF}, 0")
    def issue(slot):
        for j in range(4):
            e(f"s_add_u32 m0, s{S_M0W}, {slot*4096 + j*1024}")
            e("s_nop 0")
            e(f"buffer_load_dwordx4 v{V_WD}, {sr(SRD_W,4)}, s{S_SOFF} offen lds")
            e(f"s_add_u32 s{S_SOFF}, s{S_SOFF}, {8*1152}")
        for mb2 in range(2):
            for st in range(2):
                f = V_BF + 16*slot + 8*mb2 + 4*st
                e(f"buffer_load_dwordx4 {vr(f,4)}, v{V_OA+mb2}, {sr(SRD_O,4)}, s{S_OOFF} offen offset:{st*16}")
        e(f"s_add_u32 s{S_OOFF}, s{S_OOFF}, 64")
    def body(slot, do_issue, wait):
        e(f"s_waitcnt vmcnt({wait})")
        ab = V_AF + 16*(slot % 2)
        for nb2 in range(2):
            for st in range(2):
                for u in range(2):
                    e(f"ds_read_b64_tr_b16 {vr(ab+8*nb2+4*st+2*u,2)}, v{V_WA+nb2} offset:{slot*4096 + (st*8+4*u)*128}")
        e("s_waitcnt lgkmcnt(0)")
        for st in range(2):
            for nb2 in range(2):
                for mb2 in range(2):
                    acc = vr(V_ACC + 32*nb2 + 16*mb2, 16)
                    e(f"v_mfma_f32_32x32x16_bf16 {acc}, {vr(ab+8*nb2+4*st,4)}, {vr(V_BF+16*slot+8*mb2+4*st,4)}, {acc}")
        if do_issue:
            issue((slot + AHEAD) % NS)
    for c in range(AHEAD):
        issue(c)
    e(f"s_mov_b32 s{S_CNT}, 0")
    e.label("oproj_loop")
    for slot in range(NS):
        body(slot, True, 8*(AHEAD-1))
    e(f"s_add_u32 s{S_CNT}, s{S_CNT}, 1")
    e(f"s_cmp_lt_u32 s{S_CNT}, 3")
    e("s_cbranch_scc1 oproj_loop")
    for c in range(24, 32):
        rem = min(NCH - 1 - c, AHEAD - 1)
        body(c % NS, c + AHEAD < NCH, 8*rem)
    e.nop(16)
    e("s_barrier")
    e(f"v_lshlrev_b32 {T0}, 2, {L}")
    e(f"s_lshl_b32 s{S_T0}, s{S_WAVE}, 14")
    e(f"v_add_u32 {T1}, s{S_T0}, {T0}")
    for i in range(64):
        e(f"ds_write_b32 {T1}, v{V_ACC+i} offset:{i*256}")
    e("s_waitcnt lgkmcnt(0)")
    e("s_barrier")
    e(f"s_lshl_b32 s{S_T0}, s{S_WAVE}, 12")
    e(f"v_add_u32 {T1}, s{S_T0}, {T0}")
    for w in range(4):
        for i in range(16):
            e(f"ds_read_b32 v{V_BF+16*w+i}, {T1} offset:{w*16384 + i*256}")
    e("s_waitcnt lgkmcnt(0)")
    for i in range(16):
        e(f"v_add_f32 v{V_BF+i}, v{V_BF+i}, v{V_BF+16+i}")
        e(f"v_add_f32 v{V_BF+32+i}, v{V_BF+32+i}, v{V_BF+48+i}")
        e(f"v_add_f32 v{V_BF+i}, v{V_BF+i}, v{V_BF+32+i}")
    e(f"s_lshl_b32 s{S_T0}, s{S_MB}, 6")
    e(f"s_and_b32 s{S_T1}, s{S_WAVE}, 1")
    e(f"s_lshl_b32 s{S_T1}, s{S_T1}, 5")
    e(f"s_add_u32 s{S_T0}, s{S_T0}, s{S_T1}")
    e(f"v_and_b32 {T0}, 31, {L}")
    e(f"v_add_u32 {T0}, s{S_T0}, {T0}")
    e(f"s_movk_i32 s{S_T1}, 1152")
    e(f"v_mul_lo_u32 {T0}, {T0}, s{S_T1}")
    e(f"s_lshl_b32 s{S_T0}, s{S_NB}, 7")
    e(f"s_lshr_b32 s{S_T1}, s{S_WAVE}, 1")
    e(f"s_lshl_b32 s{S_T1}, s{S_T1}, 6")
    e(f"s_add_u32 s{S_T0}, s{S_T0}, s{S_T1}")
    e(f"v_add_u32 {T0}, s{S_T0}, {T0}")
    e(f"v_lshrrev_b32 {T1}, 5, {L}")
    e(f"v_lshl_add_u32 v{V_OUT}, {T1}, 4, {T0}")
    for pr in range(2):
        src = V_BF + 8*pr
        q = V_AF + 4*pr
        for j in range(4):
            e(f"v_cvt_pk_bf16_f32 v{q+j}, v{src+2*j}, v{src+2*j+1}")
        e("s_nop 1")
        e(f"v_permlane32_swap_b32 v{q}, v{q+2}")
        e(f"v_permlane32_swap_b32 v{q+1}, v{q+3}")
        e("s_nop 1")
        e(f"buffer_store_dwordx4 {vr(q,4)}, v{V_OUT}, {sr(SRD_OUT,4)}, 0 offen offset:{pr*32}")
    e.label("oproj_end")
    e("s_endpgm")

def desc(name, nfv, acc, sgpr=102):
    return f""".amdhsa_kernel {name}
  .amdhsa_next_free_vgpr {nfv}
  .amdhsa_next_free_sgpr {sgpr}
  .amdhsa_accum_offset {acc}
  .amdhsa_group_segment_fixed_size 0
  .amdhsa_kernarg_size 64
  .amdhsa_user_sgpr_count 2
  .amdhsa_user_sgpr_kernarg_segment_ptr 1
  .amdhsa_system_sgpr_workgroup_id_x 1
.end_amdhsa_kernel
"""

def main():
    hdr = open("standalone__gqa_block_cached__near_ridge.s.ref").read().split("; Override launch")[0]
    e = Em()
    gen_attn(e)
    gen_oproj(e)
    out = hdr
    out += "; @launch kernel=attn_kernel grid=(256,1,1) block=(384,1,1) lds=163840\n"
    out += "; @launch kernel=oproj_kernel grid=(144,1,1) block=(256,1,1) lds=131072\n"
    out += '.amdgcn_target "amdgcn-amd-amdhsa--gfx950"\n.text\n'
    out += e.text()
    out += '.section .rodata,"a"\n.p2align 6\n'
    out += desc("attn_kernel", 256, 256)
    out += ".p2align 6\n"
    out += desc("oproj_kernel", 256, 256)
    path = sys.argv[1] if len(sys.argv) > 1 else "standalone__gqa_block_cached__near_ridge.s"
    open(path, "w").write(out)

main()
```

```python
import sys, struct

class Em:
    def __init__(self):
        self.lines = []
    def __call__(self, s):
        self.lines.append("    " + s)
    def label(self, s):
        self.lines.append(s + ":")
    def raw(self, s):
        self.lines.append(s)
    def nop(self, n):
        while n > 0:
            k = min(n, 16)
            self(f"s_nop {k-1}")
            n -= k
    def text(self):
        return "\n".join(self.lines) + "\n"

def vr(b, n=1):
    return f"v{b}" if n == 1 else f"v[{b}:{b+n-1}]"
def sr(b, n=1):
    return f"s{b}" if n == 1 else f"s[{b}:{b+n-1}]"
def f32hex(x):
    return "0x%08x" % struct.unpack("<I", struct.pack("<f", x))[0]

LOG2E = 1.4426950408889634
SCALE = 128 ** -0.5
OPT = sys.argv[2] if len(sys.argv) > 2 else ""
STAMP = "stamp" in OPT
NT_KV = " nt"

def stamp(e, idx):
    if not STAMP: return
    e("s_memtime s[60:61]")
    e("s_waitcnt lgkmcnt(0)")
    e(f"s_mov_b32 s{62+idx}, s60")

def stamp_flush(e, n, wavereg, tag):
    if not STAMP: return
    e("s_load_dwordx2 s[56:57], s[0:1], 48")
    e("s_waitcnt lgkmcnt(0)")
    e("s_mov_b32 s52, s56")
    e("s_mov_b32 s53, s57")
    e("s_mov_b32 s54, 256")
    e("s_mov_b32 s55, 0x20000")
    e("s_cmp_lg_u32 s2, 5")
    e(f"s_cbranch_scc1 stamp_skip_{tag}")
    e(f"s_lshl_b32 s58, s{wavereg}, 5")
    for i in range(n):
        e(f"s_sub_u32 s59, s{62+i}, s62")
        e("v_mov_b32 v2, s59")
        e(f"v_mov_b32 v3, s58")
        e(f"buffer_store_dword v2, v3, s[52:55], 0 offen offset:{4*i}")
    e.label(f"stamp_skip_{tag}")

def gen_attn(e):
    name = "attn_kernel"
    e.raw(f".globl {name}")
    e.raw(".p2align 8")
    e.raw(f".type {name},@function")
    e.label(name)
    S_X, S_K, S_V, S_WQ, S_WS = 4, 6, 8, 10, 16
    SRD_K, SRD_X, SRD_WQ, SRD_O = 20, 28, 32, 36
    S_WAVE, S_HKV, S_B = 40, 41, 42
    S_T0, S_T1, S_T2, S_SOFF, S_C = 43, 44, 45, 46, 47
    S_CNT, S_STG, S_ROT, S_XOFF, S_QB, S_KH = 48, 49, 50, 51, 72, 73
    V_LANE = 1
    V_T0, V_T1, V_T2, V_T3 = 2, 3, 4, 5
    V_KW = 6
    V_VW = 14
    V_M, V_L = 18, 19
    V_AL2 = 20
    V_OO = 22
    V_XO = 23
    V_WA = 6
    V_D = 6
    V_O = 24
    V_S = 88
    V_Q = 104
    V_F = 136
    V_P = 160
    V_XF = V_O + 32
    STAGE = 32768
    WQ0 = 98304
    QX0 = 131072
    NCH = 18

    e("s_cmp_ge_u32 s2, 256")
    e("s_cbranch_scc1 attn_end")
    e("s_load_dwordx4 s[4:7], s[0:1], 0")
    e("s_load_dwordx4 s[8:11], s[0:1], 16")
    e("s_load_dwordx2 s[16:17], s[0:1], 56")
    stamp(e, 0)
    e(f"v_and_b32 v{V_LANE}, 63, v0")
    e(f"v_lshrrev_b32 v2, 6, v0")
    e("s_nop 0")
    e(f"v_readfirstlane_b32 s{S_WAVE}, v2")
    e(f"s_and_b32 s{S_B}, s2, 15")
    e(f"s_lshr_b32 s{S_HKV}, s2, 4")
    e(f"s_add_u32 s{S_ROT}, s{S_HKV}, s{S_B}")
    L = f"v{V_LANE}"
    T0, T1, T2, T3 = (f"v{x}" for x in (V_T0, V_T1, V_T2, V_T3))
    e("s_waitcnt lgkmcnt(0)")
    e(f"s_cmp_ge_u32 s{S_WAVE}, 10")
    e("s_cbranch_scc1 attn_wqloader")
    e(f"s_cmp_ge_u32 s{S_WAVE}, 8")
    e("s_cbranch_scc1 attn_loader")

    e(f"s_and_b32 s{S_QB}, s{S_WAVE}, 3")
    e(f"s_lshr_b32 s{S_KH}, s{S_WAVE}, 2")
    e(f"s_mul_i32 s{S_T0}, s{S_B}, 73728")
    e(f"s_add_u32 s{SRD_X}, s{S_X}, s{S_T0}")
    e(f"s_addc_u32 s{SRD_X+1}, s{S_X+1}, 0")
    e(f"s_mov_b32 s{SRD_X+2}, 73728")
    e(f"s_mov_b32 s{SRD_X+3}, 0x20000")
    e(f"s_mov_b32 s{SRD_O}, s{S_WS}")
    e(f"s_mov_b32 s{SRD_O+1}, s{S_WS+1}")
    e(f"s_mov_b32 s{SRD_O+2}, 0x800000")
    e(f"s_mov_b32 s{SRD_O+3}, 0x20000")
    e(f"s_and_b32 s{S_T0}, s{S_QB}, 1")
    e(f"s_lshl_b32 s{S_T0}, s{S_T0}, 5")
    e(f"v_and_b32 {T0}, 31, {L}")
    e(f"v_add_u32 {T0}, s{S_T0}, {T0}")
    e(f"s_movk_i32 s{S_T1}, 1152")
    e(f"v_mul_lo_u32 {T0}, {T0}, s{S_T1}")
    e(f"v_lshrrev_b32 {T1}, 5, {L}")
    e(f"v_lshl_add_u32 v{V_XO}, {T1}, 4, {T0}")
    for c in range(3):
        for st in range(2):
            e(f"buffer_load_dwordx4 {vr(V_XF+8*c+4*st,4)}, v{V_XO}, {sr(SRD_X,4)}, 0 offen offset:{c*64+st*32}")
    e(f"v_lshrrev_b32 {T0}, 5, {L}")
    e(f"v_bfe_u32 {T1}, {L}, 2, 2")
    e(f"v_lshl_add_u32 {T2}, {T0}, 3, {T1}")
    e(f"v_lshlrev_b32 {T2}, 9, {T2}")
    e(f"v_bfe_u32 {T0}, {L}, 4, 1")
    e(f"v_bfe_u32 {T3}, {L}, 1, 1")
    e(f"v_lshl_add_u32 {T0}, {T0}, 1, {T3}")
    e(f"v_lshl_add_u32 {T2}, {T0}, 4, {T2}")
    e(f"v_and_b32 {T3}, 1, {L}")
    e(f"v_lshl_add_u32 {T2}, {T3}, 3, {T2}")
    e(f"v_add_u32 {T2}, {WQ0}, {T2}")
    e(f"s_lshr_b32 s{S_T0}, s{S_QB}, 1")
    e(f"s_lshl_b32 s{S_T0}, s{S_T0}, 2")
    e(f"s_lshl_b32 s{S_T1}, s{S_KH}, 1")
    e(f"s_add_u32 s{S_T0}, s{S_T0}, s{S_T1}")
    for d2 in range(2):
        e(f"s_add_u32 s{S_T1}, s{S_T0}, {d2}")
        e(f"v_xor_b32 {T3}, s{S_T1}, {T1}")
        e(f"v_lshl_add_u32 v{V_WA+d2}, {T3}, 6, {T2}")
    e(f"s_and_b32 s{S_T0}, s{S_QB}, 1")
    e(f"s_lshl_b32 s{S_T1}, s{S_B}, 1")
    e(f"s_add_u32 s{S_T0}, s{S_T0}, s{S_T1}")
    e(f"s_lshl_b32 s{S_T0}, s{S_T0}, 18")
    e(f"s_lshl_b32 s{S_T1}, s{S_HKV}, 1")
    e(f"s_lshr_b32 s{S_T2}, s{S_QB}, 1")
    e(f"s_add_u32 s{S_T1}, s{S_T1}, s{S_T2}")
    e(f"s_lshl_b32 s{S_T1}, s{S_T1}, 13")
    e(f"s_add_u32 s{S_T0}, s{S_T0}, s{S_T1}")
    e(f"v_lshlrev_b32 {T0}, 4, {L}")
    e(f"v_add_u32 v{V_OO}, s{S_T0}, {T0}")
    for i in range(32):
        e(f"v_mov_b32 v{V_O+i}, 0")

    def qchunk(slot, issue_next, wait_n):
        e(f"s_waitcnt vmcnt({wait_n})")
        e("s_barrier")
        seq = [(ks, d2) for ks in range(2) for d2 in range(2)]
        for idx, (ks, d2) in enumerate(seq):
            f = V_F + 4*idx
            for u in range(2):
                e(f"ds_read_b64_tr_b16 {vr(f+2*u,2)}, v{V_WA+d2} offset:{slot*16384 + (ks*16+4*u)*512}")
        if issue_next:
            ns = (slot + 3) % 4
            e(f"s_add_u32 s{S_T0}, s{S_CNT}, {slot+3}")
            e(f"s_lshl_b32 s{S_XOFF}, s{S_T0}, 6")
            for st in range(2):
                e(f"buffer_load_dwordx4 {vr(V_XF+8*ns+4*st,4)}, v{V_XO}, {sr(SRD_X,4)}, s{S_XOFF} offen offset:{st*32}")
        for idx, (ks, d2) in enumerate(seq):
            f = V_F + 4*idx
            e(f"s_waitcnt lgkmcnt({2*(3-idx)})")
            acc = vr(V_O + 16*d2, 16)
            e(f"v_mfma_f32_32x32x16_bf16 {acc}, {vr(f,4)}, {vr(V_XF+8*slot+4*ks,4)}, {acc}")
    e(f"s_mov_b32 s{S_CNT}, 0")
    e.label("attn_qloop")
    for slot in range(4):
        qchunk(slot, True, 4)
    e(f"s_add_u32 s{S_CNT}, s{S_CNT}, 4")
    e(f"s_cmp_lt_u32 s{S_CNT}, 12")
    e("s_cbranch_scc1 attn_qloop")
    qchunk(0, True, 4)
    qchunk(1, True, 4)
    qchunk(2, True, 4)
    qchunk(3, False, 4)
    qchunk(0, False, 2)
    qchunk(1, False, 0)
    stamp(e, 1)
    e.nop(16)
    e(f"s_lshl_b32 s{S_T0}, s{S_QB}, 13")
    e(f"s_add_u32 s{S_T0}, s{S_T0}, {QX0}")
    e(f"v_lshlrev_b32 {T0}, 4, {L}")
    e(f"v_add_u32 {T0}, s{S_T0}, {T0}")
    e(f"s_lshl_b32 s{S_T1}, s{S_KH}, 12")
    e(f"v_add_u32 {T1}, s{S_T1}, {T0}")
    for kl in range(4):
        d2, hf = kl // 2, kl % 2
        src = V_O + 16*d2 + 8*hf
        q = V_F + 4*kl
        for j in range(4):
            e(f"v_cvt_pk_bf16_f32 v{q+j}, v{src+2*j}, v{src+2*j+1}")
        e("s_nop 1")
        e(f"v_permlane32_swap_b32 v{q}, v{q+2}")
        e(f"v_permlane32_swap_b32 v{q+1}, v{q+3}")
        e("s_nop 1")
        e(f"ds_write_b128 {T1}, {vr(q,4)} offset:{kl*1024}")
    e("s_waitcnt lgkmcnt(0)")
    e("s_barrier")
    for ks in range(8):
        e(f"ds_read_b128 {vr(V_Q+4*ks,4)}, {T0} offset:{ks*1024}")
    e(f"v_lshrrev_b32 {T0}, 5, {L}")
    e(f"v_and_b32 {T1}, 15, {L}")
    e(f"v_xor_b32 {T0}, {T0}, {T1}")
    e(f"v_and_b32 {T1}, 31, {L}")
    e(f"v_lshlrev_b32 {T1}, 8, {T1}")
    e(f"s_lshl_b32 s{S_T0}, s{S_KH}, 13")
    e(f"v_add_u32 {T1}, s{S_T0}, {T1}")
    for ks in range(8):
        e(f"v_xor_b32 {T2}, {2*ks}, {T0}")
        e(f"v_lshl_add_u32 v{V_KW+ks}, {T2}, 4, {T1}")
    e(f"v_lshrrev_b32 {T0}, 5, {L}")
    e(f"v_bfe_u32 {T1}, {L}, 2, 2")
    e(f"v_lshl_add_u32 {T2}, {T0}, 2, {T1}")
    e(f"v_lshlrev_b32 {T2}, 8, {T2}")
    e(f"s_add_u32 s{S_T0}, s{S_T0}, 16384")
    e(f"v_add_u32 {T2}, s{S_T0}, {T2}")
    e(f"v_bfe_u32 {T0}, {L}, 4, 1")
    e(f"v_bfe_u32 {T3}, {L}, 1, 1")
    e(f"v_lshl_add_u32 {T0}, {T0}, 1, {T3}")
    e(f"v_lshl_add_u32 {T2}, {T0}, 4, {T2}")
    e(f"v_and_b32 {T3}, 1, {L}")
    e(f"v_lshl_add_u32 {T2}, {T3}, 3, {T2}")
    for db in range(4):
        e(f"v_xor_b32 {T3}, {db}, {T1}")
        e(f"v_lshl_add_u32 v{V_VW+db}, {T3}, 6, {T2}")
    e(f"v_mov_b32 v{V_M}, 0xff800000")
    e(f"v_mov_b32 v{V_L}, 0")
    for i in range(64):
        e(f"v_mov_b32 v{V_O+i}, 0")
    e(f"s_mov_b32 s{S_C}, {f32hex(SCALE*LOG2E)}")
    e(f"s_mov_b32 s{S_CNT}, 0")
    e(f"s_mov_b32 s{S_T2}, 0x1ffff")
    e("s_waitcnt lgkmcnt(0)")

    e.label("attn_loop")
    e("s_barrier")
    def rdk(ks):
        f = V_F + 4*(ks % 6)
        e(f"ds_read_b128 {vr(f,4)}, v{V_KW+ks}")
    for ks in range(6):
        rdk(ks)
    seqv = [(ks, db) for ks in range(2) for db in range(4)]
    def rdv(idx):
        ks, db = seqv[idx]
        f = V_F + 4*((8 + idx) % 6)
        for u in range(2):
            e(f"ds_read_b64_tr_b16 {vr(f+2*u,2)}, v{V_VW+db} offset:{ks*4096 + u*2048}")
    issued = 6
    for ks in range(8):
        f = V_F + 4*(ks % 6)
        later_k = max(0, min(8, issued) - ks - 1)
        later_v = max(0, issued - 8)
        e(f"s_waitcnt lgkmcnt({later_k + 2*later_v})")
        acc = vr(V_S, 16)
        cc = "0" if ks == 0 else acc
        e(f"v_mfma_f32_32x32x16_bf16 {acc}, {vr(f,4)}, {vr(V_Q+4*ks,4)}, {cc}")
        if issued < 8:
            rdk(issued)
        else:
            rdv(issued - 8)
        issued += 1
    for i in range(8):
        e(f"v_add_u32 v{V_KW+i}, 0x8000, v{V_KW+i}")
        e(f"v_and_b32 v{V_KW+i}, s{S_T2}, v{V_KW+i}")
    S = lambda i: f"v{V_S+i}"
    e(f"v_max3_f32 {T0}, {S(0)}, {S(1)}, {S(2)}")
    e(f"v_max3_f32 {T1}, {S(3)}, {S(4)}, {S(5)}")
    e(f"v_max3_f32 {T0}, {T0}, {S(6)}, {S(7)}")
    e(f"v_max3_f32 {T1}, {T1}, {S(8)}, {S(9)}")
    e(f"v_max3_f32 {T0}, {T0}, {S(10)}, {S(11)}")
    e(f"v_max3_f32 {T1}, {T1}, {S(12)}, {S(13)}")
    e(f"v_max3_f32 {T0}, {T0}, {S(14)}, {S(15)}")
    e(f"v_max_f32 {T0}, {T0}, {T1}")
    e(f"v_mov_b32 {T1}, {T0}")
    e("s_nop 1")
    e(f"v_permlane32_swap_b32 {T0}, {T1}")
    e("s_nop 1")
    e(f"v_max3_f32 {T0}, {T0}, {T1}, v{V_M}")
    e(f"v_cmp_neq_f32 vcc, {T0}, v{V_M}")
    e(f"v_sub_f32 {T1}, v{V_M}, {T0}")
    e(f"v_mul_f32 {T1}, s{S_C}, {T1}")
    e(f"v_exp_f32 v{V_AL2}, {T1}")
    e(f"v_mov_b32 v{V_M}, {T0}")
    e(f"v_mul_f32 {T0}, s{S_C}, {T0}")
    e(f"v_mov_b32 v{V_AL2+1}, v{V_AL2}")
    for i in range(16):
        e(f"v_fma_f32 {S(i)}, {S(i)}, s{S_C}, -{T0}")
    for i in range(16):
        e(f"v_exp_f32 {S(i)}, {S(i)}")
    e("s_cbranch_vccz attn_noresc")
    e(f"v_mul_f32 v{V_L}, v{V_L}, v{V_AL2}")
    for i in range(0, 64, 2):
        e(f"v_pk_mul_f32 {vr(V_O+i,2)}, {vr(V_O+i,2)}, {vr(V_AL2,2)}")
    e.label("attn_noresc")
    e(f"v_add_f32 {T1}, {S(0)}, {S(1)}")
    e(f"v_add_f32 {T2}, {S(2)}, {S(3)}")
    for i in range(4, 16, 2):
        tt = T1 if (i // 2) % 2 == 0 else T2
        e(f"v_add_f32 {tt}, {tt}, {S(i)}")
        e(f"v_add_f32 {tt}, {tt}, {S(i+1)}")
    e(f"v_add_f32 {T1}, {T1}, {T2}")
    e(f"v_add_f32 v{V_L}, v{V_L}, {T1}")
    for ks in range(2):
        for j in range(4):
            e(f"v_cvt_pk_bf16_f32 v{V_P+4*ks+j}, {S(8*ks+2*j)}, {S(8*ks+2*j+1)}")
    e("s_nop 1")
    for idx in range(8):
        ks, db = seqv[idx]
        f = V_F + 4*((8 + idx) % 6)
        later_v = max(0, (issued - 8) - idx - 1)
        e(f"s_waitcnt lgkmcnt({2*later_v})")
        acc = vr(V_O + 16*db, 16)
        e(f"v_mfma_f32_32x32x16_bf16 {acc}, {vr(f,4)}, {vr(V_P+4*ks,4)}, {acc}")
        if issued < 16:
            rdv(issued - 8)
            issued += 1
    for i in range(4):
        e(f"v_add_u32 v{V_VW+i}, 0x8000, v{V_VW+i}")
        e(f"v_and_b32 v{V_VW+i}, s{S_T2}, v{V_VW+i}")
    e(f"s_add_u32 s{S_CNT}, s{S_CNT}, 1")
    e(f"s_cmp_lt_u32 s{S_CNT}, 16")
    e("s_cbranch_scc1 attn_loop")
    stamp(e, 2)
    e.nop(16)
    e(f"v_mov_b32 {T0}, v{V_L}")
    e(f"v_mov_b32 {T1}, v{V_L}")
    e("s_nop 1")
    e(f"v_permlane32_swap_b32 {T0}, {T1}")
    e("s_nop 1")
    e(f"v_add_f32 v{V_L}, {T0}, {T1}")
    e("s_barrier")
    e(f"s_mul_i32 s{S_T0}, s{S_QB}, 17408")
    e(f"v_lshlrev_b32 {T0}, 4, {L}")
    e(f"v_add_u32 {T0}, s{S_T0}, {T0}")
    e(f"v_lshlrev_b32 {T1}, 3, {L}")
    e(f"v_add_u32 {T1}, s{S_T0}, {T1}")
    e(f"s_cmp_eq_u32 s{S_KH}, 0")
    e("s_cbranch_scc1 attn_merge0")
    for i in range(16):
        e(f"ds_write_b128 {T0}, {vr(V_O+4*i,4)} offset:{i*1024}")
    e(f"ds_write_b64 {T1}, {vr(V_M,2)} offset:16384")
    e("s_waitcnt lgkmcnt(0)")
    e("s_barrier")
    e("s_endpgm")
    e.label("attn_merge0")
    e("s_barrier")
    e(f"ds_read_b64 {vr(V_P,2)}, {T1} offset:16384")
    for i in range(8):
        e(f"ds_read_b128 {vr(V_Q+4*i,4)}, {T0} offset:{i*1024}")
    e("s_waitcnt lgkmcnt(8)")
    e(f"v_max_f32 {T2}, v{V_M}, v{V_P}")
    e(f"v_sub_f32 {T3}, v{V_M}, {T2}")
    e(f"v_mul_f32 {T3}, s{S_C}, {T3}")
    e(f"v_exp_f32 v{V_AL2}, {T3}")
    e(f"v_sub_f32 {T3}, v{V_P}, {T2}")
    e(f"v_mul_f32 {T3}, s{S_C}, {T3}")
    e(f"v_exp_f32 v{V_P+2}, {T3}")
    e("s_nop 0")
    e(f"v_mul_f32 v{V_L}, v{V_L}, v{V_AL2}")
    e(f"v_fma_f32 v{V_L}, v{V_P+1}, v{V_P+2}, v{V_L}")
    e(f"v_rcp_f32 {T3}, v{V_L}")
    e("s_nop 0")
    e(f"v_mul_f32 v{V_AL2}, v{V_AL2}, {T3}")
    e(f"v_mul_f32 v{V_P+2}, v{V_P+2}, {T3}")
    e(f"v_mov_b32 v{V_AL2+1}, v{V_AL2}")
    e(f"v_mov_b32 v{V_P+3}, v{V_P+2}")
    e(f"s_movk_i32 s{S_T0}, 4096")
    e(f"s_mov_b32 s{S_T1}, 0")
    for half in range(2):
        if half == 1:
            for i in range(8):
                e(f"ds_read_b128 {vr(V_Q+4*i,4)}, {T0} offset:{(8+i)*1024}")
        e("s_waitcnt lgkmcnt(0)")
        for i in range(0, 32, 2):
            o = V_O + 32*half + i
            e(f"v_pk_mul_f32 {vr(o,2)}, {vr(o,2)}, {vr(V_AL2,2)}")
            e(f"v_pk_fma_f32 {vr(o,2)}, {vr(V_Q+i,2)}, {vr(V_P+2,2)}, {vr(o,2)}")
        for d2 in range(2):
            db = 2*half + d2
            for pr in range(2):
                src = V_O + 16*db + 8*pr
                q = V_F + 4*((2*db+pr) % 6)
                for j in range(4):
                    e(f"v_cvt_pk_bf16_f32 v{q+j}, v{src+2*j}, v{src+2*j+1}")
                e("s_nop 1")
                e(f"v_permlane32_swap_b32 v{q}, v{q+2}")
                e(f"v_permlane32_swap_b32 v{q+1}, v{q+3}")
                e("s_nop 1")
                e(f"buffer_store_dwordx4 {vr(q,4)}, v{V_OO}, {sr(SRD_O,4)}, s{S_T0 if db >= 2 else S_T1} offen offset:{((2*db+pr)%4)*1024}")
    if STAMP:
        e("s_waitcnt vmcnt(0)")
    stamp(e, 3)
    stamp_flush(e, 4, S_WAVE, "c")
    e("s_endpgm")

    e.label("attn_loader")
    e(f"s_lshl_b32 s{S_T0}, s{S_B}, 4")
    e(f"s_add_u32 s{S_T0}, s{S_T0}, s{S_HKV}")
    e(f"s_lshl_b32 s{S_T0}, s{S_T0}, 18")
    e(f"s_cmp_eq_u32 s{S_WAVE}, 8")
    e(f"s_cselect_b32 s{S_T1}, s{S_K}, s{S_V}")
    e(f"s_cselect_b32 s{S_T2}, s{S_K+1}, s{S_V+1}")
    e(f"s_add_u32 s{SRD_K}, s{S_T1}, s{S_T0}")
    e(f"s_addc_u32 s{SRD_K+1}, s{S_T2}, 0")
    e(f"s_mov_b32 s{SRD_K+2}, 0x40000")
    e(f"s_mov_b32 s{SRD_K+3}, 0x20000")
    e(f"v_lshrrev_b32 {T0}, 4, {L}")
    e(f"v_and_b32 {T1}, 15, {L}")
    e(f"v_lshlrev_b32 {T2}, 8, {T0}")
    e(f"s_cmp_eq_u32 s{S_WAVE}, 8")
    e(f"s_cbranch_scc0 attn_ldv")
    e(f"v_xor_b32 {T1}, {T1}, {T0}")
    for i in range(4):
        e(f"v_xor_b32 {T3}, {4*i}, {T1}")
        e(f"v_lshl_add_u32 v{V_D+i}, {T3}, 4, {T2}")
    e(f"s_mov_b32 s{S_XOFF}, 0")
    e("s_branch attn_ld2")
    e.label("attn_ldv")
    e(f"v_lshlrev_b32 {T3}, 2, {T0}")
    e(f"v_xor_b32 {T1}, {T1}, {T3}")
    for i in range(4):
        e(f"v_lshl_add_u32 v{V_D+i}, {T1}, 4, {T2}")
    e(f"s_mov_b32 s{S_XOFF}, 16384")
    e.label("attn_ld2")
    def tile_issue():
        e(f"s_add_u32 s{S_SOFF}, s{S_ROT}, s{S_T2}")
        e(f"s_and_b32 s{S_SOFF}, s{S_SOFF}, 15")
        e(f"s_lshl_b32 s{S_SOFF}, s{S_SOFF}, 14")
        e(f"s_and_b32 s{S_STG}, s{S_T2}, 3")
        e(f"s_lshl_b32 s{S_STG}, s{S_STG}, 15")
        e(f"s_add_u32 s{S_STG}, s{S_STG}, s{S_XOFF}")
        for g in range(4):
            e(f"s_mov_b32 m0, s{S_STG}")
            e(f"s_add_u32 s{S_STG}, s{S_STG}, 4096")
            for i in range(4):
                e(f"buffer_load_dwordx4 v{V_D+i}, {sr(SRD_K,4)}, s{S_SOFF} offen offset:{i*1024}{NT_KV} lds")
            e(f"s_add_u32 s{S_SOFF}, s{S_SOFF}, 4096")
    e(f"s_mov_b32 s{S_T2}, 0")
    e.label("attn_ldpro")
    tile_issue()
    e(f"s_add_u32 s{S_T2}, s{S_T2}, 1")
    e(f"s_cmp_lt_u32 s{S_T2}, 3")
    e("s_cbranch_scc1 attn_ldpro")
    e(f"s_mov_b32 s{S_CNT}, 0")
    e.label("attn_ldbar")
    e("s_barrier")
    e(f"s_add_u32 s{S_CNT}, s{S_CNT}, 1")
    e(f"s_cmp_lt_u32 s{S_CNT}, {NCH+1}")
    e("s_cbranch_scc1 attn_ldbar")
    e(f"s_mov_b32 s{S_CNT}, 0")
    e.label("attn_ldloop")
    e(f"s_cmp_lt_u32 s{S_CNT}, 14")
    e("s_cbranch_scc1 attn_ldw32")
    e(f"s_cmp_eq_u32 s{S_CNT}, 14")
    e("s_cbranch_scc1 attn_ldw16")
    e("s_waitcnt vmcnt(0)")
    e("s_branch attn_ldw")
    e.label("attn_ldw16")
    e("s_waitcnt vmcnt(16)")
    e("s_branch attn_ldw")
    e.label("attn_ldw32")
    e("s_waitcnt vmcnt(32)")
    e.label("attn_ldw")
    e("s_barrier")
    e(f"s_add_u32 s{S_T2}, s{S_CNT}, 3")
    e(f"s_cmp_ge_u32 s{S_T2}, 16")
    e("s_cbranch_scc1 attn_ldskip")
    tile_issue()
    e.label("attn_ldskip")
    e(f"s_add_u32 s{S_CNT}, s{S_CNT}, 1")
    e(f"s_cmp_lt_u32 s{S_CNT}, 16")
    e("s_cbranch_scc1 attn_ldloop")
    e("s_barrier")
    e("s_barrier")
    e("s_endpgm")

    e.label("attn_wqloader")
    e(f"s_lshl_b32 s{S_T0}, s{S_HKV}, 9")
    e(f"s_add_u32 s{SRD_WQ}, s{S_WQ}, s{S_T0}")
    e(f"s_addc_u32 s{SRD_WQ+1}, s{S_WQ+1}, 0")
    e(f"s_sub_u32 s{SRD_WQ+2}, {576*8192}, s{S_T0}")
    e(f"s_mov_b32 s{SRD_WQ+3}, 0x20000")
    e(f"v_lshrrev_b32 {T0}, 5, {L}")
    e(f"v_and_b32 {T1}, 31, {L}")
    e(f"v_lshlrev_b32 {T2}, 13, {T0}")
    for odd in range(2):
        e(f"v_add_u32 {T3}, {2*odd}, {T0}")
        e(f"v_lshlrev_b32 {T3}, 2, {T3}")
        e(f"v_xor_b32 {T3}, {T3}, {T1}")
        e(f"v_lshl_add_u32 v{V_D+odd}, {T3}, 4, {T2}")
    S_WQR, S_WQL = 52, 53
    e(f"s_sub_u32 s{S_T0}, s{S_WAVE}, 10")
    e(f"s_lshl_b32 s{S_WQR}, s{S_T0}, 17")
    e(f"s_lshl_b32 s{S_WQL}, s{S_T0}, 13")
    e(f"s_add_u32 s{S_WQL}, s{S_WQL}, {WQ0}")
    def wq_issue():
        e(f"s_lshl_b32 s{S_SOFF}, s{S_T2}, 18")
        e(f"s_add_u32 s{S_SOFF}, s{S_SOFF}, s{S_WQR}")
        e(f"s_and_b32 s{S_STG}, s{S_T2}, 3")
        e(f"s_lshl_b32 s{S_STG}, s{S_STG}, 14")
        e(f"s_add_u32 s{S_STG}, s{S_STG}, s{S_WQL}")
        for j in range(8):
            e(f"s_mov_b32 m0, s{S_STG}")
            e(f"s_add_u32 s{S_STG}, s{S_STG}, 1024")
            e(f"buffer_load_dwordx4 v{V_D+(j%2)}, {sr(SRD_WQ,4)}, s{S_SOFF} offen lds")
            e(f"s_add_u32 s{S_SOFF}, s{S_SOFF}, 16384")
    e(f"s_mov_b32 s{S_T2}, 0")
    e.label("attn_wqpro")
    wq_issue()
    e(f"s_add_u32 s{S_T2}, s{S_T2}, 1")
    e(f"s_cmp_lt_u32 s{S_T2}, 3")
    e("s_cbranch_scc1 attn_wqpro")
    e(f"s_mov_b32 s{S_CNT}, 0")
    e.label("attn_wqloop")
    e(f"s_cmp_lt_u32 s{S_CNT}, 16")
    e("s_cbranch_scc1 attn_wqw16")
    e(f"s_cmp_eq_u32 s{S_CNT}, 16")
    e("s_cbranch_scc1 attn_wqw8")
    e("s_waitcnt vmcnt(0)")
    e("s_branch attn_wqw")
    e.label("attn_wqw8")
    e("s_waitcnt vmcnt(8)")
    e("s_branch attn_wqw")
    e.label("attn_wqw16")
    e("s_waitcnt vmcnt(16)")
    e.label("attn_wqw")
    e("s_barrier")
    e(f"s_add_u32 s{S_T2}, s{S_CNT}, 3")
    e(f"s_cmp_ge_u32 s{S_T2}, {NCH}")
    e("s_cbranch_scc1 attn_wqskip")
    wq_issue()
    e.label("attn_wqskip")
    e(f"s_add_u32 s{S_CNT}, s{S_CNT}, 1")
    e(f"s_cmp_lt_u32 s{S_CNT}, {NCH}")
    e("s_cbranch_scc1 attn_wqloop")
    e(f"s_mov_b32 s{S_CNT}, 0")
    e.label("attn_wqbar")
    e("s_barrier")
    e(f"s_add_u32 s{S_CNT}, s{S_CNT}, 1")
    e(f"s_cmp_lt_u32 s{S_CNT}, 19")
    e("s_cbranch_scc1 attn_wqbar")
    e.label("attn_end")
    e("s_endpgm")

def gen_oproj(e):
    name = "oproj_kernel"
    e.raw(f".globl {name}")
    e.raw(".p2align 8")
    e.raw(f".type {name},@function")
    e.label(name)
    SRD_O, SRD_W, SRD_OUT = 20, 24, 28
    S_WAVE, S_MB, S_NB, S_T0, S_T1, S_SOFF, S_KO, S_CNT, S_OOFF = 40, 41, 42, 43, 44, 46, 47, 49, 50
    V_LANE = 1
    V_T0, V_T1, V_T2, V_T3 = 2, 3, 4, 5
    V_WD = 6
    V_WA = 8
    V_OA = 10
    V_OUT = 13
    V_AF = 16
    V_ACC = 64
    V_BF = 128
    NS = 4
    AHEAD = 3
    NCH = 16
    L = f"v{V_LANE}"
    T0, T1, T2, T3 = (f"v{x}" for x in (V_T0, V_T1, V_T2, V_T3))
    e("s_cmp_ge_u32 s2, 144")
    e("s_cbranch_scc1 oproj_end")
    e("s_load_dwordx4 s[4:7], s[0:1], 32")
    e("s_load_dwordx2 s[16:17], s[0:1], 56")
    stamp(e, 0)
    e(f"v_and_b32 {L}, 63, v0")
    e(f"v_lshrrev_b32 v2, 6, v0")
    e("s_nop 0")
    e(f"v_readfirstlane_b32 s{S_WAVE}, v2")
    e(f"s_and_b32 s{S_MB}, s2, 15")
    e(f"s_lshr_b32 s{S_NB}, s2, 4")
    e("s_waitcnt lgkmcnt(0)")
    e(f"s_mov_b32 s{SRD_O}, s16")
    e(f"s_mov_b32 s{SRD_O+1}, s17")
    e(f"s_mov_b32 s{SRD_O+2}, 0x800000")
    e(f"s_mov_b32 s{SRD_O+3}, 0x20000")
    e(f"s_mov_b32 s{SRD_W}, s4")
    e(f"s_mov_b32 s{SRD_W+1}, s5")
    e(f"s_mov_b32 s{SRD_W+2}, {4096*1152}")
    e(f"s_mov_b32 s{SRD_W+3}, 0x20000")
    e(f"s_mov_b32 s{SRD_OUT}, s6")
    e(f"s_mov_b32 s{SRD_OUT+1}, s7")
    e(f"s_mov_b32 s{SRD_OUT+2}, {1024*1152}")
    e(f"s_mov_b32 s{SRD_OUT+3}, 0x20000")
    e(f"v_lshrrev_b32 {T0}, 3, {L}")
    e(f"s_movk_i32 s{S_T0}, 1152")
    e(f"v_mul_lo_u32 {T0}, {T0}, s{S_T0}")
    e(f"v_and_b32 {T1}, 7, {L}")
    e(f"v_bfe_u32 {T2}, {L}, 4, 1")
    e(f"v_lshlrev_b32 {T2}, 2, {T2}")
    e(f"v_xor_b32 {T1}, {T1}, {T2}")
    e(f"v_lshl_add_u32 v{V_WD}, {T1}, 4, {T0}")
    e(f"s_mul_i32 s{S_KO}, s{S_WAVE}, {512*1152}")
    e(f"s_lshl_b32 s{S_T0}, s{S_NB}, 7")
    e(f"s_add_u32 s{S_KO}, s{S_KO}, s{S_T0}")
    e(f"s_lshl_b32 s{S_T0}, s{S_MB}, 19")
    e(f"s_lshl_b32 s{S_T1}, s{S_WAVE}, 15")
    e(f"s_add_u32 s{S_T0}, s{S_T0}, s{S_T1}")
    e(f"v_lshlrev_b32 {T0}, 4, {L}")
    e(f"v_add_u32 v{V_OA}, s{S_T0}, {T0}")
    e(f"v_add_u32 v{V_OA+1}, 0x40000, v{V_OA}")
    S_M0W = 48
    e(f"s_lshl_b32 s{S_M0W}, s{S_WAVE}, 14")
    e(f"s_mov_b32 s{S_SOFF}, s{S_KO}")
    e(f"s_mov_b32 s{S_OOFF}, 0")
    def issue(slot):
        for j in range(4):
            e(f"s_add_u32 m0, s{S_M0W}, {slot*4096 + j*1024}")
            e("s_nop 0")
            e(f"buffer_load_dwordx4 v{V_WD}, {sr(SRD_W,4)}, s{S_SOFF} offen lds")
            e(f"s_add_u32 s{S_SOFF}, s{S_SOFF}, {8*1152}")
        for mb2 in range(2):
            for st in range(2):
                f = V_BF + 16*slot + 8*mb2 + 4*st
                e(f"buffer_load_dwordx4 {vr(f,4)}, v{V_OA+mb2}, {sr(SRD_O,4)}, s{S_OOFF} offen offset:{st*1024}")
        e(f"s_add_u32 s{S_OOFF}, s{S_OOFF}, 2048")
    for c in range(AHEAD):
        issue(c)
    e(f"v_lshrrev_b32 {T0}, 5, {L}")
    e(f"v_bfe_u32 {T1}, {L}, 2, 2")
    e(f"v_lshl_add_u32 {T2}, {T0}, 3, {T1}")
    e(f"v_lshlrev_b32 {T2}, 7, {T2}")
    e(f"v_bfe_u32 {T0}, {L}, 4, 1")
    e(f"v_bfe_u32 {T3}, {L}, 1, 1")
    e(f"v_lshl_add_u32 {T0}, {T0}, 1, {T3}")
    e(f"v_lshl_add_u32 {T2}, {T0}, 4, {T2}")
    e(f"v_and_b32 {T3}, 1, {L}")
    e(f"v_lshl_add_u32 {T2}, {T3}, 3, {T2}")
    e(f"v_add_u32 {T2}, s{S_M0W}, {T2}")
    e(f"v_bfe_u32 {T1}, {L}, 3, 1")
    for nb2 in range(2):
        e(f"v_xor_b32 {T3}, {nb2}, {T1}")
        e(f"v_lshl_add_u32 v{V_WA+nb2}, {T3}, 6, {T2}")
    for i in range(64):
        e(f"v_mov_b32 v{V_ACC+i}, 0")
    def rda(slot, par):
        ab = V_AF + 16*par
        for nb2 in range(2):
            for st in range(2):
                for u in range(2):
                    e(f"ds_read_b64_tr_b16 {vr(ab+8*nb2+4*st+2*u,2)}, v{V_WA+nb2} offset:{slot*4096 + (st*16+4*u)*128}")
    stamp(e, 1)
    e(f"s_waitcnt vmcnt({8*(AHEAD-1)})")
    rda(0, 0)
    def body(c, cmod):
        slot = cmod % NS
        par = cmod % 2
        e("s_waitcnt lgkmcnt(0)")
        if c + AHEAD < NCH:
            issue((slot + AHEAD) % NS)
        if c + 1 < NCH:
            n_after = min(NCH - 1, c + AHEAD) - (c + 1)
            e(f"s_waitcnt vmcnt({8*n_after})")
            rda((slot + 1) % NS, 1 - par)
        ab = V_AF + 16*par
        for st in range(2):
            for nb2 in range(2):
                for mb2 in range(2):
                    acc = vr(V_ACC + 32*nb2 + 16*mb2, 16)
                    e(f"v_mfma_f32_32x32x16_bf16 {acc}, {vr(ab+8*nb2+4*st,4)}, {vr(V_BF+16*slot+8*mb2+4*st,4)}, {acc}")
    e(f"s_mov_b32 s{S_CNT}, 0")
    e.label("oproj_loop")
    for cm in range(4):
        body(cm, cm)
    e(f"s_add_u32 s{S_CNT}, s{S_CNT}, 1")
    e(f"s_cmp_lt_u32 s{S_CNT}, 3")
    e("s_cbranch_scc1 oproj_loop")
    stamp(e, 2)
    for c in range(12, 16):
        body(c, c)
    stamp(e, 3)
    e.nop(16)
    e("s_barrier")
    e(f"v_lshlrev_b32 {T0}, 4, {L}")
    e(f"v_add_u32 {T1}, s{S_M0W}, {T0}")
    for i in range(16):
        e(f"ds_write_b128 {T1}, {vr(V_ACC+4*i,4)} offset:{i*1024}")
    e("s_waitcnt lgkmcnt(0)")
    e("s_barrier")
    e(f"s_lshl_b32 s{S_T0}, s{S_WAVE}, 11")
    e(f"v_add_u32 {T1}, s{S_T0}, {T0}")
    e(f"v_add_u32 {T2}, 0x10000, {T1}")
    for w in range(8):
        for i in range(2):
            e(f"ds_read_b128 {vr(V_BF+8*w+4*i,4)}, {T1 if w < 4 else T2} offset:{(w%4)*16384 + i*1024}")
    e("s_waitcnt lgkmcnt(0)")
    for stp in (4, 2, 1):
        for w in range(stp):
            for i in range(0, 8, 2):
                e(f"v_pk_add_f32 {vr(V_BF+8*w+i,2)}, {vr(V_BF+8*w+i,2)}, {vr(V_BF+8*(w+stp)+i,2)}")
    e(f"s_lshl_b32 s{S_T0}, s{S_MB}, 6")
    e(f"s_bfe_u32 s{S_T1}, s{S_WAVE}, 0x10001")
    e(f"s_lshl_b32 s{S_T1}, s{S_T1}, 5")
    e(f"s_add_u32 s{S_T0}, s{S_T0}, s{S_T1}")
    e(f"v_and_b32 {T0}, 31, {L}")
    e(f"v_add_u32 {T0}, s{S_T0}, {T0}")
    e(f"s_movk_i32 s{S_T1}, 1152")
    e(f"v_mul_lo_u32 {T0}, {T0}, s{S_T1}")
    e(f"s_lshl_b32 s{S_T0}, s{S_NB}, 7")
    e(f"s_lshr_b32 s{S_T1}, s{S_WAVE}, 2")
    e(f"s_lshl_b32 s{S_T1}, s{S_T1}, 6")
    e(f"s_add_u32 s{S_T0}, s{S_T0}, s{S_T1}")
    e(f"s_and_b32 s{S_T1}, s{S_WAVE}, 1")
    e(f"s_lshl_b32 s{S_T1}, s{S_T1}, 5")
    e(f"s_add_u32 s{S_T0}, s{S_T0}, s{S_T1}")
    e(f"v_add_u32 {T0}, s{S_T0}, {T0}")
    e(f"v_lshrrev_b32 {T1}, 5, {L}")
    e(f"v_lshl_add_u32 v{V_OUT}, {T1}, 4, {T0}")
    q = V_AF
    for j in range(4):
        e(f"v_cvt_pk_bf16_f32 v{q+j}, v{V_BF+2*j}, v{V_BF+2*j+1}")
    e("s_nop 1")
    e(f"v_permlane32_swap_b32 v{q}, v{q+2}")
    e(f"v_permlane32_swap_b32 v{q+1}, v{q+3}")
    e("s_nop 1")
    e(f"buffer_store_dwordx4 {vr(q,4)}, v{V_OUT}, {sr(SRD_OUT,4)}, 0 offen")
    if STAMP:
        e("s_waitcnt vmcnt(0)")
    stamp(e, 4)
    stamp_flush(e, 5, S_WAVE, "o")
    e.label("oproj_end")
    e("s_endpgm")

def desc(name, nfv, acc, sgpr=102):
    return f""".amdhsa_kernel {name}
  .amdhsa_next_free_vgpr {nfv}
  .amdhsa_next_free_sgpr {sgpr}
  .amdhsa_accum_offset {acc}
  .amdhsa_group_segment_fixed_size 0
  .amdhsa_kernarg_size 64
  .amdhsa_user_sgpr_count 2
  .amdhsa_user_sgpr_kernarg_segment_ptr 1
  .amdhsa_system_sgpr_workgroup_id_x 1
.end_amdhsa_kernel
"""

def main():
    hdr = open("standalone__gqa_block_cached__near_ridge.s.ref").read().split("; Override launch")[0]
    e = Em()
    gen_attn(e)
    gen_oproj(e)
    out = hdr
    out += "; @launch kernel=attn_kernel grid=(256,1,1) block=(768,1,1) lds=163840\n"
    out += "; @launch kernel=oproj_kernel grid=(144,1,1) block=(512,1,1) lds=131072\n"
    out += '.amdgcn_target "amdgcn-amd-amdhsa--gfx950"\n.text\n'
    out += e.text()
    out += '.section .rodata,"a"\n.p2align 6\n'
    out += desc("attn_kernel", 168, 168)
    out += ".p2align 6\n"
    out += desc("oproj_kernel", 192, 192)
    path = sys.argv[1] if len(sys.argv) > 1 else "standalone__gqa_block_cached__near_ridge.s"
    open(path, "w").write(out)

main()
```

```python
import sys, struct

class Em:
    def __init__(self):
        self.lines = []
    def __call__(self, s):
        self.lines.append("    " + s)
    def label(self, s):
        self.lines.append(s + ":")
    def raw(self, s):
        self.lines.append(s)
    def nop(self, n):
        while n > 0:
            k = min(n, 16)
            self(f"s_nop {k-1}")
            n -= k
    def text(self):
        return "\n".join(self.lines) + "\n"

def vr(b, n=1):
    return f"v{b}" if n == 1 else f"v[{b}:{b+n-1}]"
def sr(b, n=1):
    return f"s{b}" if n == 1 else f"s[{b}:{b+n-1}]"
def f32hex(x):
    return "0x%08x" % struct.unpack("<I", struct.pack("<f", x))[0]

LOG2E = 1.4426950408889634
SCALE = 128 ** -0.5
OPT = sys.argv[2] if len(sys.argv) > 2 else ""
STAMP = "stamp" in OPT
NT_KV = " nt"
NT_W = " nt" if "ntw" in OPT else ""

def stamp(e, idx):
    if not STAMP: return
    e("s_memtime s[60:61]")
    e("s_waitcnt lgkmcnt(0)")
    e(f"s_mov_b32 s{62+idx}, s60")

def stamp_flush(e, n, wavereg, tag):
    if not STAMP: return
    e("s_load_dwordx2 s[56:57], s[0:1], 48")
    e("s_waitcnt lgkmcnt(0)")
    e("s_mov_b32 s52, s56")
    e("s_mov_b32 s53, s57")
    e("s_mov_b32 s54, 256")
    e("s_mov_b32 s55, 0x20000")
    e("s_cmp_lg_u32 s2, 5")
    e(f"s_cbranch_scc1 stamp_skip_{tag}")
    e(f"s_lshl_b32 s58, s{wavereg}, 5")
    for i in range(n):
        e(f"s_sub_u32 s59, s{62+i}, s62")
        e("v_mov_b32 v2, s59")
        e(f"v_mov_b32 v3, s58")
        e(f"buffer_store_dword v2, v3, s[52:55], 0 offen offset:{4*i}")
    e.label(f"stamp_skip_{tag}")

def gen_attn(e):
    name = "attn_kernel"
    e.raw(f".globl {name}")
    e.raw(".p2align 8")
    e.raw(f".type {name},@function")
    e.label(name)
    S_X, S_K, S_V, S_WQ, S_WS = 4, 6, 8, 10, 16
    SRD_K, SRD_X, SRD_WQ, SRD_O = 20, 28, 32, 36
    S_WAVE, S_HKV, S_B = 40, 41, 42
    S_T0, S_T1, S_T2, S_SOFF, S_C = 43, 44, 45, 46, 47
    S_CNT, S_STG, S_ROT, S_XOFF, S_QB, S_KH = 48, 49, 50, 51, 72, 73
    V_LANE = 1
    V_T0, V_T1, V_T2, V_T3 = 2, 3, 4, 5
    V_KW = 6
    V_VW = 14
    V_M, V_L = 18, 19
    V_AL2 = 20
    V_OO = 22
    V_XO = 23
    V_WA = 6
    V_D = 6
    V_O = 24
    V_S = 88
    V_Q = 104
    V_F = 136
    V_P = 160
    XSL = [V_O+32, V_O+40, V_O+48, V_O+56, V_S, V_S+8, V_Q, V_Q+8]
    STAGE = 32768
    WQ0 = 32768
    WNS = 8
    WAH = 7
    QX0 = 131072
    NCH = 18

    e("s_cmp_ge_u32 s2, 256")
    e("s_cbranch_scc1 attn_end")
    e("s_load_dwordx4 s[4:7], s[0:1], 0")
    e("s_load_dwordx4 s[8:11], s[0:1], 16")
    e("s_load_dwordx2 s[16:17], s[0:1], 56")
    stamp(e, 0)
    e(f"v_and_b32 v{V_LANE}, 63, v0")
    e(f"v_lshrrev_b32 v2, 6, v0")
    e("s_nop 0")
    e(f"v_readfirstlane_b32 s{S_WAVE}, v2")
    e(f"s_and_b32 s{S_B}, s2, 15")
    e(f"s_lshr_b32 s{S_HKV}, s2, 4")
    e(f"s_add_u32 s{S_ROT}, s{S_HKV}, s{S_B}")
    L = f"v{V_LANE}"
    T0, T1, T2, T3 = (f"v{x}" for x in (V_T0, V_T1, V_T2, V_T3))
    e("s_waitcnt lgkmcnt(0)")
    e(f"s_cmp_ge_u32 s{S_WAVE}, 10")
    e("s_cbranch_scc1 attn_wqloader")
    e(f"s_cmp_ge_u32 s{S_WAVE}, 8")
    e("s_cbranch_scc1 attn_loader")

    e(f"s_and_b32 s{S_QB}, s{S_WAVE}, 3")
    e(f"s_lshr_b32 s{S_KH}, s{S_WAVE}, 2")
    e(f"s_mul_i32 s{S_T0}, s{S_B}, 73728")
    e(f"s_add_u32 s{SRD_X}, s{S_X}, s{S_T0}")
    e(f"s_addc_u32 s{SRD_X+1}, s{S_X+1}, 0")
    e(f"s_mov_b32 s{SRD_X+2}, 73728")
    e(f"s_mov_b32 s{SRD_X+3}, 0x20000")
    e(f"s_mov_b32 s{SRD_O}, s{S_WS}")
    e(f"s_mov_b32 s{SRD_O+1}, s{S_WS+1}")
    e(f"s_mov_b32 s{SRD_O+2}, 0x800000")
    e(f"s_mov_b32 s{SRD_O+3}, 0x20000")
    e(f"s_and_b32 s{S_T0}, s{S_QB}, 1")
    e(f"s_lshl_b32 s{S_T0}, s{S_T0}, 5")
    e(f"v_and_b32 {T0}, 31, {L}")
    e(f"v_add_u32 {T0}, s{S_T0}, {T0}")
    e(f"s_movk_i32 s{S_T1}, 1152")
    e(f"v_mul_lo_u32 {T0}, {T0}, s{S_T1}")
    e(f"v_lshrrev_b32 {T1}, 5, {L}")
    e(f"v_lshl_add_u32 v{V_XO}, {T1}, 4, {T0}")
    for c in range(WAH):
        for st in range(2):
            e(f"buffer_load_dwordx4 {vr(XSL[c]+4*st,4)}, v{V_XO}, {sr(SRD_X,4)}, 0 offen offset:{c*64+st*32}")
    e(f"v_lshrrev_b32 {T0}, 5, {L}")
    e(f"v_bfe_u32 {T1}, {L}, 2, 2")
    e(f"v_lshl_add_u32 {T2}, {T0}, 3, {T1}")
    e(f"v_lshlrev_b32 {T2}, 9, {T2}")
    e(f"v_bfe_u32 {T0}, {L}, 4, 1")
    e(f"v_bfe_u32 {T3}, {L}, 1, 1")
    e(f"v_lshl_add_u32 {T0}, {T0}, 1, {T3}")
    e(f"v_lshl_add_u32 {T2}, {T0}, 4, {T2}")
    e(f"v_and_b32 {T3}, 1, {L}")
    e(f"v_lshl_add_u32 {T2}, {T3}, 3, {T2}")
    e(f"v_add_u32 {T2}, {WQ0}, {T2}")
    e(f"s_lshr_b32 s{S_T0}, s{S_QB}, 1")
    e(f"s_lshl_b32 s{S_T0}, s{S_T0}, 2")
    e(f"s_lshl_b32 s{S_T1}, s{S_KH}, 1")
    e(f"s_add_u32 s{S_T0}, s{S_T0}, s{S_T1}")
    for d2 in range(2):
        e(f"s_add_u32 s{S_T1}, s{S_T0}, {d2}")
        e(f"v_xor_b32 {T3}, s{S_T1}, {T1}")
        e(f"v_lshl_add_u32 v{V_WA+d2}, {T3}, 6, {T2}")
    e(f"s_and_b32 s{S_T0}, s{S_QB}, 1")
    e(f"s_lshl_b32 s{S_T1}, s{S_B}, 1")
    e(f"s_add_u32 s{S_T0}, s{S_T0}, s{S_T1}")
    e(f"s_lshl_b32 s{S_T0}, s{S_T0}, 18")
    e(f"s_lshl_b32 s{S_T1}, s{S_HKV}, 1")
    e(f"s_lshr_b32 s{S_T2}, s{S_QB}, 1")
    e(f"s_add_u32 s{S_T1}, s{S_T1}, s{S_T2}")
    e(f"s_lshl_b32 s{S_T1}, s{S_T1}, 13")
    e(f"s_add_u32 s{S_T0}, s{S_T0}, s{S_T1}")
    e(f"v_lshlrev_b32 {T0}, 4, {L}")
    e(f"v_add_u32 v{V_OO}, s{S_T0}, {T0}")
    for i in range(32):
        e(f"v_mov_b32 v{V_O+i}, 0")

    def qchunk(slot, issue_next, wait_n):
        e(f"s_waitcnt vmcnt({wait_n})")
        e("s_barrier")
        seq = [(ks, d2) for ks in range(2) for d2 in range(2)]
        hi = slot >= 4
        for idx, (ks, d2) in enumerate(seq):
            f = V_F + 4*idx
            for u in range(2):
                e(f"ds_read_b64_tr_b16 {vr(f+2*u,2)}, v{V_WA+d2+(2 if hi else 0)} offset:{(slot%4)*16384 + (ks*16+4*u)*512}")
        if issue_next:
            ns = (slot + WAH) % WNS
            e(f"s_add_u32 s{S_T0}, s{S_CNT}, {slot+WAH}")
            e(f"s_lshl_b32 s{S_XOFF}, s{S_T0}, 6")
            for st in range(2):
                e(f"buffer_load_dwordx4 {vr(XSL[ns]+4*st,4)}, v{V_XO}, {sr(SRD_X,4)}, s{S_XOFF} offen offset:{st*32}")
        for idx, (ks, d2) in enumerate(seq):
            f = V_F + 4*idx
            e(f"s_waitcnt lgkmcnt({2*(3-idx)})")
            acc = vr(V_O + 16*d2, 16)
            e(f"v_mfma_f32_32x32x16_bf16 {acc}, {vr(f,4)}, {vr(XSL[slot]+4*ks,4)}, {acc}")
    for d2 in range(2):
        e(f"v_add_u32 v{V_WA+2+d2}, 0x10000, v{V_WA+d2}")
    e(f"s_mov_b32 s{S_CNT}, 0")
    for c in range(NCH):
        if c == 8:
            e(f"s_mov_b32 s{S_CNT}, 8")
        if c == 16:
            e(f"s_mov_b32 s{S_CNT}, 16")
        n_after = min(NCH - 1, c + WAH - 1) - c
        qchunk(c % WNS, c + WAH < NCH, 2*n_after)
    stamp(e, 1)
    e.nop(16)
    e(f"s_lshl_b32 s{S_T0}, s{S_QB}, 13")
    e(f"s_add_u32 s{S_T0}, s{S_T0}, {QX0}")
    e(f"v_lshlrev_b32 {T0}, 4, {L}")
    e(f"v_add_u32 {T0}, s{S_T0}, {T0}")
    e(f"s_lshl_b32 s{S_T1}, s{S_KH}, 12")
    e(f"v_add_u32 {T1}, s{S_T1}, {T0}")
    for kl in range(4):
        d2, hf = kl // 2, kl % 2
        src = V_O + 16*d2 + 8*hf
        q = V_F + 4*kl
        for j in range(4):
            e(f"v_cvt_pk_bf16_f32 v{q+j}, v{src+2*j}, v{src+2*j+1}")
        e("s_nop 1")
        e(f"v_permlane32_swap_b32 v{q}, v{q+2}")
        e(f"v_permlane32_swap_b32 v{q+1}, v{q+3}")
        e("s_nop 1")
        e(f"ds_write_b128 {T1}, {vr(q,4)} offset:{kl*1024}")
    e("s_waitcnt lgkmcnt(0)")
    e("s_barrier")
    for ks in range(8):
        e(f"ds_read_b128 {vr(V_Q+4*ks,4)}, {T0} offset:{ks*1024}")
    e(f"v_lshrrev_b32 {T0}, 5, {L}")
    e(f"v_and_b32 {T1}, 15, {L}")
    e(f"v_xor_b32 {T0}, {T0}, {T1}")
    e(f"v_and_b32 {T1}, 31, {L}")
    e(f"v_lshlrev_b32 {T1}, 8, {T1}")
    e(f"s_lshl_b32 s{S_T0}, s{S_KH}, 13")
    e(f"v_add_u32 {T1}, s{S_T0}, {T1}")
    for ks in range(8):
        e(f"v_xor_b32 {T2}, {2*ks}, {T0}")
        e(f"v_lshl_add_u32 v{V_KW+ks}, {T2}, 4, {T1}")
    e(f"v_lshrrev_b32 {T0}, 5, {L}")
    e(f"v_bfe_u32 {T1}, {L}, 2, 2")
    e(f"v_lshl_add_u32 {T2}, {T0}, 2, {T1}")
    e(f"v_lshlrev_b32 {T2}, 8, {T2}")
    e(f"s_add_u32 s{S_T0}, s{S_T0}, 16384")
    e(f"v_add_u32 {T2}, s{S_T0}, {T2}")
    e(f"v_bfe_u32 {T0}, {L}, 4, 1")
    e(f"v_bfe_u32 {T3}, {L}, 1, 1")
    e(f"v_lshl_add_u32 {T0}, {T0}, 1, {T3}")
    e(f"v_lshl_add_u32 {T2}, {T0}, 4, {T2}")
    e(f"v_and_b32 {T3}, 1, {L}")
    e(f"v_lshl_add_u32 {T2}, {T3}, 3, {T2}")
    for db in range(4):
        e(f"v_xor_b32 {T3}, {db}, {T1}")
        e(f"v_lshl_add_u32 v{V_VW+db}, {T3}, 6, {T2}")
    e(f"v_mov_b32 v{V_M}, 0xff800000")
    e(f"v_mov_b32 v{V_L}, 0")
    for i in range(64):
        e(f"v_mov_b32 v{V_O+i}, 0")
    e(f"s_mov_b32 s{S_C}, {f32hex(SCALE*LOG2E)}")
    e(f"s_mov_b32 s{S_CNT}, 0")
    e(f"s_mov_b32 s{S_T2}, 0x1ffff")
    e("s_waitcnt lgkmcnt(0)")

    e.label("attn_loop")
    e("s_barrier")
    def rdk(ks):
        f = V_F + 4*(ks % 6)
        e(f"ds_read_b128 {vr(f,4)}, v{V_KW+ks}")
    for ks in range(6):
        rdk(ks)
    seqv = [(ks, db) for ks in range(2) for db in range(4)]
    def rdv(idx):
        ks, db = seqv[idx]
        f = V_F + 4*((8 + idx) % 6)
        for u in range(2):
            e(f"ds_read_b64_tr_b16 {vr(f+2*u,2)}, v{V_VW+db} offset:{ks*4096 + u*2048}")
    issued = 6
    for ks in range(8):
        f = V_F + 4*(ks % 6)
        later_k = max(0, min(8, issued) - ks - 1)
        later_v = max(0, issued - 8)
        e(f"s_waitcnt lgkmcnt({later_k + 2*later_v})")
        acc = vr(V_S, 16)
        cc = "0" if ks == 0 else acc
        e(f"v_mfma_f32_32x32x16_bf16 {acc}, {vr(f,4)}, {vr(V_Q+4*ks,4)}, {cc}")
        if issued < 8:
            rdk(issued)
        else:
            rdv(issued - 8)
        issued += 1
    for i in range(8):
        e(f"v_add_u32 v{V_KW+i}, 0x8000, v{V_KW+i}")
        e(f"v_and_b32 v{V_KW+i}, s{S_T2}, v{V_KW+i}")
    S = lambda i: f"v{V_S+i}"
    e(f"v_max3_f32 {T0}, {S(0)}, {S(1)}, {S(2)}")
    e(f"v_max3_f32 {T1}, {S(3)}, {S(4)}, {S(5)}")
    e(f"v_max3_f32 {T0}, {T0}, {S(6)}, {S(7)}")
    e(f"v_max3_f32 {T1}, {T1}, {S(8)}, {S(9)}")
    e(f"v_max3_f32 {T0}, {T0}, {S(10)}, {S(11)}")
    e(f"v_max3_f32 {T1}, {T1}, {S(12)}, {S(13)}")
    e(f"v_max3_f32 {T0}, {T0}, {S(14)}, {S(15)}")
    e(f"v_max_f32 {T0}, {T0}, {T1}")
    e(f"v_mov_b32 {T1}, {T0}")
    e("s_nop 1")
    e(f"v_permlane32_swap_b32 {T0}, {T1}")
    e("s_nop 1")
    e(f"v_max3_f32 {T0}, {T0}, {T1}, v{V_M}")
    e(f"v_cmp_neq_f32 vcc, {T0}, v{V_M}")
    e(f"v_sub_f32 {T1}, v{V_M}, {T0}")
    e(f"v_mul_f32 {T1}, s{S_C}, {T1}")
    e(f"v_exp_f32 v{V_AL2}, {T1}")
    e(f"v_mov_b32 v{V_M}, {T0}")
    e(f"v_mul_f32 {T0}, s{S_C}, {T0}")
    e(f"v_mov_b32 v{V_AL2+1}, v{V_AL2}")
    for i in range(16):
        e(f"v_fma_f32 {S(i)}, {S(i)}, s{S_C}, -{T0}")
    for i in range(16):
        e(f"v_exp_f32 {S(i)}, {S(i)}")
    e("s_cbranch_vccz attn_noresc")
    e(f"v_mul_f32 v{V_L}, v{V_L}, v{V_AL2}")
    for i in range(0, 64, 2):
        e(f"v_pk_mul_f32 {vr(V_O+i,2)}, {vr(V_O+i,2)}, {vr(V_AL2,2)}")
    e.label("attn_noresc")
    e(f"v_add_f32 {T1}, {S(0)}, {S(1)}")
    e(f"v_add_f32 {T2}, {S(2)}, {S(3)}")
    for i in range(4, 16, 2):
        tt = T1 if (i // 2) % 2 == 0 else T2
        e(f"v_add_f32 {tt}, {tt}, {S(i)}")
        e(f"v_add_f32 {tt}, {tt}, {S(i+1)}")
    e(f"v_add_f32 {T1}, {T1}, {T2}")
    e(f"v_add_f32 v{V_L}, v{V_L}, {T1}")
    for ks in range(2):
        for j in range(4):
            e(f"v_cvt_pk_bf16_f32 v{V_P+4*ks+j}, {S(8*ks+2*j)}, {S(8*ks+2*j+1)}")
    e("s_nop 1")
    for idx in range(8):
        ks, db = seqv[idx]
        f = V_F + 4*((8 + idx) % 6)
        later_v = max(0, (issued - 8) - idx - 1)
        e(f"s_waitcnt lgkmcnt({2*later_v})")
        acc = vr(V_O + 16*db, 16)
        e(f"v_mfma_f32_32x32x16_bf16 {acc}, {vr(f,4)}, {vr(V_P+4*ks,4)}, {acc}")
        if issued < 16:
            rdv(issued - 8)
            issued += 1
    for i in range(4):
        e(f"v_add_u32 v{V_VW+i}, 0x8000, v{V_VW+i}")
        e(f"v_and_b32 v{V_VW+i}, s{S_T2}, v{V_VW+i}")
    e(f"s_add_u32 s{S_CNT}, s{S_CNT}, 1")
    e(f"s_cmp_lt_u32 s{S_CNT}, 16")
    e("s_cbranch_scc1 attn_loop")
    stamp(e, 2)
    e.nop(16)
    e(f"v_mov_b32 {T0}, v{V_L}")
    e(f"v_mov_b32 {T1}, v{V_L}")
    e("s_nop 1")
    e(f"v_permlane32_swap_b32 {T0}, {T1}")
    e("s_nop 1")
    e(f"v_add_f32 v{V_L}, {T0}, {T1}")
    e("s_barrier")
    e(f"s_mul_i32 s{S_T0}, s{S_QB}, 17408")
    e(f"v_lshlrev_b32 {T0}, 4, {L}")
    e(f"v_add_u32 {T0}, s{S_T0}, {T0}")
    e(f"v_lshlrev_b32 {T1}, 3, {L}")
    e(f"v_add_u32 {T1}, s{S_T0}, {T1}")
    e(f"s_cmp_eq_u32 s{S_KH}, 0")
    e("s_cbranch_scc1 attn_merge0")
    for i in range(16):
        e(f"ds_write_b128 {T0}, {vr(V_O+4*i,4)} offset:{i*1024}")
    e(f"ds_write_b64 {T1}, {vr(V_M,2)} offset:16384")
    e("s_waitcnt lgkmcnt(0)")
    e("s_barrier")
    e("s_endpgm")
    e.label("attn_merge0")
    e("s_barrier")
    e(f"ds_read_b64 {vr(V_P,2)}, {T1} offset:16384")
    for i in range(8):
        e(f"ds_read_b128 {vr(V_Q+4*i,4)}, {T0} offset:{i*1024}")
    e("s_waitcnt lgkmcnt(8)")
    e(f"v_max_f32 {T2}, v{V_M}, v{V_P}")
    e(f"v_sub_f32 {T3}, v{V_M}, {T2}")
    e(f"v_mul_f32 {T3}, s{S_C}, {T3}")
    e(f"v_exp_f32 v{V_AL2}, {T3}")
    e(f"v_sub_f32 {T3}, v{V_P}, {T2}")
    e(f"v_mul_f32 {T3}, s{S_C}, {T3}")
    e(f"v_exp_f32 v{V_P+2}, {T3}")
    e("s_nop 0")
    e(f"v_mul_f32 v{V_L}, v{V_L}, v{V_AL2}")
    e(f"v_fma_f32 v{V_L}, v{V_P+1}, v{V_P+2}, v{V_L}")
    e(f"v_rcp_f32 {T3}, v{V_L}")
    e("s_nop 0")
    e(f"v_mul_f32 v{V_AL2}, v{V_AL2}, {T3}")
    e(f"v_mul_f32 v{V_P+2}, v{V_P+2}, {T3}")
    e(f"v_mov_b32 v{V_AL2+1}, v{V_AL2}")
    e(f"v_mov_b32 v{V_P+3}, v{V_P+2}")
    e(f"s_movk_i32 s{S_T0}, 4096")
    e(f"s_mov_b32 s{S_T1}, 0")
    for half in range(2):
        if half == 1:
            for i in range(8):
                e(f"ds_read_b128 {vr(V_Q+4*i,4)}, {T0} offset:{(8+i)*1024}")
        e("s_waitcnt lgkmcnt(0)")
        for i in range(0, 32, 2):
            o = V_O + 32*half + i
            e(f"v_pk_mul_f32 {vr(o,2)}, {vr(o,2)}, {vr(V_AL2,2)}")
            e(f"v_pk_fma_f32 {vr(o,2)}, {vr(V_Q+i,2)}, {vr(V_P+2,2)}, {vr(o,2)}")
        for d2 in range(2):
            db = 2*half + d2
            for pr in range(2):
                src = V_O + 16*db + 8*pr
                q = V_F + 4*((2*db+pr) % 6)
                for j in range(4):
                    e(f"v_cvt_pk_bf16_f32 v{q+j}, v{src+2*j}, v{src+2*j+1}")
                e("s_nop 1")
                e(f"v_permlane32_swap_b32 v{q}, v{q+2}")
                e(f"v_permlane32_swap_b32 v{q+1}, v{q+3}")
                e("s_nop 1")
                e(f"buffer_store_dwordx4 {vr(q,4)}, v{V_OO}, {sr(SRD_O,4)}, s{S_T0 if db >= 2 else S_T1} offen offset:{((2*db+pr)%4)*1024}")
    if STAMP:
        e("s_waitcnt vmcnt(0)")
    stamp(e, 3)
    stamp_flush(e, 4, S_WAVE, "c")
    e("s_endpgm")

    e.label("attn_loader")
    e(f"s_lshl_b32 s{S_T0}, s{S_B}, 4")
    e(f"s_add_u32 s{S_T0}, s{S_T0}, s{S_HKV}")
    e(f"s_lshl_b32 s{S_T0}, s{S_T0}, 18")
    e(f"s_cmp_eq_u32 s{S_WAVE}, 8")
    e(f"s_cselect_b32 s{S_T1}, s{S_K}, s{S_V}")
    e(f"s_cselect_b32 s{S_T2}, s{S_K+1}, s{S_V+1}")
    e(f"s_add_u32 s{SRD_K}, s{S_T1}, s{S_T0}")
    e(f"s_addc_u32 s{SRD_K+1}, s{S_T2}, 0")
    e(f"s_mov_b32 s{SRD_K+2}, 0x40000")
    e(f"s_mov_b32 s{SRD_K+3}, 0x20000")
    e(f"v_lshrrev_b32 {T0}, 4, {L}")
    e(f"v_and_b32 {T1}, 15, {L}")
    e(f"v_lshlrev_b32 {T2}, 8, {T0}")
    e(f"s_cmp_eq_u32 s{S_WAVE}, 8")
    e(f"s_cbranch_scc0 attn_ldv")
    e(f"v_xor_b32 {T1}, {T1}, {T0}")
    for i in range(4):
        e(f"v_xor_b32 {T3}, {4*i}, {T1}")
        e(f"v_lshl_add_u32 v{V_D+i}, {T3}, 4, {T2}")
    e(f"s_mov_b32 s{S_XOFF}, 0")
    e("s_branch attn_ld2")
    e.label("attn_ldv")
    e(f"v_lshlrev_b32 {T3}, 2, {T0}")
    e(f"v_xor_b32 {T1}, {T1}, {T3}")
    for i in range(4):
        e(f"v_lshl_add_u32 v{V_D+i}, {T1}, 4, {T2}")
    e(f"s_mov_b32 s{S_XOFF}, 16384")
    e.label("attn_ld2")
    def tile_issue():
        e(f"s_add_u32 s{S_SOFF}, s{S_ROT}, s{S_T2}")
        e(f"s_and_b32 s{S_SOFF}, s{S_SOFF}, 15")
        e(f"s_lshl_b32 s{S_SOFF}, s{S_SOFF}, 14")
        e(f"s_and_b32 s{S_STG}, s{S_T2}, 3")
        e(f"s_lshl_b32 s{S_STG}, s{S_STG}, 15")
        e(f"s_add_u32 s{S_STG}, s{S_STG}, s{S_XOFF}")
        for g in range(4):
            e(f"s_mov_b32 m0, s{S_STG}")
            e(f"s_add_u32 s{S_STG}, s{S_STG}, 4096")
            for i in range(4):
                e(f"buffer_load_dwordx4 v{V_D+i}, {sr(SRD_K,4)}, s{S_SOFF} offen offset:{i*1024}{NT_KV} lds")
            e(f"s_add_u32 s{S_SOFF}, s{S_SOFF}, 4096")
    e(f"s_mov_b32 s{S_T2}, 0")
    tile_issue()
    e(f"s_mov_b32 s{S_CNT}, 0")
    e.label("attn_ldbar")
    e("s_barrier")
    e(f"s_add_u32 s{S_CNT}, s{S_CNT}, 1")
    e(f"s_cmp_lt_u32 s{S_CNT}, {NCH+1}")
    e("s_cbranch_scc1 attn_ldbar")
    e(f"s_mov_b32 s{S_T2}, 1")
    e.label("attn_ldpro")
    tile_issue()
    e(f"s_add_u32 s{S_T2}, s{S_T2}, 1")
    e(f"s_cmp_lt_u32 s{S_T2}, 3")
    e("s_cbranch_scc1 attn_ldpro")
    e(f"s_mov_b32 s{S_CNT}, 0")
    e.label("attn_ldloop")
    e(f"s_cmp_lt_u32 s{S_CNT}, 14")
    e("s_cbranch_scc1 attn_ldw32")
    e(f"s_cmp_eq_u32 s{S_CNT}, 14")
    e("s_cbranch_scc1 attn_ldw16")
    e("s_waitcnt vmcnt(0)")
    e("s_branch attn_ldw")
    e.label("attn_ldw16")
    e("s_waitcnt vmcnt(16)")
    e("s_branch attn_ldw")
    e.label("attn_ldw32")
    e("s_waitcnt vmcnt(32)")
    e.label("attn_ldw")
    e("s_barrier")
    e(f"s_add_u32 s{S_T2}, s{S_CNT}, 3")
    e(f"s_cmp_ge_u32 s{S_T2}, 16")
    e("s_cbranch_scc1 attn_ldskip")
    tile_issue()
    e.label("attn_ldskip")
    e(f"s_add_u32 s{S_CNT}, s{S_CNT}, 1")
    e(f"s_cmp_lt_u32 s{S_CNT}, 16")
    e("s_cbranch_scc1 attn_ldloop")
    e("s_barrier")
    e("s_barrier")
    e("s_endpgm")

    e.label("attn_wqloader")
    e(f"s_lshl_b32 s{S_T0}, s{S_HKV}, 9")
    e(f"s_add_u32 s{SRD_WQ}, s{S_WQ}, s{S_T0}")
    e(f"s_addc_u32 s{SRD_WQ+1}, s{S_WQ+1}, 0")
    e(f"s_sub_u32 s{SRD_WQ+2}, {576*8192}, s{S_T0}")
    e(f"s_mov_b32 s{SRD_WQ+3}, 0x20000")
    e(f"v_lshrrev_b32 {T0}, 5, {L}")
    e(f"v_and_b32 {T1}, 31, {L}")
    e(f"v_lshlrev_b32 {T2}, 13, {T0}")
    for odd in range(2):
        e(f"v_add_u32 {T3}, {2*odd}, {T0}")
        e(f"v_lshlrev_b32 {T3}, 2, {T3}")
        e(f"v_xor_b32 {T3}, {T3}, {T1}")
        e(f"v_lshl_add_u32 v{V_D+odd}, {T3}, 4, {T2}")
    S_WQR, S_WQL = 52, 53
    e(f"s_sub_u32 s{S_T0}, s{S_WAVE}, 10")
    e(f"s_lshl_b32 s{S_WQR}, s{S_T0}, 17")
    e(f"s_lshl_b32 s{S_WQL}, s{S_T0}, 13")
    e(f"s_add_u32 s{S_WQL}, s{S_WQL}, {WQ0}")
    def wq_issue():
        e(f"s_lshl_b32 s{S_SOFF}, s{S_T2}, 18")
        e(f"s_add_u32 s{S_SOFF}, s{S_SOFF}, s{S_WQR}")
        e(f"s_and_b32 s{S_STG}, s{S_T2}, 7")
        e(f"s_lshl_b32 s{S_STG}, s{S_STG}, 14")
        e(f"s_add_u32 s{S_STG}, s{S_STG}, s{S_WQL}")
        for j in range(8):
            e(f"s_mov_b32 m0, s{S_STG}")
            e(f"s_add_u32 s{S_STG}, s{S_STG}, 1024")
            e(f"buffer_load_dwordx4 v{V_D+(j%2)}, {sr(SRD_WQ,4)}, s{S_SOFF} offen{NT_W} lds")
            e(f"s_add_u32 s{S_SOFF}, s{S_SOFF}, 16384")
    e(f"s_mov_b32 s{S_T2}, 0")
    e.label("attn_wqpro")
    wq_issue()
    e(f"s_add_u32 s{S_T2}, s{S_T2}, 1")
    e(f"s_cmp_lt_u32 s{S_T2}, {WAH}")
    e("s_cbranch_scc1 attn_wqpro")
    e(f"s_mov_b32 s{S_CNT}, 0")
    e.label("attn_wqloop")
    e("s_waitcnt vmcnt(48)")
    e("s_barrier")
    wq_issue()
    e(f"s_add_u32 s{S_T2}, s{S_T2}, 1")
    e(f"s_cmp_lt_u32 s{S_T2}, {NCH}")
    e("s_cbranch_scc1 attn_wqloop")
    for k in range(WAH):
        e(f"s_waitcnt vmcnt({8*(WAH-1-k)})")
        e("s_barrier")
    e(f"s_mov_b32 s{S_CNT}, 0")
    e.label("attn_wqbar")
    e("s_barrier")
    e(f"s_add_u32 s{S_CNT}, s{S_CNT}, 1")
    e(f"s_cmp_lt_u32 s{S_CNT}, 19")
    e("s_cbranch_scc1 attn_wqbar")
    e.label("attn_end")
    e("s_endpgm")

def gen_oproj(e):
    name = "oproj_kernel"
    e.raw(f".globl {name}")
    e.raw(".p2align 8")
    e.raw(f".type {name},@function")
    e.label(name)
    SRD_O, SRD_W, SRD_OUT = 20, 24, 28
    S_WAVE, S_MB, S_NB, S_T0, S_T1, S_SOFF, S_KO, S_CNT, S_OOFF = 40, 41, 42, 43, 44, 46, 47, 49, 50
    V_LANE = 1
    V_T0, V_T1, V_T2, V_T3 = 2, 3, 4, 5
    V_WD = 6
    V_WA = 8
    V_OA = 10
    V_OUT = 13
    V_AF = 16
    V_ACC = 64
    V_BF = 128
    NS = 4
    AHEAD = 3
    NCH = 16
    L = f"v{V_LANE}"
    T0, T1, T2, T3 = (f"v{x}" for x in (V_T0, V_T1, V_T2, V_T3))
    e("s_cmp_ge_u32 s2, 144")
    e("s_cbranch_scc1 oproj_end")
    e("s_load_dwordx4 s[4:7], s[0:1], 32")
    e("s_load_dwordx2 s[16:17], s[0:1], 56")
    stamp(e, 0)
    e(f"v_and_b32 {L}, 63, v0")
    e(f"v_lshrrev_b32 v2, 6, v0")
    e("s_nop 0")
    e(f"v_readfirstlane_b32 s{S_WAVE}, v2")
    e(f"s_and_b32 s{S_MB}, s2, 15")
    e(f"s_lshr_b32 s{S_NB}, s2, 4")
    e("s_waitcnt lgkmcnt(0)")
    e(f"s_mov_b32 s{SRD_O}, s16")
    e(f"s_mov_b32 s{SRD_O+1}, s17")
    e(f"s_mov_b32 s{SRD_O+2}, 0x800000")
    e(f"s_mov_b32 s{SRD_O+3}, 0x20000")
    e(f"s_mov_b32 s{SRD_W}, s4")
    e(f"s_mov_b32 s{SRD_W+1}, s5")
    e(f"s_mov_b32 s{SRD_W+2}, {4096*1152}")
    e(f"s_mov_b32 s{SRD_W+3}, 0x20000")
    e(f"s_mov_b32 s{SRD_OUT}, s6")
    e(f"s_mov_b32 s{SRD_OUT+1}, s7")
    e(f"s_mov_b32 s{SRD_OUT+2}, {1024*1152}")
    e(f"s_mov_b32 s{SRD_OUT+3}, 0x20000")
    e(f"v_lshrrev_b32 {T0}, 3, {L}")
    e(f"s_movk_i32 s{S_T0}, 1152")
    e(f"v_mul_lo_u32 {T0}, {T0}, s{S_T0}")
    e(f"v_and_b32 {T1}, 7, {L}")
    e(f"v_bfe_u32 {T2}, {L}, 4, 1")
    e(f"v_lshlrev_b32 {T2}, 2, {T2}")
    e(f"v_xor_b32 {T1}, {T1}, {T2}")
    e(f"v_lshl_add_u32 v{V_WD}, {T1}, 4, {T0}")
    e(f"s_mul_i32 s{S_KO}, s{S_WAVE}, {512*1152}")
    e(f"s_lshl_b32 s{S_T0}, s{S_NB}, 7")
    e(f"s_add_u32 s{S_KO}, s{S_KO}, s{S_T0}")
    e(f"s_lshl_b32 s{S_T0}, s{S_MB}, 19")
    e(f"s_lshl_b32 s{S_T1}, s{S_WAVE}, 15")
    e(f"s_add_u32 s{S_T0}, s{S_T0}, s{S_T1}")
    e(f"v_lshlrev_b32 {T0}, 4, {L}")
    e(f"v_add_u32 v{V_OA}, s{S_T0}, {T0}")
    e(f"v_add_u32 v{V_OA+1}, 0x40000, v{V_OA}")
    S_M0W = 48
    e(f"s_lshl_b32 s{S_M0W}, s{S_WAVE}, 14")
    e(f"s_mov_b32 s{S_SOFF}, s{S_KO}")
    e(f"s_mov_b32 s{S_OOFF}, 0")
    def issue(slot):
        for j in range(4):
            e(f"s_add_u32 m0, s{S_M0W}, {slot*4096 + j*1024}")
            e("s_nop 0")
            e(f"buffer_load_dwordx4 v{V_WD}, {sr(SRD_W,4)}, s{S_SOFF} offen{NT_W} lds")
            e(f"s_add_u32 s{S_SOFF}, s{S_SOFF}, {8*1152}")
        for mb2 in range(2):
            for st in range(2):
                f = V_BF + 16*slot + 8*mb2 + 4*st
                e(f"buffer_load_dwordx4 {vr(f,4)}, v{V_OA+mb2}, {sr(SRD_O,4)}, s{S_OOFF} offen offset:{st*1024}{NT_W}")
        e(f"s_add_u32 s{S_OOFF}, s{S_OOFF}, 2048")
    for c in range(AHEAD):
        issue(c)
    e(f"v_lshrrev_b32 {T0}, 5, {L}")
    e(f"v_bfe_u32 {T1}, {L}, 2, 2")
    e(f"v_lshl_add_u32 {T2}, {T0}, 3, {T1}")
    e(f"v_lshlrev_b32 {T2}, 7, {T2}")
    e(f"v_bfe_u32 {T0}, {L}, 4, 1")
    e(f"v_bfe_u32 {T3}, {L}, 1, 1")
    e(f"v_lshl_add_u32 {T0}, {T0}, 1, {T3}")
    e(f"v_lshl_add_u32 {T2}, {T0}, 4, {T2}")
    e(f"v_and_b32 {T3}, 1, {L}")
    e(f"v_lshl_add_u32 {T2}, {T3}, 3, {T2}")
    e(f"v_add_u32 {T2}, s{S_M0W}, {T2}")
    e(f"v_bfe_u32 {T1}, {L}, 3, 1")
    for nb2 in range(2):
        e(f"v_xor_b32 {T3}, {nb2}, {T1}")
        e(f"v_lshl_add_u32 v{V_WA+nb2}, {T3}, 6, {T2}")
    for i in range(64):
        e(f"v_mov_b32 v{V_ACC+i}, 0")
    def rda(slot, par):
        ab = V_AF + 16*par
        for nb2 in range(2):
            for st in range(2):
                for u in range(2):
                    e(f"ds_read_b64_tr_b16 {vr(ab+8*nb2+4*st+2*u,2)}, v{V_WA+nb2} offset:{slot*4096 + (st*16+4*u)*128}")
    stamp(e, 1)
    e(f"s_waitcnt vmcnt({8*(AHEAD-1)})")
    rda(0, 0)
    def body(c, cmod):
        slot = cmod % NS
        par = cmod % 2
        e("s_waitcnt lgkmcnt(0)")
        if c + AHEAD < NCH:
            issue((slot + AHEAD) % NS)
        if c + 1 < NCH:
            n_after = min(NCH - 1, c + AHEAD) - (c + 1)
            e(f"s_waitcnt vmcnt({8*n_after})")
            rda((slot + 1) % NS, 1 - par)
        ab = V_AF + 16*par
        for st in range(2):
            for nb2 in range(2):
                for mb2 in range(2):
                    acc = vr(V_ACC + 32*nb2 + 16*mb2, 16)
                    e(f"v_mfma_f32_32x32x16_bf16 {acc}, {vr(ab+8*nb2+4*st,4)}, {vr(V_BF+16*slot+8*mb2+4*st,4)}, {acc}")
    e(f"s_mov_b32 s{S_CNT}, 0")
    e.label("oproj_loop")
    for cm in range(4):
        body(cm, cm)
    e(f"s_add_u32 s{S_CNT}, s{S_CNT}, 1")
    e(f"s_cmp_lt_u32 s{S_CNT}, 3")
    e("s_cbranch_scc1 oproj_loop")
    stamp(e, 2)
    for c in range(12, 16):
        body(c, c)
    stamp(e, 3)
    e.nop(16)
    e("s_barrier")
    e(f"v_lshlrev_b32 {T0}, 4, {L}")
    e(f"v_add_u32 {T1}, s{S_M0W}, {T0}")
    for i in range(16):
        e(f"ds_write_b128 {T1}, {vr(V_ACC+4*i,4)} offset:{i*1024}")
    e("s_waitcnt lgkmcnt(0)")
    e("s_barrier")
    e(f"s_lshl_b32 s{S_T0}, s{S_WAVE}, 11")
    e(f"v_add_u32 {T1}, s{S_T0}, {T0}")
    e(f"v_add_u32 {T2}, 0x10000, {T1}")
    for w in range(8):
        for i in range(2):
            e(f"ds_read_b128 {vr(V_BF+8*w+4*i,4)}, {T1 if w < 4 else T2} offset:{(w%4)*16384 + i*1024}")
    e("s_waitcnt lgkmcnt(0)")
    for stp in (4, 2, 1):
        for w in range(stp):
            for i in range(0, 8, 2):
                e(f"v_pk_add_f32 {vr(V_BF+8*w+i,2)}, {vr(V_BF+8*w+i,2)}, {vr(V_BF+8*(w+stp)+i,2)}")
    e(f"s_lshl_b32 s{S_T0}, s{S_MB}, 6")
    e(f"s_bfe_u32 s{S_T1}, s{S_WAVE}, 0x10001")
    e(f"s_lshl_b32 s{S_T1}, s{S_T1}, 5")
    e(f"s_add_u32 s{S_T0}, s{S_T0}, s{S_T1}")
    e(f"v_and_b32 {T0}, 31, {L}")
    e(f"v_add_u32 {T0}, s{S_T0}, {T0}")
    e(f"s_movk_i32 s{S_T1}, 1152")
    e(f"v_mul_lo_u32 {T0}, {T0}, s{S_T1}")
    e(f"s_lshl_b32 s{S_T0}, s{S_NB}, 7")
    e(f"s_lshr_b32 s{S_T1}, s{S_WAVE}, 2")
    e(f"s_lshl_b32 s{S_T1}, s{S_T1}, 6")
    e(f"s_add_u32 s{S_T0}, s{S_T0}, s{S_T1}")
    e(f"s_and_b32 s{S_T1}, s{S_WAVE}, 1")
    e(f"s_lshl_b32 s{S_T1}, s{S_T1}, 5")
    e(f"s_add_u32 s{S_T0}, s{S_T0}, s{S_T1}")
    e(f"v_add_u32 {T0}, s{S_T0}, {T0}")
    e(f"v_lshrrev_b32 {T1}, 5, {L}")
    e(f"v_lshl_add_u32 v{V_OUT}, {T1}, 4, {T0}")
    q = V_AF
    for j in range(4):
        e(f"v_cvt_pk_bf16_f32 v{q+j}, v{V_BF+2*j}, v{V_BF+2*j+1}")
    e("s_nop 1")
    e(f"v_permlane32_swap_b32 v{q}, v{q+2}")
    e(f"v_permlane32_swap_b32 v{q+1}, v{q+3}")
    e("s_nop 1")
    e(f"buffer_store_dwordx4 {vr(q,4)}, v{V_OUT}, {sr(SRD_OUT,4)}, 0 offen")
    if STAMP:
        e("s_waitcnt vmcnt(0)")
    stamp(e, 4)
    stamp_flush(e, 5, S_WAVE, "o")
    e.label("oproj_end")
    e("s_endpgm")

def desc(name, nfv, acc, sgpr=102):
    return f""".amdhsa_kernel {name}
  .amdhsa_next_free_vgpr {nfv}
  .amdhsa_next_free_sgpr {sgpr}
  .amdhsa_accum_offset {acc}
  .amdhsa_group_segment_fixed_size 0
  .amdhsa_kernarg_size 64
  .amdhsa_user_sgpr_count 2
  .amdhsa_user_sgpr_kernarg_segment_ptr 1
  .amdhsa_system_sgpr_workgroup_id_x 1
.end_amdhsa_kernel
"""

def main():
    hdr = open("standalone__gqa_block_cached__near_ridge.s.ref").read().split("; Override launch")[0]
    e = Em()
    gen_attn(e)
    gen_oproj(e)
    out = hdr
    out += "; @launch kernel=attn_kernel grid=(256,1,1) block=(768,1,1) lds=163840\n"
    out += "; @launch kernel=oproj_kernel grid=(144,1,1) block=(512,1,1) lds=131072\n"
    out += '.amdgcn_target "amdgcn-amd-amdhsa--gfx950"\n.text\n'
    out += e.text()
    out += '.section .rodata,"a"\n.p2align 6\n'
    out += desc("attn_kernel", 168, 168)
    out += ".p2align 6\n"
    out += desc("oproj_kernel", 192, 192)
    path = sys.argv[1] if len(sys.argv) > 1 else "standalone__gqa_block_cached__near_ridge.s"
    open(path, "w").write(out)

main()
```

```python
import sys, struct

class Em:
    def __init__(self):
        self.lines = []
    def __call__(self, s):
        self.lines.append("    " + s)
    def label(self, s):
        self.lines.append(s + ":")
    def raw(self, s):
        self.lines.append(s)
    def nop(self, n):
        while n > 0:
            k = min(n, 16)
            self(f"s_nop {k-1}")
            n -= k
    def text(self):
        return "\n".join(self.lines) + "\n"

def vr(b, n=1):
    return f"v{b}" if n == 1 else f"v[{b}:{b+n-1}]"
def sr(b, n=1):
    return f"s{b}" if n == 1 else f"s[{b}:{b+n-1}]"
def f32hex(x):
    return "0x%08x" % struct.unpack("<I", struct.pack("<f", x))[0]

LOG2E = 1.4426950408889634
SCALE = 128 ** -0.5
OPT = sys.argv[2] if len(sys.argv) > 2 else ""
STAMP = "stamp" in OPT
NT_KV = " nt"
NT_W = " nt" if "ntw" in OPT else ""

def stamp(e, idx):
    if not STAMP: return
    e("s_memtime s[60:61]")
    e("s_waitcnt lgkmcnt(0)")
    e(f"s_mov_b32 s{62+idx}, s60")

def stamp_flush(e, n, wavereg, tag):
    if not STAMP: return
    e("s_load_dwordx2 s[56:57], s[0:1], 48")
    e("s_waitcnt lgkmcnt(0)")
    e("s_mov_b32 s52, s56")
    e("s_mov_b32 s53, s57")
    e("s_mov_b32 s54, 256")
    e("s_mov_b32 s55, 0x20000")
    e("s_cmp_lg_u32 s2, 5")
    e(f"s_cbranch_scc1 stamp_skip_{tag}")
    e(f"s_lshl_b32 s58, s{wavereg}, 5")
    for i in range(n):
        e(f"s_sub_u32 s59, s{62+i}, s62")
        e("v_mov_b32 v2, s59")
        e(f"v_mov_b32 v3, s58")
        e(f"buffer_store_dword v2, v3, s[52:55], 0 offen offset:{4*i}")
    e.label(f"stamp_skip_{tag}")

def rot18(e, dst, base_sgpr, add_const, rot_sgpr, tmp):
    if base_sgpr is None:
        e(f"s_add_u32 s{dst}, s{rot_sgpr}, {add_const}")
    else:
        e(f"s_add_u32 s{dst}, s{base_sgpr}, {add_const}")
        e(f"s_add_u32 s{dst}, s{dst}, s{rot_sgpr}")
    e(f"s_sub_u32 s{tmp}, s{dst}, 18")
    e(f"s_cmp_ge_u32 s{dst}, 18")
    e(f"s_cselect_b32 s{dst}, s{tmp}, s{dst}")

def gen_attn(e):
    name = "attn_kernel"
    e.raw(f".globl {name}")
    e.raw(".p2align 8")
    e.raw(f".type {name},@function")
    e.label(name)
    S_X, S_K, S_V, S_WQ, S_WS = 4, 6, 8, 10, 16
    SRD_K, SRD_X, SRD_WQ, SRD_O = 20, 28, 32, 36
    S_WAVE, S_HKV, S_B = 40, 41, 42
    S_T0, S_T1, S_T2, S_SOFF, S_C = 43, 44, 45, 46, 47
    S_CNT, S_STG, S_ROT, S_XOFF, S_QB, S_KH = 48, 49, 50, 51, 72, 73
    V_LANE = 1
    V_T0, V_T1, V_T2, V_T3 = 2, 3, 4, 5
    V_KW = 6
    V_VW = 14
    V_M, V_L = 18, 19
    V_AL2 = 20
    V_OO = 22
    V_XO = 23
    V_WA = 6
    V_D = 6
    V_O = 24
    V_S = 88
    V_Q = 104
    V_F = 136
    V_P = 160
    XSL = [V_O+32, V_O+40, V_O+48, V_O+56, V_S, V_S+8, V_Q, V_Q+8]
    STAGE = 32768
    WQ0 = 32768
    WNS = 8
    WAH = 7
    QX0 = 131072
    NCH = 18

    e("s_cmp_ge_u32 s2, 256")
    e("s_cbranch_scc1 attn_end")
    e("s_load_dwordx4 s[4:7], s[0:1], 0")
    e("s_load_dwordx4 s[8:11], s[0:1], 16")
    e("s_load_dwordx2 s[16:17], s[0:1], 56")
    stamp(e, 0)
    e(f"v_and_b32 v{V_LANE}, 63, v0")
    e(f"v_lshrrev_b32 v2, 6, v0")
    e("s_nop 0")
    e(f"v_readfirstlane_b32 s{S_WAVE}, v2")
    e(f"s_and_b32 s{S_HKV}, s2, 15")
    e(f"s_lshr_b32 s{S_B}, s2, 4")
    e(f"s_add_u32 s{S_ROT}, s{S_HKV}, s{S_B}")
    L = f"v{V_LANE}"
    T0, T1, T2, T3 = (f"v{x}" for x in (V_T0, V_T1, V_T2, V_T3))
    e("s_waitcnt lgkmcnt(0)")
    e(f"s_lshl_b32 s{S_T0}, s{S_HKV}, 9")
    e(f"s_add_u32 s{SRD_WQ}, s{S_WQ}, s{S_T0}")
    e(f"s_addc_u32 s{SRD_WQ+1}, s{S_WQ+1}, 0")
    e(f"s_sub_u32 s{SRD_WQ+2}, {576*8192}, s{S_T0}")
    e(f"s_mov_b32 s{SRD_WQ+3}, 0x20000")
    V_WD = 166
    e(f"v_lshrrev_b32 {T0}, 5, {L}")
    e(f"v_and_b32 {T1}, 31, {L}")
    e(f"v_lshlrev_b32 {T2}, 13, {T0}")
    for odd in range(2):
        e(f"v_add_u32 {T3}, {2*odd}, {T0}")
        e(f"v_lshlrev_b32 {T3}, 2, {T3}")
        e(f"v_xor_b32 {T3}, {T3}, {T1}")
        e(f"v_lshl_add_u32 v{V_WD+odd}, {T3}, 4, {T2}")
    S_WQR, S_WQL = 52, 53
    def wq_dma(chunk_sgpr, chunk_const, n_instr):
        rot18(e, S_SOFF, chunk_sgpr, chunk_const, S_B, S_T0)
        e(f"s_lshl_b32 s{S_SOFF}, s{S_SOFF}, 18")
        e(f"s_add_u32 s{S_SOFF}, s{S_SOFF}, s{S_WQR}")
        if chunk_sgpr is None:
            e(f"s_add_u32 m0, s{S_WQL}, {(chunk_const % WNS)*16384}")
        else:
            e(f"s_add_u32 s{S_STG}, s{chunk_sgpr}, {chunk_const}")
            e(f"s_and_b32 s{S_STG}, s{S_STG}, 7")
            e(f"s_lshl_b32 s{S_STG}, s{S_STG}, 14")
            e(f"s_add_u32 m0, s{S_STG}, s{S_WQL}")
        e("s_nop 0")
        e(f"buffer_load_dwordx4 v{V_WD}, {sr(SRD_WQ,4)}, s{S_SOFF} offen lds")
        if n_instr == 2:
            e(f"s_add_u32 s{S_SOFF}, s{S_SOFF}, {16384-1024}")
            e(f"buffer_load_dwordx4 v{V_WD+1}, {sr(SRD_WQ,4)}, s{S_SOFF} offen offset:1024 lds")
    e(f"s_cmp_ge_u32 s{S_WAVE}, 8")
    e("s_cbranch_scc1 attn_loader")
    e(f"s_add_u32 s{S_T0}, s{S_WAVE}, 8")
    e(f"s_lshl_b32 s{S_WQR}, s{S_T0}, 14")
    e(f"s_lshl_b32 s{S_WQL}, s{S_T0}, 10")
    e(f"s_add_u32 s{S_WQL}, s{S_WQL}, {WQ0}")
    e(f"s_and_b32 s{S_T0}, s{S_WAVE}, 1")
    e(f"s_cmp_eq_u32 s{S_T0}, 0")
    e("s_cbranch_scc1 attn_weven")
    e(f"v_mov_b32 v{V_WD}, v{V_WD+1}")
    e.label("attn_weven")

    e(f"s_and_b32 s{S_QB}, s{S_WAVE}, 3")
    e(f"s_lshr_b32 s{S_KH}, s{S_WAVE}, 2")
    e(f"s_mul_i32 s{S_T0}, s{S_B}, 73728")
    e(f"s_add_u32 s{SRD_X}, s{S_X}, s{S_T0}")
    e(f"s_addc_u32 s{SRD_X+1}, s{S_X+1}, 0")
    e(f"s_mov_b32 s{SRD_X+2}, 73728")
    e(f"s_mov_b32 s{SRD_X+3}, 0x20000")
    e(f"s_mov_b32 s{SRD_O}, s{S_WS}")
    e(f"s_mov_b32 s{SRD_O+1}, s{S_WS+1}")
    e(f"s_mov_b32 s{SRD_O+2}, 0x800000")
    e(f"s_mov_b32 s{SRD_O+3}, 0x20000")
    e(f"s_and_b32 s{S_T0}, s{S_QB}, 1")
    e(f"s_lshl_b32 s{S_T0}, s{S_T0}, 5")
    e(f"v_and_b32 {T0}, 31, {L}")
    e(f"v_add_u32 {T0}, s{S_T0}, {T0}")
    e(f"s_movk_i32 s{S_T1}, 1152")
    e(f"v_mul_lo_u32 {T0}, {T0}, s{S_T1}")
    e(f"v_lshrrev_b32 {T1}, 5, {L}")
    e(f"v_lshl_add_u32 v{V_XO}, {T1}, 4, {T0}")
    for c in range(WAH):
        rot18(e, S_XOFF, None, c, S_B, S_T0)
        e(f"s_lshl_b32 s{S_XOFF}, s{S_XOFF}, 6")
        for st in range(2):
            e(f"buffer_load_dwordx4 {vr(XSL[c]+4*st,4)}, v{V_XO}, {sr(SRD_X,4)}, s{S_XOFF} offen offset:{st*32}")
        wq_dma(None, c, 1)
    e(f"v_lshrrev_b32 {T0}, 5, {L}")
    e(f"v_bfe_u32 {T1}, {L}, 2, 2")
    e(f"v_lshl_add_u32 {T2}, {T0}, 3, {T1}")
    e(f"v_lshlrev_b32 {T2}, 9, {T2}")
    e(f"v_bfe_u32 {T0}, {L}, 4, 1")
    e(f"v_bfe_u32 {T3}, {L}, 1, 1")
    e(f"v_lshl_add_u32 {T0}, {T0}, 1, {T3}")
    e(f"v_lshl_add_u32 {T2}, {T0}, 4, {T2}")
    e(f"v_and_b32 {T3}, 1, {L}")
    e(f"v_lshl_add_u32 {T2}, {T3}, 3, {T2}")
    e(f"v_add_u32 {T2}, {WQ0}, {T2}")
    e(f"s_lshr_b32 s{S_T0}, s{S_QB}, 1")
    e(f"s_lshl_b32 s{S_T0}, s{S_T0}, 2")
    e(f"s_lshl_b32 s{S_T1}, s{S_KH}, 1")
    e(f"s_add_u32 s{S_T0}, s{S_T0}, s{S_T1}")
    for d2 in range(2):
        e(f"s_add_u32 s{S_T1}, s{S_T0}, {d2}")
        e(f"v_xor_b32 {T3}, s{S_T1}, {T1}")
        e(f"v_lshl_add_u32 v{V_WA+d2}, {T3}, 6, {T2}")
    e(f"s_and_b32 s{S_T0}, s{S_QB}, 1")
    e(f"s_lshl_b32 s{S_T1}, s{S_B}, 1")
    e(f"s_add_u32 s{S_T0}, s{S_T0}, s{S_T1}")
    e(f"s_lshl_b32 s{S_T0}, s{S_T0}, 18")
    e(f"s_lshl_b32 s{S_T1}, s{S_HKV}, 1")
    e(f"s_lshr_b32 s{S_T2}, s{S_QB}, 1")
    e(f"s_add_u32 s{S_T1}, s{S_T1}, s{S_T2}")
    e(f"s_lshl_b32 s{S_T1}, s{S_T1}, 13")
    e(f"s_add_u32 s{S_T0}, s{S_T0}, s{S_T1}")
    e(f"v_lshlrev_b32 {T0}, 4, {L}")
    e(f"v_add_u32 v{V_OO}, s{S_T0}, {T0}")
    for i in range(32):
        e(f"v_mov_b32 v{V_O+i}, 0")

    def qchunk(slot, issue_next, wait_n):
        e(f"s_waitcnt vmcnt({wait_n})")
        e("s_barrier")
        seq = [(ks, d2) for ks in range(2) for d2 in range(2)]
        hi = slot >= 4
        for idx, (ks, d2) in enumerate(seq):
            f = V_F + 4*idx
            for u in range(2):
                e(f"ds_read_b64_tr_b16 {vr(f+2*u,2)}, v{V_WA+d2+(2 if hi else 0)} offset:{(slot%4)*16384 + (ks*16+4*u)*512}")
        if issue_next:
            ns = (slot + WAH) % WNS
            rot18(e, S_XOFF, S_CNT, slot+WAH, S_B, S_T0)
            e(f"s_lshl_b32 s{S_XOFF}, s{S_XOFF}, 6")
            for st in range(2):
                e(f"buffer_load_dwordx4 {vr(XSL[ns]+4*st,4)}, v{V_XO}, {sr(SRD_X,4)}, s{S_XOFF} offen offset:{st*32}")
            wq_dma(S_CNT, slot+WAH, 1)
        for idx, (ks, d2) in enumerate(seq):
            f = V_F + 4*idx
            e(f"s_waitcnt lgkmcnt({2*(3-idx)})")
            acc = vr(V_O + 16*d2, 16)
            e(f"v_mfma_f32_32x32x16_bf16 {acc}, {vr(f,4)}, {vr(XSL[slot]+4*ks,4)}, {acc}")
    for d2 in range(2):
        e(f"v_add_u32 v{V_WA+2+d2}, 0x10000, v{V_WA+d2}")
    e(f"s_mov_b32 s{S_CNT}, 0")
    for c in range(NCH):
        if c == 8:
            e(f"s_mov_b32 s{S_CNT}, 8")
        if c == 16:
            e(f"s_mov_b32 s{S_CNT}, 16")
        n_after = min(NCH - 1, c + WAH - 1) - c
        if c == 0: stamp(e, 4)
        qchunk(c % WNS, c + WAH < NCH, 3*n_after)
        if c in (0, 1, 9): stamp(e, {0:5, 1:6, 9:7}[c])
    stamp(e, 1)
    e.nop(16)
    e(f"s_lshl_b32 s{S_T0}, s{S_QB}, 13")
    e(f"s_add_u32 s{S_T0}, s{S_T0}, {QX0}")
    e(f"v_lshlrev_b32 {T0}, 4, {L}")
    e(f"v_add_u32 {T0}, s{S_T0}, {T0}")
    e(f"s_lshl_b32 s{S_T1}, s{S_KH}, 12")
    e(f"v_add_u32 {T1}, s{S_T1}, {T0}")
    for kl in range(4):
        d2, hf = kl // 2, kl % 2
        src = V_O + 16*d2 + 8*hf
        q = V_F + 4*kl
        for j in range(4):
            e(f"v_cvt_pk_bf16_f32 v{q+j}, v{src+2*j}, v{src+2*j+1}")
        e("s_nop 1")
        e(f"v_permlane32_swap_b32 v{q}, v{q+2}")
        e(f"v_permlane32_swap_b32 v{q+1}, v{q+3}")
        e("s_nop 1")
        e(f"ds_write_b128 {T1}, {vr(q,4)} offset:{kl*1024}")
    e("s_waitcnt lgkmcnt(0)")
    e("s_barrier")
    for ks in range(8):
        e(f"ds_read_b128 {vr(V_Q+4*ks,4)}, {T0} offset:{ks*1024}")
    e(f"v_lshrrev_b32 {T0}, 5, {L}")
    e(f"v_and_b32 {T1}, 15, {L}")
    e(f"v_xor_b32 {T0}, {T0}, {T1}")
    e(f"v_and_b32 {T1}, 31, {L}")
    e(f"v_lshlrev_b32 {T1}, 8, {T1}")
    e(f"s_lshl_b32 s{S_T0}, s{S_KH}, 13")
    e(f"v_add_u32 {T1}, s{S_T0}, {T1}")
    for ks in range(8):
        e(f"v_xor_b32 {T2}, {2*ks}, {T0}")
        e(f"v_lshl_add_u32 v{V_KW+ks}, {T2}, 4, {T1}")
    e(f"v_lshrrev_b32 {T0}, 5, {L}")
    e(f"v_bfe_u32 {T1}, {L}, 2, 2")
    e(f"v_lshl_add_u32 {T2}, {T0}, 2, {T1}")
    e(f"v_lshlrev_b32 {T2}, 8, {T2}")
    e(f"s_add_u32 s{S_T0}, s{S_T0}, 16384")
    e(f"v_add_u32 {T2}, s{S_T0}, {T2}")
    e(f"v_bfe_u32 {T0}, {L}, 4, 1")
    e(f"v_bfe_u32 {T3}, {L}, 1, 1")
    e(f"v_lshl_add_u32 {T0}, {T0}, 1, {T3}")
    e(f"v_lshl_add_u32 {T2}, {T0}, 4, {T2}")
    e(f"v_and_b32 {T3}, 1, {L}")
    e(f"v_lshl_add_u32 {T2}, {T3}, 3, {T2}")
    for db in range(4):
        e(f"v_xor_b32 {T3}, {db}, {T1}")
        e(f"v_lshl_add_u32 v{V_VW+db}, {T3}, 6, {T2}")
    e(f"v_mov_b32 v{V_M}, 0xff800000")
    e(f"v_mov_b32 v{V_L}, 0")
    for i in range(64):
        e(f"v_mov_b32 v{V_O+i}, 0")
    e(f"s_mov_b32 s{S_C}, {f32hex(SCALE*LOG2E)}")
    e(f"s_mov_b32 s{S_CNT}, 0")
    e(f"s_mov_b32 s{S_T2}, 0x1ffff")
    e("s_waitcnt lgkmcnt(0)")

    e.label("attn_loop")
    e("s_barrier")
    def rdk(ks):
        f = V_F + 4*(ks % 6)
        e(f"ds_read_b128 {vr(f,4)}, v{V_KW+ks}")
    for ks in range(6):
        rdk(ks)
    seqv = [(ks, db) for ks in range(2) for db in range(4)]
    def rdv(idx):
        ks, db = seqv[idx]
        f = V_F + 4*((8 + idx) % 6)
        for u in range(2):
            e(f"ds_read_b64_tr_b16 {vr(f+2*u,2)}, v{V_VW+db} offset:{ks*4096 + u*2048}")
    issued = 6
    for ks in range(8):
        f = V_F + 4*(ks % 6)
        later_k = max(0, min(8, issued) - ks - 1)
        later_v = max(0, issued - 8)
        e(f"s_waitcnt lgkmcnt({later_k + 2*later_v})")
        acc = vr(V_S, 16)
        cc = "0" if ks == 0 else acc
        e(f"v_mfma_f32_32x32x16_bf16 {acc}, {vr(f,4)}, {vr(V_Q+4*ks,4)}, {cc}")
        if issued < 8:
            rdk(issued)
        else:
            rdv(issued - 8)
        issued += 1
    for i in range(8):
        e(f"v_add_u32 v{V_KW+i}, 0x8000, v{V_KW+i}")
        e(f"v_and_b32 v{V_KW+i}, s{S_T2}, v{V_KW+i}")
    S = lambda i: f"v{V_S+i}"
    e(f"v_max3_f32 {T0}, {S(0)}, {S(1)}, {S(2)}")
    e(f"v_max3_f32 {T1}, {S(3)}, {S(4)}, {S(5)}")
    e(f"v_max3_f32 {T0}, {T0}, {S(6)}, {S(7)}")
    e(f"v_max3_f32 {T1}, {T1}, {S(8)}, {S(9)}")
    e(f"v_max3_f32 {T0}, {T0}, {S(10)}, {S(11)}")
    e(f"v_max3_f32 {T1}, {T1}, {S(12)}, {S(13)}")
    e(f"v_max3_f32 {T0}, {T0}, {S(14)}, {S(15)}")
    e(f"v_max_f32 {T0}, {T0}, {T1}")
    e(f"v_mov_b32 {T1}, {T0}")
    e("s_nop 1")
    e(f"v_permlane32_swap_b32 {T0}, {T1}")
    e("s_nop 1")
    e(f"v_max3_f32 {T0}, {T0}, {T1}, v{V_M}")
    e(f"v_cmp_neq_f32 vcc, {T0}, v{V_M}")
    e(f"v_sub_f32 {T1}, v{V_M}, {T0}")
    e(f"v_mul_f32 {T1}, s{S_C}, {T1}")
    e(f"v_exp_f32 v{V_AL2}, {T1}")
    e(f"v_mov_b32 v{V_M}, {T0}")
    e(f"v_mul_f32 {T0}, s{S_C}, {T0}")
    e(f"v_mov_b32 v{V_AL2+1}, v{V_AL2}")
    for i in range(16):
        e(f"v_fma_f32 {S(i)}, {S(i)}, s{S_C}, -{T0}")
    for i in range(16):
        e(f"v_exp_f32 {S(i)}, {S(i)}")
    e("s_cbranch_vccz attn_noresc")
    e(f"v_mul_f32 v{V_L}, v{V_L}, v{V_AL2}")
    for i in range(0, 64, 2):
        e(f"v_pk_mul_f32 {vr(V_O+i,2)}, {vr(V_O+i,2)}, {vr(V_AL2,2)}")
    e.label("attn_noresc")
    e(f"v_add_f32 {T1}, {S(0)}, {S(1)}")
    e(f"v_add_f32 {T2}, {S(2)}, {S(3)}")
    for i in range(4, 16, 2):
        tt = T1 if (i // 2) % 2 == 0 else T2
        e(f"v_add_f32 {tt}, {tt}, {S(i)}")
        e(f"v_add_f32 {tt}, {tt}, {S(i+1)}")
    e(f"v_add_f32 {T1}, {T1}, {T2}")
    e(f"v_add_f32 v{V_L}, v{V_L}, {T1}")
    for ks in range(2):
        for j in range(4):
            e(f"v_cvt_pk_bf16_f32 v{V_P+4*ks+j}, {S(8*ks+2*j)}, {S(8*ks+2*j+1)}")
    e("s_nop 1")
    for idx in range(8):
        ks, db = seqv[idx]
        f = V_F + 4*((8 + idx) % 6)
        later_v = max(0, (issued - 8) - idx - 1)
        e(f"s_waitcnt lgkmcnt({2*later_v})")
        acc = vr(V_O + 16*db, 16)
        e(f"v_mfma_f32_32x32x16_bf16 {acc}, {vr(f,4)}, {vr(V_P+4*ks,4)}, {acc}")
        if issued < 16:
            rdv(issued - 8)
            issued += 1
    for i in range(4):
        e(f"v_add_u32 v{V_VW+i}, 0x8000, v{V_VW+i}")
        e(f"v_and_b32 v{V_VW+i}, s{S_T2}, v{V_VW+i}")
    e(f"s_add_u32 s{S_CNT}, s{S_CNT}, 1")
    e(f"s_cmp_lt_u32 s{S_CNT}, 16")
    e("s_cbranch_scc1 attn_loop")
    stamp(e, 2)
    e.nop(16)
    e(f"v_mov_b32 {T0}, v{V_L}")
    e(f"v_mov_b32 {T1}, v{V_L}")
    e("s_nop 1")
    e(f"v_permlane32_swap_b32 {T0}, {T1}")
    e("s_nop 1")
    e(f"v_add_f32 v{V_L}, {T0}, {T1}")
    e("s_barrier")
    e(f"s_mul_i32 s{S_T0}, s{S_QB}, 17408")
    e(f"v_lshlrev_b32 {T0}, 4, {L}")
    e(f"v_add_u32 {T0}, s{S_T0}, {T0}")
    e(f"v_lshlrev_b32 {T1}, 3, {L}")
    e(f"v_add_u32 {T1}, s{S_T0}, {T1}")
    e(f"s_cmp_eq_u32 s{S_KH}, 0")
    e("s_cbranch_scc1 attn_merge0")
    for i in range(16):
        e(f"ds_write_b128 {T0}, {vr(V_O+4*i,4)} offset:{i*1024}")
    e(f"ds_write_b64 {T1}, {vr(V_M,2)} offset:16384")
    e("s_waitcnt lgkmcnt(0)")
    e("s_barrier")
    e("s_endpgm")
    e.label("attn_merge0")
    e("s_barrier")
    e(f"ds_read_b64 {vr(V_P,2)}, {T1} offset:16384")
    for i in range(8):
        e(f"ds_read_b128 {vr(V_Q+4*i,4)}, {T0} offset:{i*1024}")
    e("s_waitcnt lgkmcnt(8)")
    e(f"v_max_f32 {T2}, v{V_M}, v{V_P}")
    e(f"v_sub_f32 {T3}, v{V_M}, {T2}")
    e(f"v_mul_f32 {T3}, s{S_C}, {T3}")
    e(f"v_exp_f32 v{V_AL2}, {T3}")
    e(f"v_sub_f32 {T3}, v{V_P}, {T2}")
    e(f"v_mul_f32 {T3}, s{S_C}, {T3}")
    e(f"v_exp_f32 v{V_P+2}, {T3}")
    e("s_nop 0")
    e(f"v_mul_f32 v{V_L}, v{V_L}, v{V_AL2}")
    e(f"v_fma_f32 v{V_L}, v{V_P+1}, v{V_P+2}, v{V_L}")
    e(f"v_rcp_f32 {T3}, v{V_L}")
    e("s_nop 0")
    e(f"v_mul_f32 v{V_AL2}, v{V_AL2}, {T3}")
    e(f"v_mul_f32 v{V_P+2}, v{V_P+2}, {T3}")
    e(f"v_mov_b32 v{V_AL2+1}, v{V_AL2}")
    e(f"v_mov_b32 v{V_P+3}, v{V_P+2}")
    e(f"s_movk_i32 s{S_T0}, 4096")
    e(f"s_mov_b32 s{S_T1}, 0")
    for half in range(2):
        if half == 1:
            for i in range(8):
                e(f"ds_read_b128 {vr(V_Q+4*i,4)}, {T0} offset:{(8+i)*1024}")
        e("s_waitcnt lgkmcnt(0)")
        for i in range(0, 32, 2):
            o = V_O + 32*half + i
            e(f"v_pk_mul_f32 {vr(o,2)}, {vr(o,2)}, {vr(V_AL2,2)}")
            e(f"v_pk_fma_f32 {vr(o,2)}, {vr(V_Q+i,2)}, {vr(V_P+2,2)}, {vr(o,2)}")
        for d2 in range(2):
            db = 2*half + d2
            for pr in range(2):
                src = V_O + 16*db + 8*pr
                q = V_F + 4*((2*db+pr) % 6)
                for j in range(4):
                    e(f"v_cvt_pk_bf16_f32 v{q+j}, v{src+2*j}, v{src+2*j+1}")
                e("s_nop 1")
                e(f"v_permlane32_swap_b32 v{q}, v{q+2}")
                e(f"v_permlane32_swap_b32 v{q+1}, v{q+3}")
                e("s_nop 1")
                e(f"buffer_store_dwordx4 {vr(q,4)}, v{V_OO}, {sr(SRD_O,4)}, s{S_T0 if db >= 2 else S_T1} offen offset:{((2*db+pr)%4)*1024}")
    if STAMP:
        e("s_waitcnt vmcnt(0)")
    stamp(e, 3)
    stamp_flush(e, 8, S_WAVE, "c")
    e("s_endpgm")

    e.label("attn_loader")
    SRD_V = 24
    S_J4K = 54
    e(f"s_sub_u32 s{S_T1}, s{S_WAVE}, 8")
    e(f"s_lshl_b32 s{S_J4K}, s{S_T1}, 12")
    e(f"s_lshl_b32 s{S_WQR}, s{S_T1}, 15")
    e(f"s_lshl_b32 s{S_WQL}, s{S_T1}, 11")
    e(f"s_add_u32 s{S_WQL}, s{S_WQL}, {WQ0}")
    e(f"s_lshl_b32 s{S_T0}, s{S_B}, 4")
    e(f"s_add_u32 s{S_T0}, s{S_T0}, s{S_HKV}")
    e(f"s_lshl_b32 s{S_T0}, s{S_T0}, 18")
    e(f"s_add_u32 s{SRD_K}, s{S_K}, s{S_T0}")
    e(f"s_addc_u32 s{SRD_K+1}, s{S_K+1}, 0")
    e(f"s_mov_b32 s{SRD_K+2}, 0x40000")
    e(f"s_mov_b32 s{SRD_K+3}, 0x20000")
    e(f"s_add_u32 s{SRD_V}, s{S_V}, s{S_T0}")
    e(f"s_addc_u32 s{SRD_V+1}, s{S_V+1}, 0")
    e(f"s_mov_b32 s{SRD_V+2}, 0x40000")
    e(f"s_mov_b32 s{SRD_V+3}, 0x20000")
    for c in range(WAH):
        wq_dma(None, c, 2)
    e(f"v_lshrrev_b32 {T0}, 4, {L}")
    e(f"v_and_b32 {T1}, 15, {L}")
    e(f"v_lshlrev_b32 {T2}, 8, {T0}")
    e(f"v_lshlrev_b32 {T3}, 2, {T0}")
    e(f"v_xor_b32 {T3}, {T1}, {T3}")
    e(f"v_lshl_add_u32 v{V_D+4}, {T3}, 4, {T2}")
    e(f"v_xor_b32 {T1}, {T1}, {T0}")
    for i in range(4):
        e(f"v_xor_b32 {T3}, {4*i}, {T1}")
        e(f"v_lshl_add_u32 v{V_D+i}, {T3}, 4, {T2}")
    def tile_issue():
        e(f"s_add_u32 s{S_SOFF}, s{S_ROT}, s{S_T2}")
        e(f"s_and_b32 s{S_SOFF}, s{S_SOFF}, 15")
        e(f"s_lshl_b32 s{S_SOFF}, s{S_SOFF}, 14")
        e(f"s_add_u32 s{S_SOFF}, s{S_SOFF}, s{S_J4K}")
        e(f"s_and_b32 s{S_STG}, s{S_T2}, 3")
        e(f"s_lshl_b32 s{S_STG}, s{S_STG}, 15")
        e(f"s_add_u32 m0, s{S_STG}, s{S_J4K}")
        e(f"s_add_u32 s{S_STG}, m0, 16384")
        for i in range(4):
            e(f"buffer_load_dwordx4 v{V_D+i}, {sr(SRD_K,4)}, s{S_SOFF} offen offset:{i*1024}{NT_KV} lds")
        e(f"s_mov_b32 m0, s{S_STG}")
        e("s_nop 0")
        for i in range(4):
            e(f"buffer_load_dwordx4 v{V_D+4}, {sr(SRD_V,4)}, s{S_SOFF} offen offset:{i*1024}{NT_KV} lds")
    e(f"s_mov_b32 s{S_T2}, 0")
    tile_issue()
    for c in range(NCH):
        n_after = min(NCH - 1, c + WAH - 1) - c
        e(f"s_waitcnt vmcnt({2*n_after + (8 if c < WAH else 0)})")
        e("s_barrier")
        if c + WAH < NCH:
            wq_dma(None, c + WAH, 2)
    e("s_barrier")
    e(f"s_mov_b32 s{S_T2}, 1")
    e.label("attn_ldpro")
    tile_issue()
    e(f"s_add_u32 s{S_T2}, s{S_T2}, 1")
    e(f"s_cmp_lt_u32 s{S_T2}, 3")
    e("s_cbranch_scc1 attn_ldpro")
    e(f"s_mov_b32 s{S_CNT}, 0")
    e.label("attn_ldloop")
    e(f"s_cmp_lt_u32 s{S_CNT}, 14")
    e("s_cbranch_scc1 attn_ldw32")
    e(f"s_cmp_eq_u32 s{S_CNT}, 14")
    e("s_cbranch_scc1 attn_ldw16")
    e("s_waitcnt vmcnt(0)")
    e("s_branch attn_ldw")
    e.label("attn_ldw16")
    e("s_waitcnt vmcnt(8)")
    e("s_branch attn_ldw")
    e.label("attn_ldw32")
    e("s_waitcnt vmcnt(16)")
    e.label("attn_ldw")
    e("s_barrier")
    e(f"s_add_u32 s{S_T2}, s{S_CNT}, 3")
    e(f"s_cmp_ge_u32 s{S_T2}, 16")
    e("s_cbranch_scc1 attn_ldskip")
    tile_issue()
    e.label("attn_ldskip")
    e(f"s_add_u32 s{S_CNT}, s{S_CNT}, 1")
    e(f"s_cmp_lt_u32 s{S_CNT}, 16")
    e("s_cbranch_scc1 attn_ldloop")
    e("s_barrier")
    e("s_barrier")
    e.label("attn_end")
    e("s_endpgm")

def gen_oproj(e):
    name = "oproj_kernel"
    e.raw(f".globl {name}")
    e.raw(".p2align 8")
    e.raw(f".type {name},@function")
    e.label(name)
    SRD_O, SRD_W, SRD_OUT = 20, 24, 28
    S_WAVE, S_MB, S_NB, S_T0, S_T1, S_SOFF, S_KO, S_CNT, S_OOFF = 40, 41, 42, 43, 44, 46, 47, 49, 50
    V_LANE = 1
    V_T0, V_T1, V_T2, V_T3 = 2, 3, 4, 5
    V_WD = 6
    V_WA = 8
    V_OA = 10
    V_OUT = 13
    V_AF = 16
    V_ACC = 64
    V_BF = 128
    NS = 4
    AHEAD = 3
    NCH = 16
    L = f"v{V_LANE}"
    T0, T1, T2, T3 = (f"v{x}" for x in (V_T0, V_T1, V_T2, V_T3))
    e("s_cmp_ge_u32 s2, 144")
    e("s_cbranch_scc1 oproj_end")
    e("s_load_dwordx4 s[4:7], s[0:1], 32")
    e("s_load_dwordx2 s[16:17], s[0:1], 56")
    stamp(e, 0)
    e(f"v_and_b32 {L}, 63, v0")
    e(f"v_lshrrev_b32 v2, 6, v0")
    e("s_nop 0")
    e(f"v_readfirstlane_b32 s{S_WAVE}, v2")
    e(f"s_and_b32 s{S_MB}, s2, 15")
    e(f"s_lshr_b32 s{S_NB}, s2, 4")
    e("s_waitcnt lgkmcnt(0)")
    e(f"s_mov_b32 s{SRD_O}, s16")
    e(f"s_mov_b32 s{SRD_O+1}, s17")
    e(f"s_mov_b32 s{SRD_O+2}, 0x800000")
    e(f"s_mov_b32 s{SRD_O+3}, 0x20000")
    e(f"s_mov_b32 s{SRD_W}, s4")
    e(f"s_mov_b32 s{SRD_W+1}, s5")
    e(f"s_mov_b32 s{SRD_W+2}, {4096*1152}")
    e(f"s_mov_b32 s{SRD_W+3}, 0x20000")
    e(f"s_mov_b32 s{SRD_OUT}, s6")
    e(f"s_mov_b32 s{SRD_OUT+1}, s7")
    e(f"s_mov_b32 s{SRD_OUT+2}, {1024*1152}")
    e(f"s_mov_b32 s{SRD_OUT+3}, 0x20000")
    e(f"v_lshrrev_b32 {T0}, 3, {L}")
    e(f"s_movk_i32 s{S_T0}, 1152")
    e(f"v_mul_lo_u32 {T0}, {T0}, s{S_T0}")
    e(f"v_and_b32 {T1}, 7, {L}")
    e(f"v_bfe_u32 {T2}, {L}, 4, 1")
    e(f"v_lshlrev_b32 {T2}, 2, {T2}")
    e(f"v_xor_b32 {T1}, {T1}, {T2}")
    e(f"v_lshl_add_u32 v{V_WD}, {T1}, 4, {T0}")
    e(f"s_mul_i32 s{S_KO}, s{S_WAVE}, {512*1152}")
    e(f"s_lshl_b32 s{S_T0}, s{S_NB}, 7")
    e(f"s_add_u32 s{S_KO}, s{S_KO}, s{S_T0}")
    e(f"s_lshl_b32 s{S_T0}, s{S_MB}, 19")
    e(f"s_lshl_b32 s{S_T1}, s{S_WAVE}, 15")
    e(f"s_add_u32 s{S_T0}, s{S_T0}, s{S_T1}")
    e(f"v_lshlrev_b32 {T0}, 4, {L}")
    e(f"v_add_u32 v{V_OA}, s{S_T0}, {T0}")
    e(f"v_add_u32 v{V_OA+1}, 0x40000, v{V_OA}")
    S_M0W = 48
    e(f"s_lshl_b32 s{S_M0W}, s{S_WAVE}, 14")
    e(f"s_mov_b32 s{S_SOFF}, s{S_KO}")
    e(f"s_mov_b32 s{S_OOFF}, 0")
    def issue(slot):
        for j in range(4):
            e(f"s_add_u32 m0, s{S_M0W}, {slot*4096 + j*1024}")
            e("s_nop 0")
            e(f"buffer_load_dwordx4 v{V_WD}, {sr(SRD_W,4)}, s{S_SOFF} offen{NT_W} lds")
            e(f"s_add_u32 s{S_SOFF}, s{S_SOFF}, {8*1152}")
        for mb2 in range(2):
            for st in range(2):
                f = V_BF + 16*slot + 8*mb2 + 4*st
                e(f"buffer_load_dwordx4 {vr(f,4)}, v{V_OA+mb2}, {sr(SRD_O,4)}, s{S_OOFF} offen offset:{st*1024}{NT_W}")
        e(f"s_add_u32 s{S_OOFF}, s{S_OOFF}, 2048")
    for c in range(AHEAD):
        issue(c)
    e(f"v_lshrrev_b32 {T0}, 5, {L}")
    e(f"v_bfe_u32 {T1}, {L}, 2, 2")
    e(f"v_lshl_add_u32 {T2}, {T0}, 3, {T1}")
    e(f"v_lshlrev_b32 {T2}, 7, {T2}")
    e(f"v_bfe_u32 {T0}, {L}, 4, 1")
    e(f"v_bfe_u32 {T3}, {L}, 1, 1")
    e(f"v_lshl_add_u32 {T0}, {T0}, 1, {T3}")
    e(f"v_lshl_add_u32 {T2}, {T0}, 4, {T2}")
    e(f"v_and_b32 {T3}, 1, {L}")
    e(f"v_lshl_add_u32 {T2}, {T3}, 3, {T2}")
    e(f"v_add_u32 {T2}, s{S_M0W}, {T2}")
    e(f"v_bfe_u32 {T1}, {L}, 3, 1")
    for nb2 in range(2):
        e(f"v_xor_b32 {T3}, {nb2}, {T1}")
        e(f"v_lshl_add_u32 v{V_WA+nb2}, {T3}, 6, {T2}")
    for i in range(64):
        e(f"v_mov_b32 v{V_ACC+i}, 0")
    def rda(slot, par):
        ab = V_AF + 16*par
        for nb2 in range(2):
            for st in range(2):
                for u in range(2):
                    e(f"ds_read_b64_tr_b16 {vr(ab+8*nb2+4*st+2*u,2)}, v{V_WA+nb2} offset:{slot*4096 + (st*16+4*u)*128}")
    stamp(e, 1)
    e(f"s_waitcnt vmcnt({8*(AHEAD-1)})")
    rda(0, 0)
    def body(c, cmod):
        slot = cmod % NS
        par = cmod % 2
        e("s_waitcnt lgkmcnt(0)")
        if c + AHEAD < NCH:
            issue((slot + AHEAD) % NS)
        if c + 1 < NCH:
            n_after = min(NCH - 1, c + AHEAD) - (c + 1)
            e(f"s_waitcnt vmcnt({8*n_after})")
            rda((slot + 1) % NS, 1 - par)
        ab = V_AF + 16*par
        for st in range(2):
            for nb2 in range(2):
                for mb2 in range(2):
                    acc = vr(V_ACC + 32*nb2 + 16*mb2, 16)
                    e(f"v_mfma_f32_32x32x16_bf16 {acc}, {vr(ab+8*nb2+4*st,4)}, {vr(V_BF+16*slot+8*mb2+4*st,4)}, {acc}")
    e(f"s_mov_b32 s{S_CNT}, 0")
    e.label("oproj_loop")
    for cm in range(4):
        body(cm, cm)
    e(f"s_add_u32 s{S_CNT}, s{S_CNT}, 1")
    e(f"s_cmp_lt_u32 s{S_CNT}, 3")
    e("s_cbranch_scc1 oproj_loop")
    stamp(e, 2)
    for c in range(12, 16):
        body(c, c)
    stamp(e, 3)
    e.nop(16)
    e("s_barrier")
    e(f"v_lshlrev_b32 {T0}, 4, {L}")
    e(f"v_add_u32 {T1}, s{S_M0W}, {T0}")
    for i in range(16):
        e(f"ds_write_b128 {T1}, {vr(V_ACC+4*i,4)} offset:{i*1024}")
    e("s_waitcnt lgkmcnt(0)")
    e("s_barrier")
    e(f"s_lshl_b32 s{S_T0}, s{S_WAVE}, 11")
    e(f"v_add_u32 {T1}, s{S_T0}, {T0}")
    e(f"v_add_u32 {T2}, 0x10000, {T1}")
    for w in range(8):
        for i in range(2):
            e(f"ds_read_b128 {vr(V_BF+8*w+4*i,4)}, {T1 if w < 4 else T2} offset:{(w%4)*16384 + i*1024}")
    e("s_waitcnt lgkmcnt(0)")
    for stp in (4, 2, 1):
        for w in range(stp):
            for i in range(0, 8, 2):
                e(f"v_pk_add_f32 {vr(V_BF+8*w+i,2)}, {vr(V_BF+8*w+i,2)}, {vr(V_BF+8*(w+stp)+i,2)}")
    e(f"s_lshl_b32 s{S_T0}, s{S_MB}, 6")
    e(f"s_bfe_u32 s{S_T1}, s{S_WAVE}, 0x10001")
    e(f"s_lshl_b32 s{S_T1}, s{S_T1}, 5")
    e(f"s_add_u32 s{S_T0}, s{S_T0}, s{S_T1}")
    e(f"v_and_b32 {T0}, 31, {L}")
    e(f"v_add_u32 {T0}, s{S_T0}, {T0}")
    e(f"s_movk_i32 s{S_T1}, 1152")
    e(f"v_mul_lo_u32 {T0}, {T0}, s{S_T1}")
    e(f"s_lshl_b32 s{S_T0}, s{S_NB}, 7")
    e(f"s_lshr_b32 s{S_T1}, s{S_WAVE}, 2")
    e(f"s_lshl_b32 s{S_T1}, s{S_T1}, 6")
    e(f"s_add_u32 s{S_T0}, s{S_T0}, s{S_T1}")
    e(f"s_and_b32 s{S_T1}, s{S_WAVE}, 1")
    e(f"s_lshl_b32 s{S_T1}, s{S_T1}, 5")
    e(f"s_add_u32 s{S_T0}, s{S_T0}, s{S_T1}")
    e(f"v_add_u32 {T0}, s{S_T0}, {T0}")
    e(f"v_lshrrev_b32 {T1}, 5, {L}")
    e(f"v_lshl_add_u32 v{V_OUT}, {T1}, 4, {T0}")
    q = V_AF
    for j in range(4):
        e(f"v_cvt_pk_bf16_f32 v{q+j}, v{V_BF+2*j}, v{V_BF+2*j+1}")
    e("s_nop 1")
    e(f"v_permlane32_swap_b32 v{q}, v{q+2}")
    e(f"v_permlane32_swap_b32 v{q+1}, v{q+3}")
    e("s_nop 1")
    e(f"buffer_store_dwordx4 {vr(q,4)}, v{V_OUT}, {sr(SRD_OUT,4)}, 0 offen")
    if STAMP:
        e("s_waitcnt vmcnt(0)")
    stamp(e, 4)
    stamp_flush(e, 5, S_WAVE, "o")
    e.label("oproj_end")
    e("s_endpgm")

def desc(name, nfv, acc, sgpr=102):
    return f""".amdhsa_kernel {name}
  .amdhsa_next_free_vgpr {nfv}
  .amdhsa_next_free_sgpr {sgpr}
  .amdhsa_accum_offset {acc}
  .amdhsa_group_segment_fixed_size 0
  .amdhsa_kernarg_size 64
  .amdhsa_user_sgpr_count 2
  .amdhsa_user_sgpr_kernarg_segment_ptr 1
  .amdhsa_system_sgpr_workgroup_id_x 1
.end_amdhsa_kernel
"""

def main():
    hdr = open("standalone__gqa_block_cached__near_ridge.s.ref").read().split("; Override launch")[0]
    e = Em()
    gen_attn(e)
    gen_oproj(e)
    out = hdr
    out += "; @launch kernel=attn_kernel grid=(256,1,1) block=(768,1,1) lds=163840\n"
    out += "; @launch kernel=oproj_kernel grid=(144,1,1) block=(512,1,1) lds=131072\n"
    out += '.amdgcn_target "amdgcn-amd-amdhsa--gfx950"\n.text\n'
    out += e.text()
    out += '.section .rodata,"a"\n.p2align 6\n'
    out += desc("attn_kernel", 168, 168)
    out += ".p2align 6\n"
    out += desc("oproj_kernel", 192, 192)
    path = sys.argv[1] if len(sys.argv) > 1 else "standalone__gqa_block_cached__near_ridge.s"
    open(path, "w").write(out)

main()
```

```python
import sys, struct

class Em:
    def __init__(self):
        self.lines = []
    def __call__(self, s):
        self.lines.append("    " + s)
    def label(self, s):
        self.lines.append(s + ":")
    def raw(self, s):
        self.lines.append(s)
    def nop(self, n):
        while n > 0:
            k = min(n, 16)
            self(f"s_nop {k-1}")
            n -= k
    def text(self):
        return "\n".join(self.lines) + "\n"

def vr(b, n=1):
    return f"v{b}" if n == 1 else f"v[{b}:{b+n-1}]"
def sr(b, n=1):
    return f"s{b}" if n == 1 else f"s[{b}:{b+n-1}]"
def f32hex(x):
    return "0x%08x" % struct.unpack("<I", struct.pack("<f", x))[0]

LOG2E = 1.4426950408889634
SCALE = 128 ** -0.5
OPT = sys.argv[2] if len(sys.argv) > 2 else ""
STAMP = "stamp" in OPT
NT_KV = " nt"
NT_W = " nt" if "ntw" in OPT else ""

def stamp(e, idx):
    if not STAMP: return
    e("s_memtime s[60:61]")
    e("s_waitcnt lgkmcnt(0)")
    e(f"s_mov_b32 s{62+idx}, s60")

def stamp_flush(e, n, wavereg, tag):
    if not STAMP: return
    e("s_load_dwordx2 s[56:57], s[0:1], 48")
    e("s_waitcnt lgkmcnt(0)")
    e("s_mov_b32 s52, s56")
    e("s_mov_b32 s53, s57")
    e("s_mov_b32 s54, 256")
    e("s_mov_b32 s55, 0x20000")
    e("s_cmp_lg_u32 s2, 5")
    e(f"s_cbranch_scc1 stamp_skip_{tag}")
    e(f"s_lshl_b32 s58, s{wavereg}, 5")
    for i in range(n):
        e(f"s_sub_u32 s59, s{62+i}, s62")
        e("v_mov_b32 v2, s59")
        e(f"v_mov_b32 v3, s58")
        e(f"buffer_store_dword v2, v3, s[52:55], 0 offen offset:{4*i}")
    e.label(f"stamp_skip_{tag}")

def rot18(e, dst, base_sgpr, add_const, rot_sgpr, tmp):
    if base_sgpr is None:
        e(f"s_add_u32 s{dst}, s{rot_sgpr}, {add_const}")
    else:
        e(f"s_add_u32 s{dst}, s{base_sgpr}, {add_const}")
        e(f"s_add_u32 s{dst}, s{dst}, s{rot_sgpr}")
    e(f"s_sub_u32 s{tmp}, s{dst}, 18")
    e(f"s_cmp_ge_u32 s{dst}, 18")
    e(f"s_cselect_b32 s{dst}, s{tmp}, s{dst}")

def gen_attn(e):
    name = "attn_kernel"
    e.raw(f".globl {name}")
    e.raw(".p2align 8")
    e.raw(f".type {name},@function")
    e.label(name)
    S_X, S_K, S_V, S_WQ, S_WS = 4, 6, 8, 10, 16
    SRD_K, SRD_X, SRD_WQ, SRD_O = 20, 28, 32, 36
    S_WAVE, S_HKV, S_B = 40, 41, 42
    S_T0, S_T1, S_T2, S_SOFF, S_C = 43, 44, 45, 46, 47
    S_CNT, S_STG, S_ROT, S_XOFF, S_QB, S_KH = 48, 49, 50, 51, 72, 73
    V_LANE = 1
    V_T0, V_T1, V_T2, V_T3 = 2, 3, 4, 5
    V_KW = 6
    V_VW = 14
    V_M, V_L = 18, 19
    V_AL2 = 20
    V_OO = 22
    V_XO = 23
    V_WA = 6
    V_D = 6
    V_O = 24
    V_S = 88
    V_Q = 104
    V_F = 136
    V_P = 160
    XSL = [V_O+32, V_O+40, V_O+48, V_O+56, V_S, V_S+8, V_Q, V_Q+8]
    STAGE = 32768
    WQ0 = 32768
    WNS = 8
    WAH = 7
    QX0 = 131072
    NCH = 18

    e("s_cmp_ge_u32 s2, 256")
    e("s_cbranch_scc1 attn_end")
    e("s_load_dwordx4 s[4:7], s[0:1], 0")
    e("s_load_dwordx4 s[8:11], s[0:1], 16")
    e("s_load_dwordx2 s[16:17], s[0:1], 56")
    stamp(e, 0)
    e(f"v_and_b32 v{V_LANE}, 63, v0")
    e(f"v_lshrrev_b32 v2, 6, v0")
    e("s_nop 0")
    e(f"v_readfirstlane_b32 s{S_WAVE}, v2")
    e(f"s_and_b32 s{S_HKV}, s2, 7")
    e(f"s_lshl_b32 s{S_HKV}, s{S_HKV}, 1")
    e(f"s_bfe_u32 s{S_B}, s2, 0x10003")
    e(f"s_or_b32 s{S_HKV}, s{S_HKV}, s{S_B}")
    e(f"s_lshr_b32 s{S_B}, s2, 4")
    e(f"s_add_u32 s{S_ROT}, s{S_HKV}, s{S_B}")
    L = f"v{V_LANE}"
    T0, T1, T2, T3 = (f"v{x}" for x in (V_T0, V_T1, V_T2, V_T3))
    e("s_waitcnt lgkmcnt(0)")
    e(f"s_lshl_b32 s{S_T0}, s{S_HKV}, 9")
    e(f"s_add_u32 s{SRD_WQ}, s{S_WQ}, s{S_T0}")
    e(f"s_addc_u32 s{SRD_WQ+1}, s{S_WQ+1}, 0")
    e(f"s_sub_u32 s{SRD_WQ+2}, {576*8192}, s{S_T0}")
    e(f"s_mov_b32 s{SRD_WQ+3}, 0x20000")
    V_WD = 166
    e(f"v_lshrrev_b32 {T0}, 5, {L}")
    e(f"v_and_b32 {T1}, 31, {L}")
    e(f"v_lshlrev_b32 {T2}, 13, {T0}")
    for odd in range(2):
        e(f"v_add_u32 {T3}, {2*odd}, {T0}")
        e(f"v_lshlrev_b32 {T3}, 2, {T3}")
        e(f"v_xor_b32 {T3}, {T3}, {T1}")
        e(f"v_lshl_add_u32 v{V_WD+odd}, {T3}, 4, {T2}")
    S_WQR, S_WQL = 52, 53
    def wq_dma(chunk_sgpr, chunk_const, n_instr):
        rot18(e, S_SOFF, chunk_sgpr, chunk_const, S_B, S_T0)
        e(f"s_lshl_b32 s{S_SOFF}, s{S_SOFF}, 18")
        e(f"s_add_u32 s{S_SOFF}, s{S_SOFF}, s{S_WQR}")
        if chunk_sgpr is None:
            e(f"s_add_u32 m0, s{S_WQL}, {(chunk_const % WNS)*16384}")
        else:
            e(f"s_add_u32 s{S_STG}, s{chunk_sgpr}, {chunk_const}")
            e(f"s_and_b32 s{S_STG}, s{S_STG}, 7")
            e(f"s_lshl_b32 s{S_STG}, s{S_STG}, 14")
            e(f"s_add_u32 m0, s{S_STG}, s{S_WQL}")
        e("s_nop 0")
        e(f"buffer_load_dwordx4 v{V_WD}, {sr(SRD_WQ,4)}, s{S_SOFF} offen lds")
        if n_instr == 2:
            e(f"s_add_u32 s{S_SOFF}, s{S_SOFF}, {16384-1024}")
            e(f"buffer_load_dwordx4 v{V_WD+1}, {sr(SRD_WQ,4)}, s{S_SOFF} offen offset:1024 lds")
    e(f"s_cmp_ge_u32 s{S_WAVE}, 8")
    e("s_cbranch_scc1 attn_loader")
    e(f"s_add_u32 s{S_T0}, s{S_WAVE}, 8")
    e(f"s_lshl_b32 s{S_WQR}, s{S_T0}, 14")
    e(f"s_lshl_b32 s{S_WQL}, s{S_T0}, 10")
    e(f"s_add_u32 s{S_WQL}, s{S_WQL}, {WQ0}")
    e(f"s_and_b32 s{S_T0}, s{S_WAVE}, 1")
    e(f"s_cmp_eq_u32 s{S_T0}, 0")
    e("s_cbranch_scc1 attn_weven")
    e(f"v_mov_b32 v{V_WD}, v{V_WD+1}")
    e.label("attn_weven")

    e(f"s_and_b32 s{S_QB}, s{S_WAVE}, 3")
    e(f"s_lshr_b32 s{S_KH}, s{S_WAVE}, 2")
    e(f"s_mul_i32 s{S_T0}, s{S_B}, 73728")
    e(f"s_add_u32 s{SRD_X}, s{S_X}, s{S_T0}")
    e(f"s_addc_u32 s{SRD_X+1}, s{S_X+1}, 0")
    e(f"s_mov_b32 s{SRD_X+2}, 73728")
    e(f"s_mov_b32 s{SRD_X+3}, 0x20000")
    e(f"s_mov_b32 s{SRD_O}, s{S_WS}")
    e(f"s_mov_b32 s{SRD_O+1}, s{S_WS+1}")
    e(f"s_mov_b32 s{SRD_O+2}, 0x800000")
    e(f"s_mov_b32 s{SRD_O+3}, 0x20000")
    e(f"s_and_b32 s{S_T0}, s{S_QB}, 1")
    e(f"s_lshl_b32 s{S_T0}, s{S_T0}, 5")
    e(f"v_and_b32 {T0}, 31, {L}")
    e(f"v_add_u32 {T0}, s{S_T0}, {T0}")
    e(f"s_movk_i32 s{S_T1}, 1152")
    e(f"v_mul_lo_u32 {T0}, {T0}, s{S_T1}")
    e(f"v_lshrrev_b32 {T1}, 5, {L}")
    e(f"v_lshl_add_u32 v{V_XO}, {T1}, 4, {T0}")
    for c in range(WAH):
        rot18(e, S_XOFF, None, c, S_B, S_T0)
        e(f"s_lshl_b32 s{S_XOFF}, s{S_XOFF}, 6")
        for st in range(2):
            e(f"buffer_load_dwordx4 {vr(XSL[c]+4*st,4)}, v{V_XO}, {sr(SRD_X,4)}, s{S_XOFF} offen offset:{st*32}")
        wq_dma(None, c, 1)
    e(f"v_lshrrev_b32 {T0}, 5, {L}")
    e(f"v_bfe_u32 {T1}, {L}, 2, 2")
    e(f"v_lshl_add_u32 {T2}, {T0}, 3, {T1}")
    e(f"v_lshlrev_b32 {T2}, 9, {T2}")
    e(f"v_bfe_u32 {T0}, {L}, 4, 1")
    e(f"v_bfe_u32 {T3}, {L}, 1, 1")
    e(f"v_lshl_add_u32 {T0}, {T0}, 1, {T3}")
    e(f"v_lshl_add_u32 {T2}, {T0}, 4, {T2}")
    e(f"v_and_b32 {T3}, 1, {L}")
    e(f"v_lshl_add_u32 {T2}, {T3}, 3, {T2}")
    e(f"v_add_u32 {T2}, {WQ0}, {T2}")
    e(f"s_lshr_b32 s{S_T0}, s{S_QB}, 1")
    e(f"s_lshl_b32 s{S_T0}, s{S_T0}, 2")
    e(f"s_lshl_b32 s{S_T1}, s{S_KH}, 1")
    e(f"s_add_u32 s{S_T0}, s{S_T0}, s{S_T1}")
    for d2 in range(2):
        e(f"s_add_u32 s{S_T1}, s{S_T0}, {d2}")
        e(f"v_xor_b32 {T3}, s{S_T1}, {T1}")
        e(f"v_lshl_add_u32 v{V_WA+d2}, {T3}, 6, {T2}")
    e(f"s_and_b32 s{S_T0}, s{S_QB}, 1")
    e(f"s_lshl_b32 s{S_T1}, s{S_B}, 1")
    e(f"s_add_u32 s{S_T0}, s{S_T0}, s{S_T1}")
    e(f"s_lshl_b32 s{S_T0}, s{S_T0}, 18")
    e(f"s_lshl_b32 s{S_T1}, s{S_HKV}, 1")
    e(f"s_lshr_b32 s{S_T2}, s{S_QB}, 1")
    e(f"s_add_u32 s{S_T1}, s{S_T1}, s{S_T2}")
    e(f"s_lshl_b32 s{S_T1}, s{S_T1}, 13")
    e(f"s_add_u32 s{S_T0}, s{S_T0}, s{S_T1}")
    e(f"v_lshlrev_b32 {T0}, 4, {L}")
    e(f"v_add_u32 v{V_OO}, s{S_T0}, {T0}")
    for i in range(32):
        e(f"v_mov_b32 v{V_O+i}, 0")

    def qchunk(slot, issue_next, wait_n):
        e(f"s_waitcnt vmcnt({wait_n})")
        e("s_barrier")
        seq = [(ks, d2) for ks in range(2) for d2 in range(2)]
        hi = slot >= 4
        for idx, (ks, d2) in enumerate(seq):
            f = V_F + 4*idx
            for u in range(2):
                e(f"ds_read_b64_tr_b16 {vr(f+2*u,2)}, v{V_WA+d2+(2 if hi else 0)} offset:{(slot%4)*16384 + (ks*16+4*u)*512}")
        if issue_next:
            ns = (slot + WAH) % WNS
            rot18(e, S_XOFF, S_CNT, slot+WAH, S_B, S_T0)
            e(f"s_lshl_b32 s{S_XOFF}, s{S_XOFF}, 6")
            for st in range(2):
                e(f"buffer_load_dwordx4 {vr(XSL[ns]+4*st,4)}, v{V_XO}, {sr(SRD_X,4)}, s{S_XOFF} offen offset:{st*32}")
            wq_dma(S_CNT, slot+WAH, 1)
        for idx, (ks, d2) in enumerate(seq):
            f = V_F + 4*idx
            e(f"s_waitcnt lgkmcnt({2*(3-idx)})")
            acc = vr(V_O + 16*d2, 16)
            e(f"v_mfma_f32_32x32x16_bf16 {acc}, {vr(f,4)}, {vr(XSL[slot]+4*ks,4)}, {acc}")
    for d2 in range(2):
        e(f"v_add_u32 v{V_WA+2+d2}, 0x10000, v{V_WA+d2}")
    e(f"s_mov_b32 s{S_CNT}, 0")
    for c in range(NCH):
        if c == 8:
            e(f"s_mov_b32 s{S_CNT}, 8")
        if c == 16:
            e(f"s_mov_b32 s{S_CNT}, 16")
        n_after = min(NCH - 1, c + WAH - 1) - c
        if c == 0: stamp(e, 4)
        qchunk(c % WNS, c + WAH < NCH, 3*n_after)
        if c in (0, 1, 9): stamp(e, {0:5, 1:6, 9:7}[c])
    stamp(e, 1)
    e.nop(16)
    e(f"s_lshl_b32 s{S_T0}, s{S_QB}, 13")
    e(f"s_add_u32 s{S_T0}, s{S_T0}, {QX0}")
    e(f"v_lshlrev_b32 {T0}, 4, {L}")
    e(f"v_add_u32 {T0}, s{S_T0}, {T0}")
    e(f"s_lshl_b32 s{S_T1}, s{S_KH}, 12")
    e(f"v_add_u32 {T1}, s{S_T1}, {T0}")
    for kl in range(4):
        d2, hf = kl // 2, kl % 2
        src = V_O + 16*d2 + 8*hf
        q = V_F + 4*kl
        for j in range(4):
            e(f"v_cvt_pk_bf16_f32 v{q+j}, v{src+2*j}, v{src+2*j+1}")
        e("s_nop 1")
        e(f"v_permlane32_swap_b32 v{q}, v{q+2}")
        e(f"v_permlane32_swap_b32 v{q+1}, v{q+3}")
        e("s_nop 1")
        e(f"ds_write_b128 {T1}, {vr(q,4)} offset:{kl*1024}")
    e("s_waitcnt lgkmcnt(0)")
    e("s_barrier")
    for ks in range(8):
        e(f"ds_read_b128 {vr(V_Q+4*ks,4)}, {T0} offset:{ks*1024}")
    e(f"v_lshrrev_b32 {T0}, 5, {L}")
    e(f"v_and_b32 {T1}, 15, {L}")
    e(f"v_xor_b32 {T0}, {T0}, {T1}")
    e(f"v_and_b32 {T1}, 31, {L}")
    e(f"v_lshlrev_b32 {T1}, 8, {T1}")
    e(f"s_lshl_b32 s{S_T0}, s{S_KH}, 13")
    e(f"v_add_u32 {T1}, s{S_T0}, {T1}")
    for ks in range(8):
        e(f"v_xor_b32 {T2}, {2*ks}, {T0}")
        e(f"v_lshl_add_u32 v{V_KW+ks}, {T2}, 4, {T1}")
    e(f"v_lshrrev_b32 {T0}, 5, {L}")
    e(f"v_bfe_u32 {T1}, {L}, 2, 2")
    e(f"v_lshl_add_u32 {T2}, {T0}, 2, {T1}")
    e(f"v_lshlrev_b32 {T2}, 8, {T2}")
    e(f"s_add_u32 s{S_T0}, s{S_T0}, 16384")
    e(f"v_add_u32 {T2}, s{S_T0}, {T2}")
    e(f"v_bfe_u32 {T0}, {L}, 4, 1")
    e(f"v_bfe_u32 {T3}, {L}, 1, 1")
    e(f"v_lshl_add_u32 {T0}, {T0}, 1, {T3}")
    e(f"v_lshl_add_u32 {T2}, {T0}, 4, {T2}")
    e(f"v_and_b32 {T3}, 1, {L}")
    e(f"v_lshl_add_u32 {T2}, {T3}, 3, {T2}")
    for db in range(4):
        e(f"v_xor_b32 {T3}, {db}, {T1}")
        e(f"v_lshl_add_u32 v{V_VW+db}, {T3}, 6, {T2}")
    e(f"v_mov_b32 v{V_M}, 0xff800000")
    e(f"v_mov_b32 v{V_L}, 0")
    for i in range(64):
        e(f"v_mov_b32 v{V_O+i}, 0")
    e(f"s_mov_b32 s{S_C}, {f32hex(SCALE*LOG2E)}")
    e(f"s_mov_b32 s{S_CNT}, 0")
    e(f"s_mov_b32 s{S_T2}, 0x1ffff")
    e("s_waitcnt lgkmcnt(0)")

    e.label("attn_loop")
    e("s_barrier")
    def rdk(ks):
        f = V_F + 4*(ks % 6)
        e(f"ds_read_b128 {vr(f,4)}, v{V_KW+ks}")
    for ks in range(6):
        rdk(ks)
    seqv = [(ks, db) for ks in range(2) for db in range(4)]
    def rdv(idx):
        ks, db = seqv[idx]
        f = V_F + 4*((8 + idx) % 6)
        for u in range(2):
            e(f"ds_read_b64_tr_b16 {vr(f+2*u,2)}, v{V_VW+db} offset:{ks*4096 + u*2048}")
    issued = 6
    for ks in range(8):
        f = V_F + 4*(ks % 6)
        later_k = max(0, min(8, issued) - ks - 1)
        later_v = max(0, issued - 8)
        e(f"s_waitcnt lgkmcnt({later_k + 2*later_v})")
        acc = vr(V_S, 16)
        cc = "0" if ks == 0 else acc
        e(f"v_mfma_f32_32x32x16_bf16 {acc}, {vr(f,4)}, {vr(V_Q+4*ks,4)}, {cc}")
        if issued < 8:
            rdk(issued)
        else:
            rdv(issued - 8)
        issued += 1
    for i in range(8):
        e(f"v_add_u32 v{V_KW+i}, 0x8000, v{V_KW+i}")
        e(f"v_and_b32 v{V_KW+i}, s{S_T2}, v{V_KW+i}")
    S = lambda i: f"v{V_S+i}"
    e(f"v_max3_f32 {T0}, {S(0)}, {S(1)}, {S(2)}")
    e(f"v_max3_f32 {T1}, {S(3)}, {S(4)}, {S(5)}")
    e(f"v_max3_f32 {T0}, {T0}, {S(6)}, {S(7)}")
    e(f"v_max3_f32 {T1}, {T1}, {S(8)}, {S(9)}")
    e(f"v_max3_f32 {T0}, {T0}, {S(10)}, {S(11)}")
    e(f"v_max3_f32 {T1}, {T1}, {S(12)}, {S(13)}")
    e(f"v_max3_f32 {T0}, {T0}, {S(14)}, {S(15)}")
    e(f"v_max_f32 {T0}, {T0}, {T1}")
    e(f"v_mov_b32 {T1}, {T0}")
    e("s_nop 1")
    e(f"v_permlane32_swap_b32 {T0}, {T1}")
    e("s_nop 1")
    e(f"v_max3_f32 {T0}, {T0}, {T1}, v{V_M}")
    e(f"v_cmp_neq_f32 vcc, {T0}, v{V_M}")
    e(f"v_sub_f32 {T1}, v{V_M}, {T0}")
    e(f"v_mul_f32 {T1}, s{S_C}, {T1}")
    e(f"v_exp_f32 v{V_AL2}, {T1}")
    e(f"v_mov_b32 v{V_M}, {T0}")
    e(f"v_mul_f32 {T0}, s{S_C}, {T0}")
    e(f"v_mov_b32 v{V_AL2+1}, v{V_AL2}")
    for i in range(16):
        e(f"v_fma_f32 {S(i)}, {S(i)}, s{S_C}, -{T0}")
    for i in range(16):
        e(f"v_exp_f32 {S(i)}, {S(i)}")
    e("s_cbranch_vccz attn_noresc")
    e(f"v_mul_f32 v{V_L}, v{V_L}, v{V_AL2}")
    for i in range(0, 64, 2):
        e(f"v_pk_mul_f32 {vr(V_O+i,2)}, {vr(V_O+i,2)}, {vr(V_AL2,2)}")
    e.label("attn_noresc")
    e(f"v_add_f32 {T1}, {S(0)}, {S(1)}")
    e(f"v_add_f32 {T2}, {S(2)}, {S(3)}")
    for i in range(4, 16, 2):
        tt = T1 if (i // 2) % 2 == 0 else T2
        e(f"v_add_f32 {tt}, {tt}, {S(i)}")
        e(f"v_add_f32 {tt}, {tt}, {S(i+1)}")
    e(f"v_add_f32 {T1}, {T1}, {T2}")
    e(f"v_add_f32 v{V_L}, v{V_L}, {T1}")
    for ks in range(2):
        for j in range(4):
            e(f"v_cvt_pk_bf16_f32 v{V_P+4*ks+j}, {S(8*ks+2*j)}, {S(8*ks+2*j+1)}")
    e("s_nop 1")
    for idx in range(8):
        ks, db = seqv[idx]
        f = V_F + 4*((8 + idx) % 6)
        later_v = max(0, (issued - 8) - idx - 1)
        e(f"s_waitcnt lgkmcnt({2*later_v})")
        acc = vr(V_O + 16*db, 16)
        e(f"v_mfma_f32_32x32x16_bf16 {acc}, {vr(f,4)}, {vr(V_P+4*ks,4)}, {acc}")
        if issued < 16:
            rdv(issued - 8)
            issued += 1
    for i in range(4):
        e(f"v_add_u32 v{V_VW+i}, 0x8000, v{V_VW+i}")
        e(f"v_and_b32 v{V_VW+i}, s{S_T2}, v{V_VW+i}")
    e(f"s_add_u32 s{S_CNT}, s{S_CNT}, 1")
    e(f"s_cmp_lt_u32 s{S_CNT}, 16")
    e("s_cbranch_scc1 attn_loop")
    stamp(e, 2)
    e.nop(16)
    e(f"v_mov_b32 {T0}, v{V_L}")
    e(f"v_mov_b32 {T1}, v{V_L}")
    e("s_nop 1")
    e(f"v_permlane32_swap_b32 {T0}, {T1}")
    e("s_nop 1")
    e(f"v_add_f32 v{V_L}, {T0}, {T1}")
    e("s_barrier")
    e(f"s_mul_i32 s{S_T0}, s{S_QB}, 17408")
    e(f"v_lshlrev_b32 {T0}, 4, {L}")
    e(f"v_add_u32 {T0}, s{S_T0}, {T0}")
    e(f"v_lshlrev_b32 {T1}, 3, {L}")
    e(f"v_add_u32 {T1}, s{S_T0}, {T1}")
    e(f"s_cmp_eq_u32 s{S_KH}, 0")
    e("s_cbranch_scc1 attn_merge0")
    for i in range(16):
        e(f"ds_write_b128 {T0}, {vr(V_O+4*i,4)} offset:{i*1024}")
    e(f"ds_write_b64 {T1}, {vr(V_M,2)} offset:16384")
    e("s_waitcnt lgkmcnt(0)")
    e("s_barrier")
    e("s_endpgm")
    e.label("attn_merge0")
    e("s_barrier")
    e(f"ds_read_b64 {vr(V_P,2)}, {T1} offset:16384")
    for i in range(8):
        e(f"ds_read_b128 {vr(V_Q+4*i,4)}, {T0} offset:{i*1024}")
    e("s_waitcnt lgkmcnt(8)")
    e(f"v_max_f32 {T2}, v{V_M}, v{V_P}")
    e(f"v_sub_f32 {T3}, v{V_M}, {T2}")
    e(f"v_mul_f32 {T3}, s{S_C}, {T3}")
    e(f"v_exp_f32 v{V_AL2}, {T3}")
    e(f"v_sub_f32 {T3}, v{V_P}, {T2}")
    e(f"v_mul_f32 {T3}, s{S_C}, {T3}")
    e(f"v_exp_f32 v{V_P+2}, {T3}")
    e("s_nop 0")
    e(f"v_mul_f32 v{V_L}, v{V_L}, v{V_AL2}")
    e(f"v_fma_f32 v{V_L}, v{V_P+1}, v{V_P+2}, v{V_L}")
    e(f"v_rcp_f32 {T3}, v{V_L}")
    e("s_nop 0")
    e(f"v_mul_f32 v{V_AL2}, v{V_AL2}, {T3}")
    e(f"v_mul_f32 v{V_P+2}, v{V_P+2}, {T3}")
    e(f"v_mov_b32 v{V_AL2+1}, v{V_AL2}")
    e(f"v_mov_b32 v{V_P+3}, v{V_P+2}")
    e(f"s_movk_i32 s{S_T0}, 4096")
    e(f"s_mov_b32 s{S_T1}, 0")
    for half in range(2):
        if half == 1:
            for i in range(8):
                e(f"ds_read_b128 {vr(V_Q+4*i,4)}, {T0} offset:{(8+i)*1024}")
        e("s_waitcnt lgkmcnt(0)")
        for i in range(0, 32, 2):
            o = V_O + 32*half + i
            e(f"v_pk_mul_f32 {vr(o,2)}, {vr(o,2)}, {vr(V_AL2,2)}")
            e(f"v_pk_fma_f32 {vr(o,2)}, {vr(V_Q+i,2)}, {vr(V_P+2,2)}, {vr(o,2)}")
        for d2 in range(2):
            db = 2*half + d2
            for pr in range(2):
                src = V_O + 16*db + 8*pr
                q = V_F + 4*((2*db+pr) % 6)
                for j in range(4):
                    e(f"v_cvt_pk_bf16_f32 v{q+j}, v{src+2*j}, v{src+2*j+1}")
                e("s_nop 1")
                e(f"v_permlane32_swap_b32 v{q}, v{q+2}")
                e(f"v_permlane32_swap_b32 v{q+1}, v{q+3}")
                e("s_nop 1")
                e(f"buffer_store_dwordx4 {vr(q,4)}, v{V_OO}, {sr(SRD_O,4)}, s{S_T0 if db >= 2 else S_T1} offen offset:{((2*db+pr)%4)*1024}")
    if STAMP:
        e("s_waitcnt vmcnt(0)")
    stamp(e, 3)
    stamp_flush(e, 8, S_WAVE, "c")
    e("s_endpgm")

    e.label("attn_loader")
    SRD_V = 24
    S_J4K = 54
    e(f"s_sub_u32 s{S_T1}, s{S_WAVE}, 8")
    e(f"s_lshl_b32 s{S_J4K}, s{S_T1}, 12")
    e(f"s_lshl_b32 s{S_WQR}, s{S_T1}, 15")
    e(f"s_lshl_b32 s{S_WQL}, s{S_T1}, 11")
    e(f"s_add_u32 s{S_WQL}, s{S_WQL}, {WQ0}")
    e(f"s_lshl_b32 s{S_T0}, s{S_B}, 4")
    e(f"s_add_u32 s{S_T0}, s{S_T0}, s{S_HKV}")
    e(f"s_lshl_b32 s{S_T0}, s{S_T0}, 18")
    e(f"s_add_u32 s{SRD_K}, s{S_K}, s{S_T0}")
    e(f"s_addc_u32 s{SRD_K+1}, s{S_K+1}, 0")
    e(f"s_mov_b32 s{SRD_K+2}, 0x40000")
    e(f"s_mov_b32 s{SRD_K+3}, 0x20000")
    e(f"s_add_u32 s{SRD_V}, s{S_V}, s{S_T0}")
    e(f"s_addc_u32 s{SRD_V+1}, s{S_V+1}, 0")
    e(f"s_mov_b32 s{SRD_V+2}, 0x40000")
    e(f"s_mov_b32 s{SRD_V+3}, 0x20000")
    for c in range(WAH):
        wq_dma(None, c, 2)
    e(f"v_lshrrev_b32 {T0}, 4, {L}")
    e(f"v_and_b32 {T1}, 15, {L}")
    e(f"v_lshlrev_b32 {T2}, 8, {T0}")
    e(f"v_lshlrev_b32 {T3}, 2, {T0}")
    e(f"v_xor_b32 {T3}, {T1}, {T3}")
    e(f"v_lshl_add_u32 v{V_D+4}, {T3}, 4, {T2}")
    e(f"v_xor_b32 {T1}, {T1}, {T0}")
    for i in range(4):
        e(f"v_xor_b32 {T3}, {4*i}, {T1}")
        e(f"v_lshl_add_u32 v{V_D+i}, {T3}, 4, {T2}")
    def tile_issue():
        e(f"s_add_u32 s{S_SOFF}, s{S_ROT}, s{S_T2}")
        e(f"s_and_b32 s{S_SOFF}, s{S_SOFF}, 15")
        e(f"s_lshl_b32 s{S_SOFF}, s{S_SOFF}, 14")
        e(f"s_add_u32 s{S_SOFF}, s{S_SOFF}, s{S_J4K}")
        e(f"s_and_b32 s{S_STG}, s{S_T2}, 3")
        e(f"s_lshl_b32 s{S_STG}, s{S_STG}, 15")
        e(f"s_add_u32 m0, s{S_STG}, s{S_J4K}")
        e(f"s_add_u32 s{S_STG}, m0, 16384")
        for i in range(4):
            e(f"buffer_load_dwordx4 v{V_D+i}, {sr(SRD_K,4)}, s{S_SOFF} offen offset:{i*1024}{NT_KV} lds")
        e(f"s_mov_b32 m0, s{S_STG}")
        e("s_nop 0")
        for i in range(4):
            e(f"buffer_load_dwordx4 v{V_D+4}, {sr(SRD_V,4)}, s{S_SOFF} offen offset:{i*1024}{NT_KV} lds")
    e(f"s_mov_b32 s{S_T2}, 0")
    tile_issue()
    for c in range(NCH):
        n_after = min(NCH - 1, c + WAH - 1) - c
        e(f"s_waitcnt vmcnt({2*n_after + (8 if c < WAH else 0)})")
        e("s_barrier")
        if c + WAH < NCH:
            wq_dma(None, c + WAH, 2)
    e("s_barrier")
    e(f"s_mov_b32 s{S_T2}, 1")
    e.label("attn_ldpro")
    tile_issue()
    e(f"s_add_u32 s{S_T2}, s{S_T2}, 1")
    e(f"s_cmp_lt_u32 s{S_T2}, 3")
    e("s_cbranch_scc1 attn_ldpro")
    e(f"s_mov_b32 s{S_CNT}, 0")
    e.label("attn_ldloop")
    e(f"s_cmp_lt_u32 s{S_CNT}, 14")
    e("s_cbranch_scc1 attn_ldw32")
    e(f"s_cmp_eq_u32 s{S_CNT}, 14")
    e("s_cbranch_scc1 attn_ldw16")
    e("s_waitcnt vmcnt(0)")
    e("s_branch attn_ldw")
    e.label("attn_ldw16")
    e("s_waitcnt vmcnt(8)")
    e("s_branch attn_ldw")
    e.label("attn_ldw32")
    e("s_waitcnt vmcnt(16)")
    e.label("attn_ldw")
    e("s_barrier")
    e(f"s_add_u32 s{S_T2}, s{S_CNT}, 3")
    e(f"s_cmp_ge_u32 s{S_T2}, 16")
    e("s_cbranch_scc1 attn_ldskip")
    tile_issue()
    e.label("attn_ldskip")
    e(f"s_add_u32 s{S_CNT}, s{S_CNT}, 1")
    e(f"s_cmp_lt_u32 s{S_CNT}, 16")
    e("s_cbranch_scc1 attn_ldloop")
    e("s_barrier")
    e("s_barrier")
    e.label("attn_end")
    e("s_endpgm")


WS_PART = 0x800000
def gen_oproj(e):
    name = "oproj_kernel"
    e.raw(f".globl {name}")
    e.raw(".p2align 8")
    e.raw(f".type {name},@function")
    e.label(name)
    SRD_O, SRD_W, SRD_P = 20, 24, 28
    S_WAVE, S_KS, S_T, S_MT, S_NT = 40, 41, 42, 43, 44
    S_T0, S_T1, S_SOFF, S_OOFF, S_M0W = 45, 46, 47, 48, 49
    V_LANE = 1
    V_T0, V_T1, V_T2, V_T3 = 2, 3, 4, 5
    V_WD = 6
    V_OA = 9
    V_PA = 10
    V_WA = 12
    V_AF = 24
    V_ACC = 72
    V_BF = 120
    L = f"v{V_LANE}"
    T0, T1, T2, T3 = (f"v{x}" for x in (V_T0, V_T1, V_T2, V_T3))
    CH = 24576
    e("s_cmp_ge_u32 s2, 192")
    e("s_cbranch_scc1 oproj_end")
    e("s_load_dwordx2 s[4:5], s[0:1], 32")
    e("s_load_dwordx2 s[16:17], s[0:1], 56")
    stamp(e, 0)
    e(f"v_and_b32 {L}, 63, v0")
    e(f"v_lshrrev_b32 v2, 6, v0")
    e("s_nop 0")
    e(f"v_readfirstlane_b32 s{S_WAVE}, v2")
    e(f"s_and_b32 s{S_KS}, s2, 7")
    e(f"s_lshr_b32 s{S_T}, s2, 3")
    e(f"s_and_b32 s{S_MT}, s{S_T}, 7")
    e(f"s_lshr_b32 s{S_NT}, s{S_T}, 3")
    e(f"s_movk_i32 s{S_T0}, 2731")
    e(f"s_movk_i32 s{S_T1}, 1152")
    for i in range(3):
        e(f"v_add_u32 {T0}, {64*i}, {L}")
        e(f"v_mul_lo_u32 {T1}, {T0}, s{S_T0}")
        e(f"v_lshrrev_b32 {T1}, 16, {T1}")
        e(f"v_mul_u32_u24 {T2}, 24, {T1}")
        e(f"v_sub_u32 {T0}, {T0}, {T2}")
        e(f"v_bfe_u32 {T2}, {T1}, 1, 1")
        e(f"v_lshlrev_b32 {T2}, 2, {T2}")
        e(f"v_xor_b32 {T0}, {T0}, {T2}")
        e(f"v_mul_lo_u32 {T1}, {T1}, s{S_T1}")
        e(f"v_lshl_add_u32 v{V_WD+i}, {T0}, 4, {T1}")
    e(f"s_lshl_b32 s{S_T0}, s{S_KS}, 9")
    e(f"s_lshl_b32 s{S_SOFF}, s{S_WAVE}, 3")
    e(f"s_add_u32 s{S_T0}, s{S_T0}, s{S_SOFF}")
    e(f"s_mul_i32 s{S_SOFF}, s{S_T0}, 1152")
    e(f"s_mul_i32 s{S_T0}, s{S_NT}, 384")
    e(f"s_add_u32 s{S_SOFF}, s{S_SOFF}, s{S_T0}")
    e(f"s_mul_i32 s{S_M0W}, s{S_WAVE}, 3072")
    e(f"s_lshl_b32 s{S_T0}, s{S_MT}, 2")
    e(f"s_and_b32 s{S_T1}, s{S_WAVE}, 3")
    e(f"s_add_u32 s{S_T0}, s{S_T0}, s{S_T1}")
    e(f"s_lshl_b32 s{S_T0}, s{S_T0}, 18")
    e(f"s_lshl_b32 s{S_T1}, s{S_KS}, 15")
    e(f"s_add_u32 s{S_OOFF}, s{S_T0}, s{S_T1}")
    e(f"v_lshlrev_b32 v{V_OA}, 4, {L}")
    e("s_waitcnt lgkmcnt(0)")
    e(f"s_mov_b32 s{SRD_O}, s16")
    e(f"s_mov_b32 s{SRD_O+1}, s17")
    e(f"s_mov_b32 s{SRD_O+2}, 0x800000")
    e(f"s_mov_b32 s{SRD_O+3}, 0x20000")
    e(f"s_mov_b32 s{SRD_W}, s4")
    e(f"s_mov_b32 s{SRD_W+1}, s5")
    e(f"s_mov_b32 s{SRD_W+2}, {4096*1152}")
    e(f"s_mov_b32 s{SRD_W+3}, 0x20000")
    e(f"s_add_u32 s{SRD_P}, s16, {WS_PART}")
    e(f"s_addc_u32 s{SRD_P+1}, s17, 0")
    e(f"s_mov_b32 s{SRD_P+2}, {8*24*8*12*1024}")
    e(f"s_mov_b32 s{SRD_P+3}, 0x20000")
    def dma(slot):
        for i in range(3):
            e(f"s_add_u32 m0, s{S_M0W}, {slot*CH + i*1024}")
            e("s_nop 0")
            e(f"buffer_load_dwordx4 v{V_WD+i}, {sr(SRD_W,4)}, s{S_SOFF} offen lds")
        e(f"s_add_u32 s{S_SOFF}, s{S_SOFF}, {64*1152}")
    def oload(c):
        for st in range(4):
            e(f"buffer_load_dwordx4 {vr(V_BF+16*c+4*st,4)}, v{V_OA}, {sr(SRD_O,4)}, s{S_OOFF} offen offset:{st*1024}")
        e(f"s_add_u32 s{S_OOFF}, s{S_OOFF}, 4096")
    for c in range(6):
        dma(c)
        oload(c)
    oload(6)
    oload(7)
    e(f"v_lshrrev_b32 {T0}, 5, {L}")
    e(f"v_bfe_u32 {T1}, {L}, 2, 2")
    e(f"v_lshl_add_u32 {T2}, {T0}, 3, {T1}")
    e(f"v_mul_u32_u24 {T2}, 384, {T2}")
    e(f"v_bfe_u32 {T0}, {L}, 4, 1")
    e(f"v_bfe_u32 {T3}, {L}, 1, 1")
    e(f"v_lshl_add_u32 {T0}, {T0}, 1, {T3}")
    e(f"v_lshl_add_u32 {T2}, {T0}, 4, {T2}")
    e(f"v_and_b32 {T3}, 1, {L}")
    e(f"v_lshl_add_u32 {T2}, {T3}, 3, {T2}")
    e(f"v_bfe_u32 {T1}, {L}, 3, 1")
    e(f"s_lshr_b32 s{S_T0}, s{S_WAVE}, 2")
    e(f"s_mul_i32 s{S_T0}, s{S_T0}, 3")
    for b in range(3):
        e(f"s_add_u32 s{S_T1}, s{S_T0}, {b}")
        e(f"v_xor_b32 {T3}, s{S_T1}, {T1}")
        e(f"v_lshl_add_u32 v{V_WA+b}, {T3}, 6, {T2}")
        e(f"v_add_u32 v{V_WA+3+b}, {2*CH}, v{V_WA+b}")
        e(f"v_add_u32 v{V_WA+6+b}, {4*CH}, v{V_WA+b}")
    e(f"s_mul_i32 s{S_T0}, s{S_KS}, 24")
    e(f"s_add_u32 s{S_T0}, s{S_T0}, s{S_T}")
    e(f"s_lshl_b32 s{S_T0}, s{S_T0}, 3")
    e(f"s_add_u32 s{S_T0}, s{S_T0}, s{S_WAVE}")
    e(f"s_mul_i32 s{S_T0}, s{S_T0}, 12288")
    e(f"v_add_u32 v{V_PA}, s{S_T0}, v{V_OA}")
    for i in range(48):
        e(f"v_mov_b32 v{V_ACC+i}, 0")
    stamp(e, 1)
    waits = [43, 36, 32, 28, 21, 14, 3, 0]
    def rda(slot, st):
        for b in range(3):
            for u in range(2):
                e(f"ds_read_b64_tr_b16 {vr(V_AF+12*st+4*b+2*u,2)}, v{V_WA+3*(slot//2)+b} offset:{(slot%2)*CH + (st*16+4*u)*384}")
    def mm(c, st):
        for b in range(3):
            acc = vr(V_ACC+16*b, 16)
            e(f"v_mfma_f32_32x32x16_bf16 {acc}, {vr(V_AF+12*st+4*b,4)}, {vr(V_BF+16*c+4*st,4)}, {acc}")
    for c in range(8):
        slot = c % 6
        e(f"s_waitcnt vmcnt({waits[c]})")
        e("s_barrier")
        rda(slot, 0)
        rda(slot, 1)
        if c in (1, 2):
            dma(c - 1)
        e("s_waitcnt lgkmcnt(6)")
        mm(c, 0)
        rda(slot, 2)
        e("s_waitcnt lgkmcnt(6)")
        mm(c, 1)
        rda(slot, 3)
        e("s_waitcnt lgkmcnt(6)")
        mm(c, 2)
        e("s_waitcnt lgkmcnt(0)")
        mm(c, 3)
        if c == 0: stamp(e, 2)
    stamp(e, 3)
    e.nop(16)
    e(f"s_mov_b32 s{S_T0}, 0")
    for q in range(12):
        if q % 4 == 0 and q > 0:
            e(f"s_mov_b32 s{S_T0}, {q*1024}")
        e(f"buffer_store_dwordx4 {vr(V_ACC+4*q,4)}, v{V_PA}, {sr(SRD_P,4)}, s{S_T0} offen offset:{(q%4)*1024}")
    if STAMP:
        e("s_waitcnt vmcnt(0)")
    stamp(e, 4)
    stamp_flush(e, 5, S_WAVE, "o")
    e.label("oproj_end")
    e("s_endpgm")

def gen_red(e):
    name = "red_kernel"
    e.raw(f".globl {name}")
    e.raw(".p2align 8")
    e.raw(f".type {name},@function")
    e.label(name)
    SRD_P, SRD_OUT = 20, 24
    S_U, S_Q, S_B, S_W, S_T, S_T0, S_T1, S_T2 = 40, 41, 42, 43, 44, 45, 46, 47
    e("s_cmp_ge_u32 s2, 576")
    e("s_cbranch_scc1 red_end")
    e("s_load_dwordx2 s[6:7], s[0:1], 40")
    e("s_load_dwordx2 s[16:17], s[0:1], 56")
    e("v_and_b32 v1, 63, v0")
    e("v_lshrrev_b32 v2, 6, v0")
    e("s_nop 0")
    e(f"v_readfirstlane_b32 s{S_T0}, v2")
    e(f"s_lshl_b32 s{S_U}, s2, 2")
    e(f"s_add_u32 s{S_U}, s{S_U}, s{S_T0}")
    e(f"s_lshl_b32 s{S_T0}, s{S_U}, 10")
    e("v_lshlrev_b32 v2, 4, v1")
    e(f"v_add_u32 v2, s{S_T0}, v2")
    e("s_waitcnt lgkmcnt(0)")
    e(f"s_add_u32 s{SRD_P}, s16, {WS_PART}")
    e(f"s_addc_u32 s{SRD_P+1}, s17, 0")
    e(f"s_mov_b32 s{SRD_P+2}, {8*24*8*12*1024}")
    e(f"s_mov_b32 s{SRD_P+3}, 0x20000")
    e(f"s_mov_b32 s{SRD_OUT}, s6")
    e(f"s_mov_b32 s{SRD_OUT+1}, s7")
    e(f"s_mov_b32 s{SRD_OUT+2}, {1024*1152}")
    e(f"s_mov_b32 s{SRD_OUT+3}, 0x20000")
    e(f"s_mov_b32 s{S_T0}, 0")
    for ks in range(8):
        e(f"buffer_load_dwordx4 {vr(8+4*ks,4)}, v2, {sr(SRD_P,4)}, s{S_T0} offen")
        if ks < 7:
            e(f"s_add_u32 s{S_T0}, s{S_T0}, {24*8*12*1024}")
    e(f"s_and_b32 s{S_Q}, s{S_U}, 3")
    e(f"s_lshr_b32 s{S_T0}, s{S_U}, 2")
    e(f"s_mul_i32 s{S_T1}, s{S_T0}, 43691")
    e(f"s_lshr_b32 s{S_T1}, s{S_T1}, 17")
    e(f"s_mul_i32 s{S_T2}, s{S_T1}, 3")
    e(f"s_sub_u32 s{S_B}, s{S_T0}, s{S_T2}")
    e(f"s_and_b32 s{S_W}, s{S_T1}, 7")
    e(f"s_lshr_b32 s{S_T}, s{S_T1}, 3")
    e(f"s_and_b32 s{S_T0}, s{S_T}, 7")
    e(f"s_lshl_b32 s{S_T0}, s{S_T0}, 7")
    e(f"s_and_b32 s{S_T1}, s{S_W}, 3")
    e(f"s_lshl_b32 s{S_T1}, s{S_T1}, 5")
    e(f"s_add_u32 s{S_T0}, s{S_T0}, s{S_T1}")
    e("v_and_b32 v3, 31, v1")
    e(f"v_add_u32 v3, s{S_T0}, v3")
    e(f"s_movk_i32 s{S_T1}, 1152")
    e(f"v_mul_lo_u32 v3, v3, s{S_T1}")
    e(f"s_lshr_b32 s{S_T0}, s{S_T}, 3")
    e(f"s_mul_i32 s{S_T0}, s{S_T0}, 384")
    e(f"s_lshr_b32 s{S_T1}, s{S_W}, 2")
    e(f"s_mul_i32 s{S_T1}, s{S_T1}, 3")
    e(f"s_add_u32 s{S_T1}, s{S_T1}, s{S_B}")
    e(f"s_lshl_b32 s{S_T1}, s{S_T1}, 6")
    e(f"s_add_u32 s{S_T0}, s{S_T0}, s{S_T1}")
    e(f"s_lshl_b32 s{S_T1}, s{S_Q}, 4")
    e(f"s_add_u32 s{S_T0}, s{S_T0}, s{S_T1}")
    e(f"v_add_u32 v3, s{S_T0}, v3")
    e("v_lshrrev_b32 v4, 5, v1")
    e("v_lshl_add_u32 v3, v4, 3, v3")
    for ks in range(1, 8):
        e(f"s_waitcnt vmcnt({7-ks})")
        e(f"v_pk_add_f32 v[8:9], v[8:9], {vr(8+4*ks,2)}")
        e(f"v_pk_add_f32 v[10:11], v[10:11], {vr(10+4*ks,2)}")
    e("v_cvt_pk_bf16_f32 v6, v8, v9")
    e("v_cvt_pk_bf16_f32 v7, v10, v11")
    e(f"buffer_store_dwordx2 v[6:7], v3, {sr(SRD_OUT,4)}, 0 offen")
    e.label("red_end")
    e("s_endpgm")

def desc(name, nfv, acc, sgpr=102):
    return f""".amdhsa_kernel {name}
  .amdhsa_next_free_vgpr {nfv}
  .amdhsa_next_free_sgpr {sgpr}
  .amdhsa_accum_offset {acc}
  .amdhsa_group_segment_fixed_size 0
  .amdhsa_kernarg_size 64
  .amdhsa_user_sgpr_count 2
  .amdhsa_user_sgpr_kernarg_segment_ptr 1
  .amdhsa_system_sgpr_workgroup_id_x 1
.end_amdhsa_kernel
"""

def main():
    hdr = open("standalone__gqa_block_cached__near_ridge.s.ref").read().split("; Override launch")[0]
    e = Em()
    gen_attn(e)
    gen_oproj(e)
    gen_red(e)
    out = hdr
    out += "; @launch kernel=attn_kernel grid=(256,1,1) block=(768,1,1) lds=163840\n"
    out += "; @launch kernel=oproj_kernel grid=(192,1,1) block=(512,1,1) lds=147456\n"
    out += "; @launch kernel=red_kernel grid=(576,1,1) block=(256,1,1) lds=0\n"
    out += '.amdgcn_target "amdgcn-amd-amdhsa--gfx950"\n.text\n'
    out += e.text()
    out += '.section .rodata,"a"\n.p2align 6\n'
    out += desc("attn_kernel", 168, 168)
    out += ".p2align 6\n"
    out += desc("oproj_kernel", 248, 248)
    out += ".p2align 6\n"
    out += desc("red_kernel", 40, 40)
    path = sys.argv[1] if len(sys.argv) > 1 else "standalone__gqa_block_cached__near_ridge.s"
    open(path, "w").write(out)

main()
```

```python
import sys, struct

class Em:
    def __init__(self):
        self.lines = []
    def __call__(self, s):
        self.lines.append("    " + s)
    def label(self, s):
        self.lines.append(s + ":")
    def raw(self, s):
        self.lines.append(s)
    def nop(self, n):
        while n > 0:
            k = min(n, 16)
            self(f"s_nop {k-1}")
            n -= k
    def text(self):
        return "\n".join(self.lines) + "\n"

def vr(b, n=1):
    return f"v{b}" if n == 1 else f"v[{b}:{b+n-1}]"
def sr(b, n=1):
    return f"s{b}" if n == 1 else f"s[{b}:{b+n-1}]"
def f32hex(x):
    return "0x%08x" % struct.unpack("<I", struct.pack("<f", x))[0]

LOG2E = 1.4426950408889634
SCALE = 128 ** -0.5
OPT = sys.argv[2] if len(sys.argv) > 2 else ""
STAMP = "stamp" in OPT
NT_KV = " nt"
NT_W = " nt" if "ntw" in OPT else ""

def stamp(e, idx):
    if not STAMP: return
    e("s_memtime s[60:61]")
    e("s_waitcnt lgkmcnt(0)")
    e(f"s_mov_b32 s{62+idx}, s60")

def stamp_flush(e, n, wavereg, tag):
    if not STAMP: return
    e("s_load_dwordx2 s[56:57], s[0:1], 48")
    e("s_waitcnt lgkmcnt(0)")
    e("s_mov_b32 s52, s56")
    e("s_mov_b32 s53, s57")
    e("s_mov_b32 s54, 256")
    e("s_mov_b32 s55, 0x20000")
    e("s_cmp_lg_u32 s2, 5")
    e(f"s_cbranch_scc1 stamp_skip_{tag}")
    e(f"s_lshl_b32 s58, s{wavereg}, 5")
    for i in range(n):
        e(f"s_sub_u32 s59, s{62+i}, s62")
        e("v_mov_b32 v2, s59")
        e(f"v_mov_b32 v3, s58")
        e(f"buffer_store_dword v2, v3, s[52:55], 0 offen offset:{4*i}")
    e.label(f"stamp_skip_{tag}")

def rot18(e, dst, base_sgpr, add_const, rot_sgpr, tmp):
    if base_sgpr is None:
        e(f"s_add_u32 s{dst}, s{rot_sgpr}, {add_const}")
    else:
        e(f"s_add_u32 s{dst}, s{base_sgpr}, {add_const}")
        e(f"s_add_u32 s{dst}, s{dst}, s{rot_sgpr}")
    e(f"s_sub_u32 s{tmp}, s{dst}, 18")
    e(f"s_cmp_ge_u32 s{dst}, 18")
    e(f"s_cselect_b32 s{dst}, s{tmp}, s{dst}")

def gen_attn(e):
    name = "attn_kernel"
    e.raw(f".globl {name}")
    e.raw(".p2align 8")
    e.raw(f".type {name},@function")
    e.label(name)
    S_X, S_K, S_V, S_WQ, S_WS = 4, 6, 8, 10, 16
    SRD_K, SRD_X, SRD_WQ, SRD_O = 20, 28, 32, 36
    S_WAVE, S_HKV, S_B = 40, 41, 42
    S_T0, S_T1, S_T2, S_SOFF, S_C = 43, 44, 45, 46, 47
    S_CNT, S_STG, S_ROT, S_XOFF, S_QB, S_KH = 48, 49, 50, 51, 72, 73
    V_LANE = 1
    V_T0, V_T1, V_T2, V_T3 = 2, 3, 4, 5
    V_KW = 6
    V_VW = 14
    V_M, V_L = 18, 19
    V_AL2 = 20
    V_OO = 22
    V_XO = 23
    V_WA = 6
    V_D = 6
    V_O = 24
    V_S = 88
    V_Q = 104
    V_F = 136
    V_P = 160
    XSL = [V_O+32, V_O+40, V_O+48, V_O+56, V_S, V_S+8, V_Q, V_Q+8]
    STAGE = 32768
    WQ0 = 98304
    WNS = 4
    WAH = 3
    QX0 = 131072
    NCH = 18

    e("s_cmp_ge_u32 s2, 256")
    e("s_cbranch_scc1 attn_end")
    e("s_load_dwordx4 s[4:7], s[0:1], 0")
    e("s_load_dwordx4 s[8:11], s[0:1], 16")
    e("s_load_dwordx2 s[16:17], s[0:1], 56")
    stamp(e, 0)
    e(f"v_and_b32 v{V_LANE}, 63, v0")
    e(f"v_lshrrev_b32 v2, 6, v0")
    e("s_nop 0")
    e(f"v_readfirstlane_b32 s{S_WAVE}, v2")
    e(f"s_and_b32 s{S_HKV}, s2, 15")
    e(f"s_lshr_b32 s{S_B}, s2, 4")
    e(f"s_add_u32 s{S_ROT}, s{S_HKV}, s{S_B}")
    L = f"v{V_LANE}"
    T0, T1, T2, T3 = (f"v{x}" for x in (V_T0, V_T1, V_T2, V_T3))
    e("s_waitcnt lgkmcnt(0)")
    e(f"s_lshl_b32 s{S_T0}, s{S_HKV}, 9")
    e(f"s_add_u32 s{SRD_WQ}, s{S_WQ}, s{S_T0}")
    e(f"s_addc_u32 s{SRD_WQ+1}, s{S_WQ+1}, 0")
    e(f"s_sub_u32 s{SRD_WQ+2}, {576*8192}, s{S_T0}")
    e(f"s_mov_b32 s{SRD_WQ+3}, 0x20000")
    V_WD = 166
    e(f"v_lshrrev_b32 {T0}, 5, {L}")
    e(f"v_and_b32 {T1}, 31, {L}")
    e(f"v_lshlrev_b32 {T2}, 13, {T0}")
    for odd in range(2):
        e(f"v_add_u32 {T3}, {2*odd}, {T0}")
        e(f"v_lshlrev_b32 {T3}, 2, {T3}")
        e(f"v_xor_b32 {T3}, {T3}, {T1}")
        e(f"v_lshl_add_u32 v{V_WD+odd}, {T3}, 4, {T2}")
    S_WQR, S_WQL = 52, 53
    def wq_dma(chunk_sgpr, chunk_const, n_instr):
        rot18(e, S_SOFF, chunk_sgpr, chunk_const, S_B, S_T0)
        e(f"s_lshl_b32 s{S_SOFF}, s{S_SOFF}, 18")
        e(f"s_add_u32 s{S_SOFF}, s{S_SOFF}, s{S_WQR}")
        if chunk_sgpr is None:
            e(f"s_add_u32 m0, s{S_WQL}, {(chunk_const % WNS)*16384}")
        else:
            e(f"s_add_u32 s{S_STG}, s{chunk_sgpr}, {chunk_const}")
            e(f"s_and_b32 s{S_STG}, s{S_STG}, {WNS-1}")
            e(f"s_lshl_b32 s{S_STG}, s{S_STG}, 14")
            e(f"s_add_u32 m0, s{S_STG}, s{S_WQL}")
        e("s_nop 0")
        e(f"buffer_load_dwordx4 v{V_WD}, {sr(SRD_WQ,4)}, s{S_SOFF} offen lds")
        if n_instr == 2:
            e(f"s_add_u32 s{S_SOFF}, s{S_SOFF}, {16384-1024}")
            e(f"buffer_load_dwordx4 v{V_WD+1}, {sr(SRD_WQ,4)}, s{S_SOFF} offen offset:1024 lds")
    e(f"s_cmp_ge_u32 s{S_WAVE}, 8")
    e("s_cbranch_scc1 attn_loader")
    e(f"s_lshl_b32 s{S_WQR}, s{S_WAVE}, 15")
    e(f"s_lshl_b32 s{S_WQL}, s{S_WAVE}, 11")
    e(f"s_add_u32 s{S_WQL}, s{S_WQL}, {WQ0}")

    e(f"s_and_b32 s{S_QB}, s{S_WAVE}, 3")
    e(f"s_lshr_b32 s{S_KH}, s{S_WAVE}, 2")
    e(f"s_mul_i32 s{S_T0}, s{S_B}, 73728")
    e(f"s_add_u32 s{SRD_X}, s{S_X}, s{S_T0}")
    e(f"s_addc_u32 s{SRD_X+1}, s{S_X+1}, 0")
    e(f"s_mov_b32 s{SRD_X+2}, 73728")
    e(f"s_mov_b32 s{SRD_X+3}, 0x20000")
    e(f"s_mov_b32 s{SRD_O}, s{S_WS}")
    e(f"s_mov_b32 s{SRD_O+1}, s{S_WS+1}")
    e(f"s_mov_b32 s{SRD_O+2}, 0x800000")
    e(f"s_mov_b32 s{SRD_O+3}, 0x20000")
    e(f"s_and_b32 s{S_T0}, s{S_QB}, 1")
    e(f"s_lshl_b32 s{S_T0}, s{S_T0}, 5")
    e(f"v_and_b32 {T0}, 31, {L}")
    e(f"v_add_u32 {T0}, s{S_T0}, {T0}")
    e(f"s_movk_i32 s{S_T1}, 1152")
    e(f"v_mul_lo_u32 {T0}, {T0}, s{S_T1}")
    e(f"v_lshrrev_b32 {T1}, 5, {L}")
    e(f"v_lshl_add_u32 v{V_XO}, {T1}, 4, {T0}")
    for c in range(WAH):
        rot18(e, S_XOFF, None, c, S_B, S_T0)
        e(f"s_lshl_b32 s{S_XOFF}, s{S_XOFF}, 6")
        for st in range(2):
            e(f"buffer_load_dwordx4 {vr(XSL[c]+4*st,4)}, v{V_XO}, {sr(SRD_X,4)}, s{S_XOFF} offen offset:{st*32}")
        wq_dma(None, c, 2)
    e(f"v_lshrrev_b32 {T0}, 5, {L}")
    e(f"v_bfe_u32 {T1}, {L}, 2, 2")
    e(f"v_lshl_add_u32 {T2}, {T0}, 3, {T1}")
    e(f"v_lshlrev_b32 {T2}, 9, {T2}")
    e(f"v_bfe_u32 {T0}, {L}, 4, 1")
    e(f"v_bfe_u32 {T3}, {L}, 1, 1")
    e(f"v_lshl_add_u32 {T0}, {T0}, 1, {T3}")
    e(f"v_lshl_add_u32 {T2}, {T0}, 4, {T2}")
    e(f"v_and_b32 {T3}, 1, {L}")
    e(f"v_lshl_add_u32 {T2}, {T3}, 3, {T2}")
    e(f"v_add_u32 {T2}, {WQ0}, {T2}")
    e(f"s_lshr_b32 s{S_T0}, s{S_QB}, 1")
    e(f"s_lshl_b32 s{S_T0}, s{S_T0}, 2")
    e(f"s_lshl_b32 s{S_T1}, s{S_KH}, 1")
    e(f"s_add_u32 s{S_T0}, s{S_T0}, s{S_T1}")
    for d2 in range(2):
        e(f"s_add_u32 s{S_T1}, s{S_T0}, {d2}")
        e(f"v_xor_b32 {T3}, s{S_T1}, {T1}")
        e(f"v_lshl_add_u32 v{V_WA+d2}, {T3}, 6, {T2}")
    e(f"s_and_b32 s{S_T0}, s{S_QB}, 1")
    e(f"s_lshl_b32 s{S_T1}, s{S_B}, 1")
    e(f"s_add_u32 s{S_T0}, s{S_T0}, s{S_T1}")
    e(f"s_lshl_b32 s{S_T0}, s{S_T0}, 18")
    e(f"s_lshl_b32 s{S_T1}, s{S_HKV}, 1")
    e(f"s_lshr_b32 s{S_T2}, s{S_QB}, 1")
    e(f"s_add_u32 s{S_T1}, s{S_T1}, s{S_T2}")
    e(f"s_lshl_b32 s{S_T1}, s{S_T1}, 13")
    e(f"s_add_u32 s{S_T0}, s{S_T0}, s{S_T1}")
    e(f"v_lshlrev_b32 {T0}, 4, {L}")
    e(f"v_add_u32 v{V_OO}, s{S_T0}, {T0}")
    for i in range(32):
        e(f"v_mov_b32 v{V_O+i}, 0")

    def qchunk(slot, issue_next, wait_n):
        e(f"s_waitcnt vmcnt({wait_n})")
        e("s_barrier")
        seq = [(ks, d2) for ks in range(2) for d2 in range(2)]
        hi = slot >= 4
        for idx, (ks, d2) in enumerate(seq):
            f = V_F + 4*idx
            for u in range(2):
                e(f"ds_read_b64_tr_b16 {vr(f+2*u,2)}, v{V_WA+d2+(2 if hi else 0)} offset:{(slot%4)*16384 + (ks*16+4*u)*512}")
        if issue_next:
            ns = (slot + WAH) % WNS
            rot18(e, S_XOFF, S_CNT, slot+WAH, S_B, S_T0)
            e(f"s_lshl_b32 s{S_XOFF}, s{S_XOFF}, 6")
            for st in range(2):
                e(f"buffer_load_dwordx4 {vr(XSL[ns]+4*st,4)}, v{V_XO}, {sr(SRD_X,4)}, s{S_XOFF} offen offset:{st*32}")
            wq_dma(S_CNT, slot+WAH, 2)
        for idx, (ks, d2) in enumerate(seq):
            f = V_F + 4*idx
            e(f"s_waitcnt lgkmcnt({2*(3-idx)})")
            acc = vr(V_O + 16*d2, 16)
            e(f"v_mfma_f32_32x32x16_bf16 {acc}, {vr(f,4)}, {vr(XSL[slot]+4*ks,4)}, {acc}")
    for d2 in range(2):
        e(f"v_add_u32 v{V_WA+2+d2}, 0x10000, v{V_WA+d2}")
    e(f"s_mov_b32 s{S_CNT}, 0")
    for c in range(NCH):
        if c % WNS == 0 and c > 0:
            e(f"s_mov_b32 s{S_CNT}, {c}")
        n_after = min(NCH - 1, c + WAH - 1) - c
        if c == 0: stamp(e, 4)
        qchunk(c % WNS, c + WAH < NCH, 4*n_after)
        if c in (0, 1, 9): stamp(e, {0:5, 1:6, 9:7}[c])
    stamp(e, 1)
    e.nop(16)
    e(f"s_lshl_b32 s{S_T0}, s{S_QB}, 13")
    e(f"s_add_u32 s{S_T0}, s{S_T0}, {QX0}")
    e(f"v_lshlrev_b32 {T0}, 4, {L}")
    e(f"v_add_u32 {T0}, s{S_T0}, {T0}")
    e(f"s_lshl_b32 s{S_T1}, s{S_KH}, 12")
    e(f"v_add_u32 {T1}, s{S_T1}, {T0}")
    for kl in range(4):
        d2, hf = kl // 2, kl % 2
        src = V_O + 16*d2 + 8*hf
        q = V_F + 4*kl
        for j in range(4):
            e(f"v_cvt_pk_bf16_f32 v{q+j}, v{src+2*j}, v{src+2*j+1}")
        e("s_nop 1")
        e(f"v_permlane32_swap_b32 v{q}, v{q+2}")
        e(f"v_permlane32_swap_b32 v{q+1}, v{q+3}")
        e("s_nop 1")
        e(f"ds_write_b128 {T1}, {vr(q,4)} offset:{kl*1024}")
    e("s_waitcnt lgkmcnt(0)")
    e("s_barrier")
    for ks in range(8):
        e(f"ds_read_b128 {vr(V_Q+4*ks,4)}, {T0} offset:{ks*1024}")
    e(f"v_lshrrev_b32 {T0}, 5, {L}")
    e(f"v_and_b32 {T1}, 15, {L}")
    e(f"v_xor_b32 {T0}, {T0}, {T1}")
    e(f"v_and_b32 {T1}, 31, {L}")
    e(f"v_lshlrev_b32 {T1}, 8, {T1}")
    e(f"s_lshl_b32 s{S_T0}, s{S_KH}, 13")
    e(f"v_add_u32 {T1}, s{S_T0}, {T1}")
    for ks in range(8):
        e(f"v_xor_b32 {T2}, {2*ks}, {T0}")
        e(f"v_lshl_add_u32 v{V_KW+ks}, {T2}, 4, {T1}")
    e(f"v_lshrrev_b32 {T0}, 5, {L}")
    e(f"v_bfe_u32 {T1}, {L}, 2, 2")
    e(f"v_lshl_add_u32 {T2}, {T0}, 2, {T1}")
    e(f"v_lshlrev_b32 {T2}, 8, {T2}")
    e(f"s_add_u32 s{S_T0}, s{S_T0}, 16384")
    e(f"v_add_u32 {T2}, s{S_T0}, {T2}")
    e(f"v_bfe_u32 {T0}, {L}, 4, 1")
    e(f"v_bfe_u32 {T3}, {L}, 1, 1")
    e(f"v_lshl_add_u32 {T0}, {T0}, 1, {T3}")
    e(f"v_lshl_add_u32 {T2}, {T0}, 4, {T2}")
    e(f"v_and_b32 {T3}, 1, {L}")
    e(f"v_lshl_add_u32 {T2}, {T3}, 3, {T2}")
    for db in range(4):
        e(f"v_xor_b32 {T3}, {db}, {T1}")
        e(f"v_lshl_add_u32 v{V_VW+db}, {T3}, 6, {T2}")
    e(f"v_mov_b32 v{V_M}, 0xff800000")
    e(f"v_mov_b32 v{V_L}, 0")
    for i in range(64):
        e(f"v_mov_b32 v{V_O+i}, 0")
    e(f"s_mov_b32 s{S_C}, {f32hex(SCALE*LOG2E)}")
    e(f"s_mov_b32 s{S_CNT}, 0")
    e(f"s_mov_b32 s{S_T2}, 0x1ffff")
    e("s_waitcnt lgkmcnt(0)")

    e.label("attn_loop")
    e("s_barrier")
    def rdk(ks):
        f = V_F + 4*(ks % 6)
        e(f"ds_read_b128 {vr(f,4)}, v{V_KW+ks}")
    for ks in range(6):
        rdk(ks)
    seqv = [(ks, db) for ks in range(2) for db in range(4)]
    def rdv(idx):
        ks, db = seqv[idx]
        f = V_F + 4*((8 + idx) % 6)
        for u in range(2):
            e(f"ds_read_b64_tr_b16 {vr(f+2*u,2)}, v{V_VW+db} offset:{ks*4096 + u*2048}")
    issued = 6
    for ks in range(8):
        f = V_F + 4*(ks % 6)
        later_k = max(0, min(8, issued) - ks - 1)
        later_v = max(0, issued - 8)
        e(f"s_waitcnt lgkmcnt({later_k + 2*later_v})")
        acc = vr(V_S, 16)
        cc = "0" if ks == 0 else acc
        e(f"v_mfma_f32_32x32x16_bf16 {acc}, {vr(f,4)}, {vr(V_Q+4*ks,4)}, {cc}")
        if issued < 8:
            rdk(issued)
        else:
            rdv(issued - 8)
        issued += 1
    for i in range(8):
        e(f"v_add_u32 v{V_KW+i}, 0x8000, v{V_KW+i}")
        e(f"v_and_b32 v{V_KW+i}, s{S_T2}, v{V_KW+i}")
    S = lambda i: f"v{V_S+i}"
    e(f"v_max3_f32 {T0}, {S(0)}, {S(1)}, {S(2)}")
    e(f"v_max3_f32 {T1}, {S(3)}, {S(4)}, {S(5)}")
    e(f"v_max3_f32 {T0}, {T0}, {S(6)}, {S(7)}")
    e(f"v_max3_f32 {T1}, {T1}, {S(8)}, {S(9)}")
    e(f"v_max3_f32 {T0}, {T0}, {S(10)}, {S(11)}")
    e(f"v_max3_f32 {T1}, {T1}, {S(12)}, {S(13)}")
    e(f"v_max3_f32 {T0}, {T0}, {S(14)}, {S(15)}")
    e(f"v_max_f32 {T0}, {T0}, {T1}")
    e(f"v_mov_b32 {T1}, {T0}")
    e("s_nop 1")
    e(f"v_permlane32_swap_b32 {T0}, {T1}")
    e("s_nop 1")
    e(f"v_max3_f32 {T0}, {T0}, {T1}, v{V_M}")
    e(f"v_cmp_neq_f32 vcc, {T0}, v{V_M}")
    e(f"v_sub_f32 {T1}, v{V_M}, {T0}")
    e(f"v_mul_f32 {T1}, s{S_C}, {T1}")
    e(f"v_exp_f32 v{V_AL2}, {T1}")
    e(f"v_mov_b32 v{V_M}, {T0}")
    e(f"v_mul_f32 {T0}, s{S_C}, {T0}")
    e(f"v_mov_b32 v{V_AL2+1}, v{V_AL2}")
    for i in range(16):
        e(f"v_fma_f32 {S(i)}, {S(i)}, s{S_C}, -{T0}")
    for i in range(16):
        e(f"v_exp_f32 {S(i)}, {S(i)}")
    e("s_cbranch_vccz attn_noresc")
    e(f"v_mul_f32 v{V_L}, v{V_L}, v{V_AL2}")
    for i in range(0, 64, 2):
        e(f"v_pk_mul_f32 {vr(V_O+i,2)}, {vr(V_O+i,2)}, {vr(V_AL2,2)}")
    e.label("attn_noresc")
    e(f"v_add_f32 {T1}, {S(0)}, {S(1)}")
    e(f"v_add_f32 {T2}, {S(2)}, {S(3)}")
    for i in range(4, 16, 2):
        tt = T1 if (i // 2) % 2 == 0 else T2
        e(f"v_add_f32 {tt}, {tt}, {S(i)}")
        e(f"v_add_f32 {tt}, {tt}, {S(i+1)}")
    e(f"v_add_f32 {T1}, {T1}, {T2}")
    e(f"v_add_f32 v{V_L}, v{V_L}, {T1}")
    for ks in range(2):
        for j in range(4):
            e(f"v_cvt_pk_bf16_f32 v{V_P+4*ks+j}, {S(8*ks+2*j)}, {S(8*ks+2*j+1)}")
    e("s_nop 1")
    for idx in range(8):
        ks, db = seqv[idx]
        f = V_F + 4*((8 + idx) % 6)
        later_v = max(0, (issued - 8) - idx - 1)
        e(f"s_waitcnt lgkmcnt({2*later_v})")
        acc = vr(V_O + 16*db, 16)
        e(f"v_mfma_f32_32x32x16_bf16 {acc}, {vr(f,4)}, {vr(V_P+4*ks,4)}, {acc}")
        if issued < 16:
            rdv(issued - 8)
            issued += 1
    for i in range(4):
        e(f"v_add_u32 v{V_VW+i}, 0x8000, v{V_VW+i}")
        e(f"v_and_b32 v{V_VW+i}, s{S_T2}, v{V_VW+i}")
    e(f"s_add_u32 s{S_CNT}, s{S_CNT}, 1")
    e(f"s_cmp_lt_u32 s{S_CNT}, 16")
    e("s_cbranch_scc1 attn_loop")
    stamp(e, 2)
    e.nop(16)
    e(f"v_mov_b32 {T0}, v{V_L}")
    e(f"v_mov_b32 {T1}, v{V_L}")
    e("s_nop 1")
    e(f"v_permlane32_swap_b32 {T0}, {T1}")
    e("s_nop 1")
    e(f"v_add_f32 v{V_L}, {T0}, {T1}")
    e("s_barrier")
    e(f"s_mul_i32 s{S_T0}, s{S_QB}, 17408")
    e(f"v_lshlrev_b32 {T0}, 4, {L}")
    e(f"v_add_u32 {T0}, s{S_T0}, {T0}")
    e(f"v_lshlrev_b32 {T1}, 3, {L}")
    e(f"v_add_u32 {T1}, s{S_T0}, {T1}")
    e(f"s_cmp_eq_u32 s{S_KH}, 0")
    e("s_cbranch_scc1 attn_merge0")
    for i in range(16):
        e(f"ds_write_b128 {T0}, {vr(V_O+4*i,4)} offset:{i*1024}")
    e(f"ds_write_b64 {T1}, {vr(V_M,2)} offset:16384")
    e("s_waitcnt lgkmcnt(0)")
    e("s_barrier")
    e("s_endpgm")
    e.label("attn_merge0")
    e("s_barrier")
    e(f"ds_read_b64 {vr(V_P,2)}, {T1} offset:16384")
    for i in range(8):
        e(f"ds_read_b128 {vr(V_Q+4*i,4)}, {T0} offset:{i*1024}")
    e("s_waitcnt lgkmcnt(8)")
    e(f"v_max_f32 {T2}, v{V_M}, v{V_P}")
    e(f"v_sub_f32 {T3}, v{V_M}, {T2}")
    e(f"v_mul_f32 {T3}, s{S_C}, {T3}")
    e(f"v_exp_f32 v{V_AL2}, {T3}")
    e(f"v_sub_f32 {T3}, v{V_P}, {T2}")
    e(f"v_mul_f32 {T3}, s{S_C}, {T3}")
    e(f"v_exp_f32 v{V_P+2}, {T3}")
    e("s_nop 0")
    e(f"v_mul_f32 v{V_L}, v{V_L}, v{V_AL2}")
    e(f"v_fma_f32 v{V_L}, v{V_P+1}, v{V_P+2}, v{V_L}")
    e(f"v_rcp_f32 {T3}, v{V_L}")
    e("s_nop 0")
    e(f"v_mul_f32 v{V_AL2}, v{V_AL2}, {T3}")
    e(f"v_mul_f32 v{V_P+2}, v{V_P+2}, {T3}")
    e(f"v_mov_b32 v{V_AL2+1}, v{V_AL2}")
    e(f"v_mov_b32 v{V_P+3}, v{V_P+2}")
    e(f"s_movk_i32 s{S_T0}, 4096")
    e(f"s_mov_b32 s{S_T1}, 0")
    for half in range(2):
        if half == 1:
            for i in range(8):
                e(f"ds_read_b128 {vr(V_Q+4*i,4)}, {T0} offset:{(8+i)*1024}")
        e("s_waitcnt lgkmcnt(0)")
        for i in range(0, 32, 2):
            o = V_O + 32*half + i
            e(f"v_pk_mul_f32 {vr(o,2)}, {vr(o,2)}, {vr(V_AL2,2)}")
            e(f"v_pk_fma_f32 {vr(o,2)}, {vr(V_Q+i,2)}, {vr(V_P+2,2)}, {vr(o,2)}")
        for d2 in range(2):
            db = 2*half + d2
            for pr in range(2):
                src = V_O + 16*db + 8*pr
                q = V_F + 4*((2*db+pr) % 6)
                for j in range(4):
                    e(f"v_cvt_pk_bf16_f32 v{q+j}, v{src+2*j}, v{src+2*j+1}")
                e("s_nop 1")
                e(f"v_permlane32_swap_b32 v{q}, v{q+2}")
                e(f"v_permlane32_swap_b32 v{q+1}, v{q+3}")
                e("s_nop 1")
                e(f"buffer_store_dwordx4 {vr(q,4)}, v{V_OO}, {sr(SRD_O,4)}, s{S_T0 if db >= 2 else S_T1} offen offset:{((2*db+pr)%4)*1024}")
    if STAMP:
        e("s_waitcnt vmcnt(0)")
    stamp(e, 3)
    stamp_flush(e, 8, S_WAVE, "c")
    e("s_endpgm")

    e.label("attn_loader")
    SRD_V = 24
    S_J4K = 54
    e(f"s_sub_u32 s{S_T1}, s{S_WAVE}, 8")
    e(f"s_lshl_b32 s{S_J4K}, s{S_T1}, 12")
    e(f"s_lshl_b32 s{S_WQR}, s{S_T1}, 15")
    e(f"s_lshl_b32 s{S_WQL}, s{S_T1}, 11")
    e(f"s_add_u32 s{S_WQL}, s{S_WQL}, {WQ0}")
    e(f"s_lshl_b32 s{S_T0}, s{S_B}, 4")
    e(f"s_add_u32 s{S_T0}, s{S_T0}, s{S_HKV}")
    e(f"s_lshl_b32 s{S_T0}, s{S_T0}, 18")
    e(f"s_add_u32 s{SRD_K}, s{S_K}, s{S_T0}")
    e(f"s_addc_u32 s{SRD_K+1}, s{S_K+1}, 0")
    e(f"s_mov_b32 s{SRD_K+2}, 0x40000")
    e(f"s_mov_b32 s{SRD_K+3}, 0x20000")
    e(f"s_add_u32 s{SRD_V}, s{S_V}, s{S_T0}")
    e(f"s_addc_u32 s{SRD_V+1}, s{S_V+1}, 0")
    e(f"s_mov_b32 s{SRD_V+2}, 0x40000")
    e(f"s_mov_b32 s{SRD_V+3}, 0x20000")
    e(f"v_lshrrev_b32 {T0}, 4, {L}")
    e(f"v_and_b32 {T1}, 15, {L}")
    e(f"v_lshlrev_b32 {T2}, 8, {T0}")
    e(f"v_lshlrev_b32 {T3}, 2, {T0}")
    e(f"v_xor_b32 {T3}, {T1}, {T3}")
    e(f"v_lshl_add_u32 v{V_D+4}, {T3}, 4, {T2}")
    e(f"v_xor_b32 {T1}, {T1}, {T0}")
    for i in range(4):
        e(f"v_xor_b32 {T3}, {4*i}, {T1}")
        e(f"v_lshl_add_u32 v{V_D+i}, {T3}, 4, {T2}")
    def tile_issue():
        e(f"s_add_u32 s{S_SOFF}, s{S_ROT}, s{S_T2}")
        e(f"s_and_b32 s{S_SOFF}, s{S_SOFF}, 15")
        e(f"s_lshl_b32 s{S_SOFF}, s{S_SOFF}, 14")
        e(f"s_add_u32 s{S_SOFF}, s{S_SOFF}, s{S_J4K}")
        e(f"s_and_b32 s{S_STG}, s{S_T2}, 3")
        e(f"s_lshl_b32 s{S_STG}, s{S_STG}, 15")
        e(f"s_add_u32 m0, s{S_STG}, s{S_J4K}")
        e(f"s_add_u32 s{S_STG}, m0, 16384")
        for i in range(4):
            e(f"buffer_load_dwordx4 v{V_D+i}, {sr(SRD_K,4)}, s{S_SOFF} offen offset:{i*1024}{NT_KV} lds")
        e(f"s_mov_b32 m0, s{S_STG}")
        e("s_nop 0")
        for i in range(4):
            e(f"buffer_load_dwordx4 v{V_D+4}, {sr(SRD_V,4)}, s{S_SOFF} offen offset:{i*1024}{NT_KV} lds")
    e(f"s_mov_b32 s{S_T2}, 0")
    e.label("attn_ldpro")
    tile_issue()
    e(f"s_add_u32 s{S_T2}, s{S_T2}, 1")
    e(f"s_cmp_lt_u32 s{S_T2}, 3")
    e("s_cbranch_scc1 attn_ldpro")
    for c in range(NCH):
        e("s_barrier")
    e("s_barrier")
    e(f"s_mov_b32 s{S_CNT}, 0")
    e.label("attn_ldloop")
    e(f"s_cmp_lt_u32 s{S_CNT}, 14")
    e("s_cbranch_scc1 attn_ldw32")
    e(f"s_cmp_eq_u32 s{S_CNT}, 14")
    e("s_cbranch_scc1 attn_ldw16")
    e("s_waitcnt vmcnt(0)")
    e("s_branch attn_ldw")
    e.label("attn_ldw16")
    e("s_waitcnt vmcnt(8)")
    e("s_branch attn_ldw")
    e.label("attn_ldw32")
    e("s_waitcnt vmcnt(16)")
    e.label("attn_ldw")
    e("s_barrier")
    e(f"s_add_u32 s{S_T2}, s{S_CNT}, 3")
    e(f"s_cmp_ge_u32 s{S_T2}, 16")
    e("s_cbranch_scc1 attn_ldskip")
    tile_issue()
    e.label("attn_ldskip")
    e(f"s_add_u32 s{S_CNT}, s{S_CNT}, 1")
    e(f"s_cmp_lt_u32 s{S_CNT}, 16")
    e("s_cbranch_scc1 attn_ldloop")
    e("s_barrier")
    e("s_barrier")
    e.label("attn_end")
    e("s_endpgm")

def gen_oproj(e):
    name = "oproj_kernel"
    e.raw(f".globl {name}")
    e.raw(".p2align 8")
    e.raw(f".type {name},@function")
    e.label(name)
    SRD_O, SRD_W, SRD_OUT = 20, 24, 28
    S_WAVE, S_MB, S_NB, S_T0, S_T1, S_SOFF, S_KO, S_CNT, S_OOFF = 40, 41, 42, 43, 44, 46, 47, 49, 50
    V_LANE = 1
    V_T0, V_T1, V_T2, V_T3 = 2, 3, 4, 5
    V_WD = 6
    V_WA = 8
    V_OA = 10
    V_OUT = 13
    V_AF = 16
    V_ACC = 64
    V_BF = 128
    NS = 4
    AHEAD = 3
    NCH = 16
    L = f"v{V_LANE}"
    T0, T1, T2, T3 = (f"v{x}" for x in (V_T0, V_T1, V_T2, V_T3))
    e("s_cmp_ge_u32 s2, 144")
    e("s_cbranch_scc1 oproj_end")
    e("s_load_dwordx4 s[4:7], s[0:1], 32")
    e("s_load_dwordx2 s[16:17], s[0:1], 56")
    stamp(e, 0)
    e(f"v_and_b32 {L}, 63, v0")
    e(f"v_lshrrev_b32 v2, 6, v0")
    e("s_nop 0")
    e(f"v_readfirstlane_b32 s{S_WAVE}, v2")
    e(f"s_and_b32 s{S_MB}, s2, 15")
    e(f"s_lshr_b32 s{S_NB}, s2, 4")
    e("s_waitcnt lgkmcnt(0)")
    e(f"s_mov_b32 s{SRD_O}, s16")
    e(f"s_mov_b32 s{SRD_O+1}, s17")
    e(f"s_mov_b32 s{SRD_O+2}, 0x800000")
    e(f"s_mov_b32 s{SRD_O+3}, 0x20000")
    e(f"s_mov_b32 s{SRD_W}, s4")
    e(f"s_mov_b32 s{SRD_W+1}, s5")
    e(f"s_mov_b32 s{SRD_W+2}, {4096*1152}")
    e(f"s_mov_b32 s{SRD_W+3}, 0x20000")
    e(f"s_mov_b32 s{SRD_OUT}, s6")
    e(f"s_mov_b32 s{SRD_OUT+1}, s7")
    e(f"s_mov_b32 s{SRD_OUT+2}, {1024*1152}")
    e(f"s_mov_b32 s{SRD_OUT+3}, 0x20000")
    e(f"v_lshrrev_b32 {T0}, 3, {L}")
    e(f"s_movk_i32 s{S_T0}, 1152")
    e(f"v_mul_lo_u32 {T0}, {T0}, s{S_T0}")
    e(f"v_and_b32 {T1}, 7, {L}")
    e(f"v_bfe_u32 {T2}, {L}, 4, 1")
    e(f"v_lshlrev_b32 {T2}, 2, {T2}")
    e(f"v_xor_b32 {T1}, {T1}, {T2}")
    e(f"v_lshl_add_u32 v{V_WD}, {T1}, 4, {T0}")
    e(f"s_mul_i32 s{S_KO}, s{S_WAVE}, {512*1152}")
    e(f"s_lshl_b32 s{S_T0}, s{S_NB}, 7")
    e(f"s_add_u32 s{S_KO}, s{S_KO}, s{S_T0}")
    e(f"s_lshl_b32 s{S_T0}, s{S_MB}, 19")
    e(f"s_lshl_b32 s{S_T1}, s{S_WAVE}, 15")
    e(f"s_add_u32 s{S_T0}, s{S_T0}, s{S_T1}")
    e(f"v_lshlrev_b32 {T0}, 4, {L}")
    e(f"v_add_u32 v{V_OA}, s{S_T0}, {T0}")
    e(f"v_add_u32 v{V_OA+1}, 0x40000, v{V_OA}")
    S_M0W = 48
    e(f"s_lshl_b32 s{S_M0W}, s{S_WAVE}, 14")
    e(f"s_mov_b32 s{S_SOFF}, s{S_KO}")
    e(f"s_mov_b32 s{S_OOFF}, 0")
    def issue(slot):
        for j in range(4):
            e(f"s_add_u32 m0, s{S_M0W}, {slot*4096 + j*1024}")
            e("s_nop 0")
            e(f"buffer_load_dwordx4 v{V_WD}, {sr(SRD_W,4)}, s{S_SOFF} offen{NT_W} lds")
            e(f"s_add_u32 s{S_SOFF}, s{S_SOFF}, {8*1152}")
        for mb2 in range(2):
            for st in range(2):
                f = V_BF + 16*slot + 8*mb2 + 4*st
                e(f"buffer_load_dwordx4 {vr(f,4)}, v{V_OA+mb2}, {sr(SRD_O,4)}, s{S_OOFF} offen offset:{st*1024}{NT_W}")
        e(f"s_add_u32 s{S_OOFF}, s{S_OOFF}, 2048")
    for c in range(AHEAD):
        issue(c)
    e(f"v_lshrrev_b32 {T0}, 5, {L}")
    e(f"v_bfe_u32 {T1}, {L}, 2, 2")
    e(f"v_lshl_add_u32 {T2}, {T0}, 3, {T1}")
    e(f"v_lshlrev_b32 {T2}, 7, {T2}")
    e(f"v_bfe_u32 {T0}, {L}, 4, 1")
    e(f"v_bfe_u32 {T3}, {L}, 1, 1")
    e(f"v_lshl_add_u32 {T0}, {T0}, 1, {T3}")
    e(f"v_lshl_add_u32 {T2}, {T0}, 4, {T2}")
    e(f"v_and_b32 {T3}, 1, {L}")
    e(f"v_lshl_add_u32 {T2}, {T3}, 3, {T2}")
    e(f"v_add_u32 {T2}, s{S_M0W}, {T2}")
    e(f"v_bfe_u32 {T1}, {L}, 3, 1")
    for nb2 in range(2):
        e(f"v_xor_b32 {T3}, {nb2}, {T1}")
        e(f"v_lshl_add_u32 v{V_WA+nb2}, {T3}, 6, {T2}")
    for i in range(64):
        e(f"v_mov_b32 v{V_ACC+i}, 0")
    def rda(slot, par):
        ab = V_AF + 16*par
        for nb2 in range(2):
            for st in range(2):
                for u in range(2):
                    e(f"ds_read_b64_tr_b16 {vr(ab+8*nb2+4*st+2*u,2)}, v{V_WA+nb2} offset:{slot*4096 + (st*16+4*u)*128}")
    stamp(e, 1)
    e(f"s_waitcnt vmcnt({8*(AHEAD-1)})")
    rda(0, 0)
    def body(c, cmod):
        slot = cmod % NS
        par = cmod % 2
        e("s_waitcnt lgkmcnt(0)")
        if c + AHEAD < NCH:
            issue((slot + AHEAD) % NS)
        if c + 1 < NCH:
            n_after = min(NCH - 1, c + AHEAD) - (c + 1)
            e(f"s_waitcnt vmcnt({8*n_after})")
            rda((slot + 1) % NS, 1 - par)
        ab = V_AF + 16*par
        for st in range(2):
            for nb2 in range(2):
                for mb2 in range(2):
                    acc = vr(V_ACC + 32*nb2 + 16*mb2, 16)
                    e(f"v_mfma_f32_32x32x16_bf16 {acc}, {vr(ab+8*nb2+4*st,4)}, {vr(V_BF+16*slot+8*mb2+4*st,4)}, {acc}")
    e(f"s_mov_b32 s{S_CNT}, 0")
    e.label("oproj_loop")
    for cm in range(4):
        body(cm, cm)
    e(f"s_add_u32 s{S_CNT}, s{S_CNT}, 1")
    e(f"s_cmp_lt_u32 s{S_CNT}, 3")
    e("s_cbranch_scc1 oproj_loop")
    stamp(e, 2)
    for c in range(12, 16):
        body(c, c)
    stamp(e, 3)
    e.nop(16)
    e("s_barrier")
    e(f"v_lshlrev_b32 {T0}, 4, {L}")
    e(f"v_add_u32 {T1}, s{S_M0W}, {T0}")
    for i in range(16):
        e(f"ds_write_b128 {T1}, {vr(V_ACC+4*i,4)} offset:{i*1024}")
    e("s_waitcnt lgkmcnt(0)")
    e("s_barrier")
    e(f"s_lshl_b32 s{S_T0}, s{S_WAVE}, 11")
    e(f"v_add_u32 {T1}, s{S_T0}, {T0}")
    e(f"v_add_u32 {T2}, 0x10000, {T1}")
    for w in range(8):
        for i in range(2):
            e(f"ds_read_b128 {vr(V_BF+8*w+4*i,4)}, {T1 if w < 4 else T2} offset:{(w%4)*16384 + i*1024}")
    e("s_waitcnt lgkmcnt(0)")
    for stp in (4, 2, 1):
        for w in range(stp):
            for i in range(0, 8, 2):
                e(f"v_pk_add_f32 {vr(V_BF+8*w+i,2)}, {vr(V_BF+8*w+i,2)}, {vr(V_BF+8*(w+stp)+i,2)}")
    e(f"s_lshl_b32 s{S_T0}, s{S_MB}, 6")
    e(f"s_bfe_u32 s{S_T1}, s{S_WAVE}, 0x10001")
    e(f"s_lshl_b32 s{S_T1}, s{S_T1}, 5")
    e(f"s_add_u32 s{S_T0}, s{S_T0}, s{S_T1}")
    e(f"v_and_b32 {T0}, 31, {L}")
    e(f"v_add_u32 {T0}, s{S_T0}, {T0}")
    e(f"s_movk_i32 s{S_T1}, 1152")
    e(f"v_mul_lo_u32 {T0}, {T0}, s{S_T1}")
    e(f"s_lshl_b32 s{S_T0}, s{S_NB}, 7")
    e(f"s_lshr_b32 s{S_T1}, s{S_WAVE}, 2")
    e(f"s_lshl_b32 s{S_T1}, s{S_T1}, 6")
    e(f"s_add_u32 s{S_T0}, s{S_T0}, s{S_T1}")
    e(f"s_and_b32 s{S_T1}, s{S_WAVE}, 1")
    e(f"s_lshl_b32 s{S_T1}, s{S_T1}, 5")
    e(f"s_add_u32 s{S_T0}, s{S_T0}, s{S_T1}")
    e(f"v_add_u32 {T0}, s{S_T0}, {T0}")
    e(f"v_lshrrev_b32 {T1}, 5, {L}")
    e(f"v_lshl_add_u32 v{V_OUT}, {T1}, 4, {T0}")
    q = V_AF
    for j in range(4):
        e(f"v_cvt_pk_bf16_f32 v{q+j}, v{V_BF+2*j}, v{V_BF+2*j+1}")
    e("s_nop 1")
    e(f"v_permlane32_swap_b32 v{q}, v{q+2}")
    e(f"v_permlane32_swap_b32 v{q+1}, v{q+3}")
    e("s_nop 1")
    e(f"buffer_store_dwordx4 {vr(q,4)}, v{V_OUT}, {sr(SRD_OUT,4)}, 0 offen")
    if STAMP:
        e("s_waitcnt vmcnt(0)")
    stamp(e, 4)
    stamp_flush(e, 5, S_WAVE, "o")
    e.label("oproj_end")
    e("s_endpgm")

def desc(name, nfv, acc, sgpr=102):
    return f""".amdhsa_kernel {name}
  .amdhsa_next_free_vgpr {nfv}
  .amdhsa_next_free_sgpr {sgpr}
  .amdhsa_accum_offset {acc}
  .amdhsa_group_segment_fixed_size 0
  .amdhsa_kernarg_size 64
  .amdhsa_user_sgpr_count 2
  .amdhsa_user_sgpr_kernarg_segment_ptr 1
  .amdhsa_system_sgpr_workgroup_id_x 1
.end_amdhsa_kernel
"""

def main():
    hdr = open("standalone__gqa_block_cached__near_ridge.s.ref").read().split("; Override launch")[0]
    e = Em()
    gen_attn(e)
    gen_oproj(e)
    out = hdr
    out += "; @launch kernel=attn_kernel grid=(256,1,1) block=(768,1,1) lds=163840\n"
    out += "; @launch kernel=oproj_kernel grid=(144,1,1) block=(512,1,1) lds=131072\n"
    out += '.amdgcn_target "amdgcn-amd-amdhsa--gfx950"\n.text\n'
    out += e.text()
    out += '.section .rodata,"a"\n.p2align 6\n'
    out += desc("attn_kernel", 168, 168)
    out += ".p2align 6\n"
    out += desc("oproj_kernel", 192, 192)
    path = sys.argv[1] if len(sys.argv) > 1 else "standalone__gqa_block_cached__near_ridge.s"
    open(path, "w").write(out)

main()
```

```python
import sys, struct

class Em:
    def __init__(self):
        self.lines = []
    def __call__(self, s):
        self.lines.append("    " + s)
    def label(self, s):
        self.lines.append(s + ":")
    def raw(self, s):
        self.lines.append(s)
    def nop(self, n):
        while n > 0:
            k = min(n, 16)
            self(f"s_nop {k-1}")
            n -= k
    def text(self):
        return "\n".join(self.lines) + "\n"

def vr(b, n=1):
    return f"v{b}" if n == 1 else f"v[{b}:{b+n-1}]"
def sr(b, n=1):
    return f"s{b}" if n == 1 else f"s[{b}:{b+n-1}]"
def f32hex(x):
    return "0x%08x" % struct.unpack("<I", struct.pack("<f", x))[0]

LOG2E = 1.4426950408889634
SCALE = 128 ** -0.5
OPT = sys.argv[2] if len(sys.argv) > 2 else ""
STAMP = "stamp" in OPT
NT_KV = " nt"
NT_W = " nt" if "ntw" in OPT else ""

def stamp(e, idx):
    if not STAMP: return
    e("s_memtime s[60:61]")
    e("s_waitcnt lgkmcnt(0)")
    e(f"s_mov_b32 s{62+idx}, s60")

def stamp_flush(e, n, wavereg, tag):
    if not STAMP: return
    e("s_load_dwordx2 s[56:57], s[0:1], 48")
    e("s_waitcnt lgkmcnt(0)")
    e("s_mov_b32 s52, s56")
    e("s_mov_b32 s53, s57")
    e("s_mov_b32 s54, 256")
    e("s_mov_b32 s55, 0x20000")
    e("s_cmp_lg_u32 s2, 5")
    e(f"s_cbranch_scc1 stamp_skip_{tag}")
    e(f"s_lshl_b32 s58, s{wavereg}, 5")
    for i in range(n):
        e(f"s_sub_u32 s59, s{62+i}, s62")
        e("v_mov_b32 v2, s59")
        e(f"v_mov_b32 v3, s58")
        e(f"buffer_store_dword v2, v3, s[52:55], 0 offen offset:{4*i}")
    e.label(f"stamp_skip_{tag}")

def gen_attn(e):
    name = "attn_kernel"
    e.raw(f".globl {name}")
    e.raw(".p2align 8")
    e.raw(f".type {name},@function")
    e.label(name)
    S_X, S_K, S_V, S_WQ, S_WS = 4, 6, 8, 10, 16
    SRD_K, SRD_X, SRD_WQ, SRD_O = 20, 28, 32, 36
    S_WAVE, S_HKV, S_B = 40, 41, 42
    S_T0, S_T1, S_T2, S_SOFF, S_C = 43, 44, 45, 46, 47
    S_CNT, S_STG, S_ROT, S_XOFF, S_QB, S_KH = 48, 49, 50, 51, 72, 73
    V_LANE = 1
    V_T0, V_T1, V_T2, V_T3 = 2, 3, 4, 5
    V_KW = 6
    V_VW = 14
    V_M, V_L = 18, 19
    V_AL2 = 20
    V_OO = 22
    V_XO = 23
    V_WA = 6
    V_D = 6
    V_O = 24
    V_S = 88
    V_Q = 104
    V_F = 136
    V_P = 160
    V_XF = V_O + 32
    STAGE = 32768
    WQ0 = 98304
    QX0 = 131072
    NCH = 18

    e("s_cmp_ge_u32 s2, 256")
    e("s_cbranch_scc1 attn_end")
    e("s_load_dwordx4 s[4:7], s[0:1], 0")
    e("s_load_dwordx4 s[8:11], s[0:1], 16")
    e("s_load_dwordx2 s[16:17], s[0:1], 56")
    stamp(e, 0)
    e(f"v_and_b32 v{V_LANE}, 63, v0")
    e(f"v_lshrrev_b32 v2, 6, v0")
    e("s_nop 0")
    e(f"v_readfirstlane_b32 s{S_WAVE}, v2")
    e(f"s_and_b32 s{S_B}, s2, 15")
    e(f"s_lshr_b32 s{S_HKV}, s2, 4")
    e(f"s_add_u32 s{S_ROT}, s{S_HKV}, s{S_B}")
    L = f"v{V_LANE}"
    T0, T1, T2, T3 = (f"v{x}" for x in (V_T0, V_T1, V_T2, V_T3))
    e("s_waitcnt lgkmcnt(0)")
    e(f"s_cmp_ge_u32 s{S_WAVE}, 10")
    e("s_cbranch_scc1 attn_wqloader")
    e(f"s_cmp_ge_u32 s{S_WAVE}, 8")
    e("s_cbranch_scc1 attn_loader")

    e(f"s_and_b32 s{S_QB}, s{S_WAVE}, 3")
    e(f"s_lshr_b32 s{S_KH}, s{S_WAVE}, 2")
    e(f"s_mul_i32 s{S_T0}, s{S_B}, 73728")
    e(f"s_add_u32 s{SRD_X}, s{S_X}, s{S_T0}")
    e(f"s_addc_u32 s{SRD_X+1}, s{S_X+1}, 0")
    e(f"s_mov_b32 s{SRD_X+2}, 73728")
    e(f"s_mov_b32 s{SRD_X+3}, 0x20000")
    e(f"s_mov_b32 s{SRD_O}, s{S_WS}")
    e(f"s_mov_b32 s{SRD_O+1}, s{S_WS+1}")
    e(f"s_mov_b32 s{SRD_O+2}, 0x800000")
    e(f"s_mov_b32 s{SRD_O+3}, 0x20000")
    e(f"s_and_b32 s{S_T0}, s{S_QB}, 1")
    e(f"s_lshl_b32 s{S_T0}, s{S_T0}, 5")
    e(f"v_and_b32 {T0}, 31, {L}")
    e(f"v_add_u32 {T0}, s{S_T0}, {T0}")
    e(f"s_movk_i32 s{S_T1}, 1152")
    e(f"v_mul_lo_u32 {T0}, {T0}, s{S_T1}")
    e(f"v_lshrrev_b32 {T1}, 5, {L}")
    e(f"v_lshl_add_u32 v{V_XO}, {T1}, 4, {T0}")
    for c in range(3):
        for st in range(2):
            e(f"buffer_load_dwordx4 {vr(V_XF+8*c+4*st,4)}, v{V_XO}, {sr(SRD_X,4)}, 0 offen offset:{c*64+st*32}")
    e(f"v_lshrrev_b32 {T0}, 5, {L}")
    e(f"v_bfe_u32 {T1}, {L}, 2, 2")
    e(f"v_lshl_add_u32 {T2}, {T0}, 3, {T1}")
    e(f"v_lshlrev_b32 {T2}, 9, {T2}")
    e(f"v_bfe_u32 {T0}, {L}, 4, 1")
    e(f"v_bfe_u32 {T3}, {L}, 1, 1")
    e(f"v_lshl_add_u32 {T0}, {T0}, 1, {T3}")
    e(f"v_lshl_add_u32 {T2}, {T0}, 4, {T2}")
    e(f"v_and_b32 {T3}, 1, {L}")
    e(f"v_lshl_add_u32 {T2}, {T3}, 3, {T2}")
    e(f"v_add_u32 {T2}, {WQ0}, {T2}")
    e(f"s_lshr_b32 s{S_T0}, s{S_QB}, 1")
    e(f"s_lshl_b32 s{S_T0}, s{S_T0}, 2")
    e(f"s_lshl_b32 s{S_T1}, s{S_KH}, 1")
    e(f"s_add_u32 s{S_T0}, s{S_T0}, s{S_T1}")
    for d2 in range(2):
        e(f"s_add_u32 s{S_T1}, s{S_T0}, {d2}")
        e(f"v_xor_b32 {T3}, s{S_T1}, {T1}")
        e(f"v_lshl_add_u32 v{V_WA+d2}, {T3}, 6, {T2}")
    e(f"s_and_b32 s{S_T0}, s{S_QB}, 1")
    e(f"s_lshl_b32 s{S_T1}, s{S_B}, 1")
    e(f"s_add_u32 s{S_T0}, s{S_T0}, s{S_T1}")
    e(f"s_lshl_b32 s{S_T0}, s{S_T0}, 18")
    e(f"s_lshl_b32 s{S_T1}, s{S_HKV}, 1")
    e(f"s_lshr_b32 s{S_T2}, s{S_QB}, 1")
    e(f"s_add_u32 s{S_T1}, s{S_T1}, s{S_T2}")
    e(f"s_lshl_b32 s{S_T1}, s{S_T1}, 13")
    e(f"s_add_u32 s{S_T0}, s{S_T0}, s{S_T1}")
    e(f"v_lshlrev_b32 {T0}, 4, {L}")
    e(f"v_add_u32 v{V_OO}, s{S_T0}, {T0}")
    for i in range(32):
        e(f"v_mov_b32 v{V_O+i}, 0")

    def qchunk(slot, issue_next, wait_n):
        e(f"s_waitcnt vmcnt({wait_n})")
        e("s_barrier")
        seq = [(ks, d2) for ks in range(2) for d2 in range(2)]
        for idx, (ks, d2) in enumerate(seq):
            f = V_F + 4*idx
            for u in range(2):
                e(f"ds_read_b64_tr_b16 {vr(f+2*u,2)}, v{V_WA+d2} offset:{slot*16384 + (ks*16+4*u)*512}")
        if issue_next:
            ns = (slot + 3) % 4
            e(f"s_add_u32 s{S_T0}, s{S_CNT}, {slot+3}")
            e(f"s_lshl_b32 s{S_XOFF}, s{S_T0}, 6")
            for st in range(2):
                e(f"buffer_load_dwordx4 {vr(V_XF+8*ns+4*st,4)}, v{V_XO}, {sr(SRD_X,4)}, s{S_XOFF} offen offset:{st*32}")
        for idx, (ks, d2) in enumerate(seq):
            f = V_F + 4*idx
            e(f"s_waitcnt lgkmcnt({2*(3-idx)})")
            acc = vr(V_O + 16*d2, 16)
            e(f"v_mfma_f32_32x32x16_bf16 {acc}, {vr(f,4)}, {vr(V_XF+8*slot+4*ks,4)}, {acc}")
    e(f"s_mov_b32 s{S_CNT}, 0")
    e.label("attn_qloop")
    for slot in range(4):
        qchunk(slot, True, 4)
    e(f"s_add_u32 s{S_CNT}, s{S_CNT}, 4")
    e(f"s_cmp_lt_u32 s{S_CNT}, 12")
    e("s_cbranch_scc1 attn_qloop")
    qchunk(0, True, 4)
    qchunk(1, True, 4)
    qchunk(2, True, 4)
    qchunk(3, False, 4)
    qchunk(0, False, 2)
    qchunk(1, False, 0)
    stamp(e, 1)
    e.nop(16)
    e(f"s_lshl_b32 s{S_T0}, s{S_QB}, 13")
    e(f"s_add_u32 s{S_T0}, s{S_T0}, {QX0}")
    e(f"v_lshlrev_b32 {T0}, 4, {L}")
    e(f"v_add_u32 {T0}, s{S_T0}, {T0}")
    e(f"s_lshl_b32 s{S_T1}, s{S_KH}, 12")
    e(f"v_add_u32 {T1}, s{S_T1}, {T0}")
    for kl in range(4):
        d2, hf = kl // 2, kl % 2
        src = V_O + 16*d2 + 8*hf
        q = V_F + 4*kl
        for j in range(4):
            e(f"v_cvt_pk_bf16_f32 v{q+j}, v{src+2*j}, v{src+2*j+1}")
        e("s_nop 1")
        e(f"v_permlane32_swap_b32 v{q}, v{q+2}")
        e(f"v_permlane32_swap_b32 v{q+1}, v{q+3}")
        e("s_nop 1")
        e(f"ds_write_b128 {T1}, {vr(q,4)} offset:{kl*1024}")
    e("s_waitcnt lgkmcnt(0)")
    e("s_barrier")
    for ks in range(8):
        e(f"ds_read_b128 {vr(V_Q+4*ks,4)}, {T0} offset:{ks*1024}")
    e(f"v_lshrrev_b32 {T0}, 5, {L}")
    e(f"v_and_b32 {T1}, 15, {L}")
    e(f"v_xor_b32 {T0}, {T0}, {T1}")
    e(f"v_and_b32 {T1}, 31, {L}")
    e(f"v_lshlrev_b32 {T1}, 8, {T1}")
    e(f"s_lshl_b32 s{S_T0}, s{S_KH}, 13")
    e(f"v_add_u32 {T1}, s{S_T0}, {T1}")
    for ks in range(8):
        e(f"v_xor_b32 {T2}, {2*ks}, {T0}")
        e(f"v_lshl_add_u32 v{V_KW+ks}, {T2}, 4, {T1}")
    e(f"v_lshrrev_b32 {T0}, 5, {L}")
    e(f"v_bfe_u32 {T1}, {L}, 2, 2")
    e(f"v_lshl_add_u32 {T2}, {T0}, 2, {T1}")
    e(f"v_lshlrev_b32 {T2}, 8, {T2}")
    e(f"s_add_u32 s{S_T0}, s{S_T0}, 16384")
    e(f"v_add_u32 {T2}, s{S_T0}, {T2}")
    e(f"v_bfe_u32 {T0}, {L}, 4, 1")
    e(f"v_bfe_u32 {T3}, {L}, 1, 1")
    e(f"v_lshl_add_u32 {T0}, {T0}, 1, {T3}")
    e(f"v_lshl_add_u32 {T2}, {T0}, 4, {T2}")
    e(f"v_and_b32 {T3}, 1, {L}")
    e(f"v_lshl_add_u32 {T2}, {T3}, 3, {T2}")
    for db in range(4):
        e(f"v_xor_b32 {T3}, {db}, {T1}")
        e(f"v_lshl_add_u32 v{V_VW+db}, {T3}, 6, {T2}")
    e(f"v_mov_b32 v{V_M}, 0xff800000")
    e(f"v_mov_b32 v{V_L}, 0")
    for i in range(64):
        e(f"v_mov_b32 v{V_O+i}, 0")
    e(f"s_mov_b32 s{S_C}, {f32hex(SCALE*LOG2E)}")
    e(f"s_mov_b32 s{S_CNT}, 0")
    e(f"s_mov_b32 s{S_T2}, 0x1ffff")
    e("s_waitcnt lgkmcnt(0)")

    e.label("attn_loop")
    e("s_barrier")
    def rdk(ks):
        f = V_F + 4*(ks % 6)
        e(f"ds_read_b128 {vr(f,4)}, v{V_KW+ks}")
    for ks in range(6):
        rdk(ks)
    seqv = [(ks, db) for ks in range(2) for db in range(4)]
    def rdv(idx):
        ks, db = seqv[idx]
        f = V_F + 4*((8 + idx) % 6)
        for u in range(2):
            e(f"ds_read_b64_tr_b16 {vr(f+2*u,2)}, v{V_VW+db} offset:{ks*4096 + u*2048}")
    issued = 6
    for ks in range(8):
        f = V_F + 4*(ks % 6)
        later_k = max(0, min(8, issued) - ks - 1)
        later_v = max(0, issued - 8)
        e(f"s_waitcnt lgkmcnt({later_k + 2*later_v})")
        acc = vr(V_S, 16)
        cc = "0" if ks == 0 else acc
        e(f"v_mfma_f32_32x32x16_bf16 {acc}, {vr(f,4)}, {vr(V_Q+4*ks,4)}, {cc}")
        if issued < 8:
            rdk(issued)
        else:
            rdv(issued - 8)
        issued += 1
    for i in range(8):
        e(f"v_add_u32 v{V_KW+i}, 0x8000, v{V_KW+i}")
        e(f"v_and_b32 v{V_KW+i}, s{S_T2}, v{V_KW+i}")
    S = lambda i: f"v{V_S+i}"
    e(f"v_max3_f32 {T0}, {S(0)}, {S(1)}, {S(2)}")
    e(f"v_max3_f32 {T1}, {S(3)}, {S(4)}, {S(5)}")
    e(f"v_max3_f32 {T0}, {T0}, {S(6)}, {S(7)}")
    e(f"v_max3_f32 {T1}, {T1}, {S(8)}, {S(9)}")
    e(f"v_max3_f32 {T0}, {T0}, {S(10)}, {S(11)}")
    e(f"v_max3_f32 {T1}, {T1}, {S(12)}, {S(13)}")
    e(f"v_max3_f32 {T0}, {T0}, {S(14)}, {S(15)}")
    e(f"v_max_f32 {T0}, {T0}, {T1}")
    e(f"v_mov_b32 {T1}, {T0}")
    e("s_nop 1")
    e(f"v_permlane32_swap_b32 {T0}, {T1}")
    e("s_nop 1")
    e(f"v_max3_f32 {T0}, {T0}, {T1}, v{V_M}")
    e(f"v_cmp_neq_f32 vcc, {T0}, v{V_M}")
    e(f"v_sub_f32 {T1}, v{V_M}, {T0}")
    e(f"v_mul_f32 {T1}, s{S_C}, {T1}")
    e(f"v_exp_f32 v{V_AL2}, {T1}")
    e(f"v_mov_b32 v{V_M}, {T0}")
    e(f"v_mul_f32 {T0}, s{S_C}, {T0}")
    e(f"v_mov_b32 v{V_AL2+1}, v{V_AL2}")
    for i in range(16):
        e(f"v_fma_f32 {S(i)}, {S(i)}, s{S_C}, -{T0}")
    for i in range(16):
        e(f"v_exp_f32 {S(i)}, {S(i)}")
    e("s_cbranch_vccz attn_noresc")
    e(f"v_mul_f32 v{V_L}, v{V_L}, v{V_AL2}")
    for i in range(0, 64, 2):
        e(f"v_pk_mul_f32 {vr(V_O+i,2)}, {vr(V_O+i,2)}, {vr(V_AL2,2)}")
    e.label("attn_noresc")
    e(f"v_add_f32 {T1}, {S(0)}, {S(1)}")
    e(f"v_add_f32 {T2}, {S(2)}, {S(3)}")
    for i in range(4, 16, 2):
        tt = T1 if (i // 2) % 2 == 0 else T2
        e(f"v_add_f32 {tt}, {tt}, {S(i)}")
        e(f"v_add_f32 {tt}, {tt}, {S(i+1)}")
    e(f"v_add_f32 {T1}, {T1}, {T2}")
    e(f"v_add_f32 v{V_L}, v{V_L}, {T1}")
    for ks in range(2):
        for j in range(4):
            e(f"v_cvt_pk_bf16_f32 v{V_P+4*ks+j}, {S(8*ks+2*j)}, {S(8*ks+2*j+1)}")
    e("s_nop 1")
    for idx in range(8):
        ks, db = seqv[idx]
        f = V_F + 4*((8 + idx) % 6)
        later_v = max(0, (issued - 8) - idx - 1)
        e(f"s_waitcnt lgkmcnt({2*later_v})")
        acc = vr(V_O + 16*db, 16)
        e(f"v_mfma_f32_32x32x16_bf16 {acc}, {vr(f,4)}, {vr(V_P+4*ks,4)}, {acc}")
        if issued < 16:
            rdv(issued - 8)
            issued += 1
    for i in range(4):
        e(f"v_add_u32 v{V_VW+i}, 0x8000, v{V_VW+i}")
        e(f"v_and_b32 v{V_VW+i}, s{S_T2}, v{V_VW+i}")
    e(f"s_add_u32 s{S_CNT}, s{S_CNT}, 1")
    e(f"s_cmp_lt_u32 s{S_CNT}, 16")
    e("s_cbranch_scc1 attn_loop")
    stamp(e, 2)
    e.nop(16)
    e(f"v_mov_b32 {T0}, v{V_L}")
    e(f"v_mov_b32 {T1}, v{V_L}")
    e("s_nop 1")
    e(f"v_permlane32_swap_b32 {T0}, {T1}")
    e("s_nop 1")
    e(f"v_add_f32 v{V_L}, {T0}, {T1}")
    e("s_barrier")
    e(f"s_mul_i32 s{S_T0}, s{S_QB}, 17408")
    e(f"v_lshlrev_b32 {T0}, 4, {L}")
    e(f"v_add_u32 {T0}, s{S_T0}, {T0}")
    e(f"v_lshlrev_b32 {T1}, 3, {L}")
    e(f"v_add_u32 {T1}, s{S_T0}, {T1}")
    e(f"s_cmp_eq_u32 s{S_KH}, 0")
    e("s_cbranch_scc1 attn_merge0")
    for i in range(16):
        e(f"ds_write_b128 {T0}, {vr(V_O+4*i,4)} offset:{i*1024}")
    e(f"ds_write_b64 {T1}, {vr(V_M,2)} offset:16384")
    e("s_waitcnt lgkmcnt(0)")
    e("s_barrier")
    e("s_endpgm")
    e.label("attn_merge0")
    e("s_barrier")
    e(f"ds_read_b64 {vr(V_P,2)}, {T1} offset:16384")
    for i in range(8):
        e(f"ds_read_b128 {vr(V_Q+4*i,4)}, {T0} offset:{i*1024}")
    e("s_waitcnt lgkmcnt(8)")
    e(f"v_max_f32 {T2}, v{V_M}, v{V_P}")
    e(f"v_sub_f32 {T3}, v{V_M}, {T2}")
    e(f"v_mul_f32 {T3}, s{S_C}, {T3}")
    e(f"v_exp_f32 v{V_AL2}, {T3}")
    e(f"v_sub_f32 {T3}, v{V_P}, {T2}")
    e(f"v_mul_f32 {T3}, s{S_C}, {T3}")
    e(f"v_exp_f32 v{V_P+2}, {T3}")
    e("s_nop 0")
    e(f"v_mul_f32 v{V_L}, v{V_L}, v{V_AL2}")
    e(f"v_fma_f32 v{V_L}, v{V_P+1}, v{V_P+2}, v{V_L}")
    e(f"v_rcp_f32 {T3}, v{V_L}")
    e("s_nop 0")
    e(f"v_mul_f32 v{V_AL2}, v{V_AL2}, {T3}")
    e(f"v_mul_f32 v{V_P+2}, v{V_P+2}, {T3}")
    e(f"v_mov_b32 v{V_AL2+1}, v{V_AL2}")
    e(f"v_mov_b32 v{V_P+3}, v{V_P+2}")
    e(f"s_movk_i32 s{S_T0}, 4096")
    e(f"s_mov_b32 s{S_T1}, 0")
    for half in range(2):
        if half == 1:
            for i in range(8):
                e(f"ds_read_b128 {vr(V_Q+4*i,4)}, {T0} offset:{(8+i)*1024}")
        e("s_waitcnt lgkmcnt(0)")
        for i in range(0, 32, 2):
            o = V_O + 32*half + i
            e(f"v_pk_mul_f32 {vr(o,2)}, {vr(o,2)}, {vr(V_AL2,2)}")
            e(f"v_pk_fma_f32 {vr(o,2)}, {vr(V_Q+i,2)}, {vr(V_P+2,2)}, {vr(o,2)}")
        for d2 in range(2):
            db = 2*half + d2
            for pr in range(2):
                src = V_O + 16*db + 8*pr
                q = V_F + 4*((2*db+pr) % 6)
                for j in range(4):
                    e(f"v_cvt_pk_bf16_f32 v{q+j}, v{src+2*j}, v{src+2*j+1}")
                e("s_nop 1")
                e(f"v_permlane32_swap_b32 v{q}, v{q+2}")
                e(f"v_permlane32_swap_b32 v{q+1}, v{q+3}")
                e("s_nop 1")
                e(f"buffer_store_dwordx4 {vr(q,4)}, v{V_OO}, {sr(SRD_O,4)}, s{S_T0 if db >= 2 else S_T1} offen offset:{((2*db+pr)%4)*1024}")
    if STAMP:
        e("s_waitcnt vmcnt(0)")
    stamp(e, 3)
    stamp_flush(e, 4, S_WAVE, "c")
    e("s_endpgm")

    e.label("attn_loader")
    e(f"s_lshl_b32 s{S_T0}, s{S_B}, 4")
    e(f"s_add_u32 s{S_T0}, s{S_T0}, s{S_HKV}")
    e(f"s_lshl_b32 s{S_T0}, s{S_T0}, 18")
    e(f"s_cmp_eq_u32 s{S_WAVE}, 8")
    e(f"s_cselect_b32 s{S_T1}, s{S_K}, s{S_V}")
    e(f"s_cselect_b32 s{S_T2}, s{S_K+1}, s{S_V+1}")
    e(f"s_add_u32 s{SRD_K}, s{S_T1}, s{S_T0}")
    e(f"s_addc_u32 s{SRD_K+1}, s{S_T2}, 0")
    e(f"s_mov_b32 s{SRD_K+2}, 0x40000")
    e(f"s_mov_b32 s{SRD_K+3}, 0x20000")
    e(f"v_lshrrev_b32 {T0}, 4, {L}")
    e(f"v_and_b32 {T1}, 15, {L}")
    e(f"v_lshlrev_b32 {T2}, 8, {T0}")
    e(f"s_cmp_eq_u32 s{S_WAVE}, 8")
    e(f"s_cbranch_scc0 attn_ldv")
    e(f"v_xor_b32 {T1}, {T1}, {T0}")
    for i in range(4):
        e(f"v_xor_b32 {T3}, {4*i}, {T1}")
        e(f"v_lshl_add_u32 v{V_D+i}, {T3}, 4, {T2}")
    e(f"s_mov_b32 s{S_XOFF}, 0")
    e("s_branch attn_ld2")
    e.label("attn_ldv")
    e(f"v_lshlrev_b32 {T3}, 2, {T0}")
    e(f"v_xor_b32 {T1}, {T1}, {T3}")
    for i in range(4):
        e(f"v_lshl_add_u32 v{V_D+i}, {T1}, 4, {T2}")
    e(f"s_mov_b32 s{S_XOFF}, 16384")
    e.label("attn_ld2")
    def tile_issue():
        e(f"s_add_u32 s{S_SOFF}, s{S_ROT}, s{S_T2}")
        e(f"s_and_b32 s{S_SOFF}, s{S_SOFF}, 15")
        e(f"s_lshl_b32 s{S_SOFF}, s{S_SOFF}, 14")
        e(f"s_and_b32 s{S_STG}, s{S_T2}, 3")
        e(f"s_lshl_b32 s{S_STG}, s{S_STG}, 15")
        e(f"s_add_u32 s{S_STG}, s{S_STG}, s{S_XOFF}")
        for g in range(4):
            e(f"s_mov_b32 m0, s{S_STG}")
            e(f"s_add_u32 s{S_STG}, s{S_STG}, 4096")
            for i in range(4):
                e(f"buffer_load_dwordx4 v{V_D+i}, {sr(SRD_K,4)}, s{S_SOFF} offen offset:{i*1024}{NT_KV} lds")
            e(f"s_add_u32 s{S_SOFF}, s{S_SOFF}, 4096")
    e(f"s_mov_b32 s{S_T2}, 0")
    e.label("attn_ldpro")
    tile_issue()
    e(f"s_add_u32 s{S_T2}, s{S_T2}, 1")
    e(f"s_cmp_lt_u32 s{S_T2}, 3")
    e("s_cbranch_scc1 attn_ldpro")
    e(f"s_mov_b32 s{S_CNT}, 0")
    e.label("attn_ldbar")
    e("s_barrier")
    e(f"s_add_u32 s{S_CNT}, s{S_CNT}, 1")
    e(f"s_cmp_lt_u32 s{S_CNT}, {NCH+1}")
    e("s_cbranch_scc1 attn_ldbar")
    e(f"s_mov_b32 s{S_CNT}, 0")
    e.label("attn_ldloop")
    e(f"s_cmp_lt_u32 s{S_CNT}, 14")
    e("s_cbranch_scc1 attn_ldw32")
    e(f"s_cmp_eq_u32 s{S_CNT}, 14")
    e("s_cbranch_scc1 attn_ldw16")
    e("s_waitcnt vmcnt(0)")
    e("s_branch attn_ldw")
    e.label("attn_ldw16")
    e("s_waitcnt vmcnt(16)")
    e("s_branch attn_ldw")
    e.label("attn_ldw32")
    e("s_waitcnt vmcnt(32)")
    e.label("attn_ldw")
    e("s_barrier")
    e(f"s_add_u32 s{S_T2}, s{S_CNT}, 3")
    e(f"s_cmp_ge_u32 s{S_T2}, 16")
    e("s_cbranch_scc1 attn_ldskip")
    tile_issue()
    e.label("attn_ldskip")
    e(f"s_add_u32 s{S_CNT}, s{S_CNT}, 1")
    e(f"s_cmp_lt_u32 s{S_CNT}, 16")
    e("s_cbranch_scc1 attn_ldloop")
    e("s_barrier")
    e("s_barrier")
    e("s_endpgm")

    e.label("attn_wqloader")
    e(f"s_lshl_b32 s{S_T0}, s{S_HKV}, 9")
    e(f"s_add_u32 s{SRD_WQ}, s{S_WQ}, s{S_T0}")
    e(f"s_addc_u32 s{SRD_WQ+1}, s{S_WQ+1}, 0")
    e(f"s_sub_u32 s{SRD_WQ+2}, {576*8192}, s{S_T0}")
    e(f"s_mov_b32 s{SRD_WQ+3}, 0x20000")
    e(f"v_lshrrev_b32 {T0}, 5, {L}")
    e(f"v_and_b32 {T1}, 31, {L}")
    e(f"v_lshlrev_b32 {T2}, 13, {T0}")
    for odd in range(2):
        e(f"v_add_u32 {T3}, {2*odd}, {T0}")
        e(f"v_lshlrev_b32 {T3}, 2, {T3}")
        e(f"v_xor_b32 {T3}, {T3}, {T1}")
        e(f"v_lshl_add_u32 v{V_D+odd}, {T3}, 4, {T2}")
    S_WQR, S_WQL = 52, 53
    e(f"s_sub_u32 s{S_T0}, s{S_WAVE}, 10")
    e(f"s_lshl_b32 s{S_WQR}, s{S_T0}, 17")
    e(f"s_lshl_b32 s{S_WQL}, s{S_T0}, 13")
    e(f"s_add_u32 s{S_WQL}, s{S_WQL}, {WQ0}")
    def wq_issue():
        e(f"s_lshl_b32 s{S_SOFF}, s{S_T2}, 18")
        e(f"s_add_u32 s{S_SOFF}, s{S_SOFF}, s{S_WQR}")
        e(f"s_and_b32 s{S_STG}, s{S_T2}, 3")
        e(f"s_lshl_b32 s{S_STG}, s{S_STG}, 14")
        e(f"s_add_u32 s{S_STG}, s{S_STG}, s{S_WQL}")
        for j in range(8):
            e(f"s_mov_b32 m0, s{S_STG}")
            e(f"s_add_u32 s{S_STG}, s{S_STG}, 1024")
            e(f"buffer_load_dwordx4 v{V_D+(j%2)}, {sr(SRD_WQ,4)}, s{S_SOFF} offen{NT_W} lds")
            e(f"s_add_u32 s{S_SOFF}, s{S_SOFF}, 16384")
    e(f"s_mov_b32 s{S_T2}, 0")
    e.label("attn_wqpro")
    wq_issue()
    e(f"s_add_u32 s{S_T2}, s{S_T2}, 1")
    e(f"s_cmp_lt_u32 s{S_T2}, 3")
    e("s_cbranch_scc1 attn_wqpro")
    e(f"s_mov_b32 s{S_CNT}, 0")
    e.label("attn_wqloop")
    e(f"s_cmp_lt_u32 s{S_CNT}, 16")
    e("s_cbranch_scc1 attn_wqw16")
    e(f"s_cmp_eq_u32 s{S_CNT}, 16")
    e("s_cbranch_scc1 attn_wqw8")
    e("s_waitcnt vmcnt(0)")
    e("s_branch attn_wqw")
    e.label("attn_wqw8")
    e("s_waitcnt vmcnt(8)")
    e("s_branch attn_wqw")
    e.label("attn_wqw16")
    e("s_waitcnt vmcnt(16)")
    e.label("attn_wqw")
    e("s_barrier")
    e(f"s_add_u32 s{S_T2}, s{S_CNT}, 3")
    e(f"s_cmp_ge_u32 s{S_T2}, {NCH}")
    e("s_cbranch_scc1 attn_wqskip")
    wq_issue()
    e.label("attn_wqskip")
    e(f"s_add_u32 s{S_CNT}, s{S_CNT}, 1")
    e(f"s_cmp_lt_u32 s{S_CNT}, {NCH}")
    e("s_cbranch_scc1 attn_wqloop")
    e(f"s_mov_b32 s{S_CNT}, 0")
    e.label("attn_wqbar")
    e("s_barrier")
    e(f"s_add_u32 s{S_CNT}, s{S_CNT}, 1")
    e(f"s_cmp_lt_u32 s{S_CNT}, 19")
    e("s_cbranch_scc1 attn_wqbar")
    e.label("attn_end")
    e("s_endpgm")

def gen_oproj(e):
    name = "oproj_kernel"
    e.raw(f".globl {name}")
    e.raw(".p2align 8")
    e.raw(f".type {name},@function")
    e.label(name)
    SRD_O, SRD_W, SRD_OUT = 20, 24, 28
    S_WAVE, S_MB, S_NB, S_T0, S_T1, S_SOFF, S_KO, S_CNT, S_OOFF = 40, 41, 42, 43, 44, 46, 47, 49, 50
    V_LANE = 1
    V_T0, V_T1, V_T2, V_T3 = 2, 3, 4, 5
    V_WD = 6
    V_WA = 8
    V_OA = 10
    V_OUT = 13
    V_AF = 16
    V_ACC = 64
    V_BF = 128
    NS = 4
    AHEAD = 3
    NCH = 16
    L = f"v{V_LANE}"
    T0, T1, T2, T3 = (f"v{x}" for x in (V_T0, V_T1, V_T2, V_T3))
    e("s_cmp_ge_u32 s2, 144")
    e("s_cbranch_scc1 oproj_end")
    e("s_load_dwordx4 s[4:7], s[0:1], 32")
    e("s_load_dwordx2 s[16:17], s[0:1], 56")
    stamp(e, 0)
    e(f"v_and_b32 {L}, 63, v0")
    e(f"v_lshrrev_b32 v2, 6, v0")
    e("s_nop 0")
    e(f"v_readfirstlane_b32 s{S_WAVE}, v2")
    e(f"s_and_b32 s{S_MB}, s2, 15")
    e(f"s_lshr_b32 s{S_NB}, s2, 4")
    e("s_waitcnt lgkmcnt(0)")
    e(f"s_mov_b32 s{SRD_O}, s16")
    e(f"s_mov_b32 s{SRD_O+1}, s17")
    e(f"s_mov_b32 s{SRD_O+2}, 0x800000")
    e(f"s_mov_b32 s{SRD_O+3}, 0x20000")
    e(f"s_mov_b32 s{SRD_W}, s4")
    e(f"s_mov_b32 s{SRD_W+1}, s5")
    e(f"s_mov_b32 s{SRD_W+2}, {4096*1152}")
    e(f"s_mov_b32 s{SRD_W+3}, 0x20000")
    e(f"s_mov_b32 s{SRD_OUT}, s6")
    e(f"s_mov_b32 s{SRD_OUT+1}, s7")
    e(f"s_mov_b32 s{SRD_OUT+2}, {1024*1152}")
    e(f"s_mov_b32 s{SRD_OUT+3}, 0x20000")
    e(f"v_lshrrev_b32 {T0}, 3, {L}")
    e(f"s_movk_i32 s{S_T0}, 1152")
    e(f"v_mul_lo_u32 {T0}, {T0}, s{S_T0}")
    e(f"v_and_b32 {T1}, 7, {L}")
    e(f"v_bfe_u32 {T2}, {L}, 4, 1")
    e(f"v_lshlrev_b32 {T2}, 2, {T2}")
    e(f"v_xor_b32 {T1}, {T1}, {T2}")
    e(f"v_lshl_add_u32 v{V_WD}, {T1}, 4, {T0}")
    e(f"s_mul_i32 s{S_KO}, s{S_WAVE}, {512*1152}")
    e(f"s_lshl_b32 s{S_T0}, s{S_NB}, 7")
    e(f"s_add_u32 s{S_KO}, s{S_KO}, s{S_T0}")
    e(f"s_lshl_b32 s{S_T0}, s{S_MB}, 19")
    e(f"s_lshl_b32 s{S_T1}, s{S_WAVE}, 15")
    e(f"s_add_u32 s{S_T0}, s{S_T0}, s{S_T1}")
    e(f"v_lshlrev_b32 {T0}, 4, {L}")
    e(f"v_add_u32 v{V_OA}, s{S_T0}, {T0}")
    e(f"v_add_u32 v{V_OA+1}, 0x40000, v{V_OA}")
    S_M0W = 48
    e(f"s_lshl_b32 s{S_M0W}, s{S_WAVE}, 14")
    e(f"s_mov_b32 s{S_SOFF}, s{S_KO}")
    e(f"s_mov_b32 s{S_OOFF}, 0")
    def issue(slot):
        for j in range(4):
            e(f"s_add_u32 m0, s{S_M0W}, {slot*4096 + j*1024}")
            e("s_nop 0")
            e(f"buffer_load_dwordx4 v{V_WD}, {sr(SRD_W,4)}, s{S_SOFF} offen{NT_W} lds")
            e(f"s_add_u32 s{S_SOFF}, s{S_SOFF}, {8*1152}")
        for mb2 in range(2):
            for st in range(2):
                f = V_BF + 16*slot + 8*mb2 + 4*st
                e(f"buffer_load_dwordx4 {vr(f,4)}, v{V_OA+mb2}, {sr(SRD_O,4)}, s{S_OOFF} offen offset:{st*1024}{NT_W}")
        e(f"s_add_u32 s{S_OOFF}, s{S_OOFF}, 2048")
    for c in range(AHEAD):
        issue(c)
    e(f"v_lshrrev_b32 {T0}, 5, {L}")
    e(f"v_bfe_u32 {T1}, {L}, 2, 2")
    e(f"v_lshl_add_u32 {T2}, {T0}, 3, {T1}")
    e(f"v_lshlrev_b32 {T2}, 7, {T2}")
    e(f"v_bfe_u32 {T0}, {L}, 4, 1")
    e(f"v_bfe_u32 {T3}, {L}, 1, 1")
    e(f"v_lshl_add_u32 {T0}, {T0}, 1, {T3}")
    e(f"v_lshl_add_u32 {T2}, {T0}, 4, {T2}")
    e(f"v_and_b32 {T3}, 1, {L}")
    e(f"v_lshl_add_u32 {T2}, {T3}, 3, {T2}")
    e(f"v_add_u32 {T2}, s{S_M0W}, {T2}")
    e(f"v_bfe_u32 {T1}, {L}, 3, 1")
    for nb2 in range(2):
        e(f"v_xor_b32 {T3}, {nb2}, {T1}")
        e(f"v_lshl_add_u32 v{V_WA+nb2}, {T3}, 6, {T2}")
    for i in range(64):
        e(f"v_mov_b32 v{V_ACC+i}, 0")
    def rda(slot, par):
        ab = V_AF + 16*par
        for nb2 in range(2):
            for st in range(2):
                for u in range(2):
                    e(f"ds_read_b64_tr_b16 {vr(ab+8*nb2+4*st+2*u,2)}, v{V_WA+nb2} offset:{slot*4096 + (st*16+4*u)*128}")
    stamp(e, 1)
    e(f"s_waitcnt vmcnt({8*(AHEAD-1)})")
    rda(0, 0)
    def body(c, cmod):
        slot = cmod % NS
        par = cmod % 2
        e("s_waitcnt lgkmcnt(0)")
        if c + AHEAD < NCH:
            issue((slot + AHEAD) % NS)
        if c + 1 < NCH:
            n_after = min(NCH - 1, c + AHEAD) - (c + 1)
            e(f"s_waitcnt vmcnt({8*n_after})")
            rda((slot + 1) % NS, 1 - par)
        ab = V_AF + 16*par
        for st in range(2):
            for nb2 in range(2):
                for mb2 in range(2):
                    acc = vr(V_ACC + 32*nb2 + 16*mb2, 16)
                    e(f"v_mfma_f32_32x32x16_bf16 {acc}, {vr(ab+8*nb2+4*st,4)}, {vr(V_BF+16*slot+8*mb2+4*st,4)}, {acc}")
    e(f"s_mov_b32 s{S_CNT}, 0")
    e.label("oproj_loop")
    for cm in range(4):
        body(cm, cm)
    e(f"s_add_u32 s{S_CNT}, s{S_CNT}, 1")
    e(f"s_cmp_lt_u32 s{S_CNT}, 3")
    e("s_cbranch_scc1 oproj_loop")
    stamp(e, 2)
    for c in range(12, 16):
        body(c, c)
    stamp(e, 3)
    e.nop(16)
    e("s_barrier")
    e(f"v_lshlrev_b32 {T0}, 4, {L}")
    e(f"v_add_u32 {T1}, s{S_M0W}, {T0}")
    for i in range(16):
        e(f"ds_write_b128 {T1}, {vr(V_ACC+4*i,4)} offset:{i*1024}")
    e("s_waitcnt lgkmcnt(0)")
    e("s_barrier")
    e(f"s_lshl_b32 s{S_T0}, s{S_WAVE}, 11")
    e(f"v_add_u32 {T1}, s{S_T0}, {T0}")
    e(f"v_add_u32 {T2}, 0x10000, {T1}")
    for w in range(8):
        for i in range(2):
            e(f"ds_read_b128 {vr(V_BF+8*w+4*i,4)}, {T1 if w < 4 else T2} offset:{(w%4)*16384 + i*1024}")
    e("s_waitcnt lgkmcnt(0)")
    for stp in (4, 2, 1):
        for w in range(stp):
            for i in range(0, 8, 2):
                e(f"v_pk_add_f32 {vr(V_BF+8*w+i,2)}, {vr(V_BF+8*w+i,2)}, {vr(V_BF+8*(w+stp)+i,2)}")
    e(f"s_lshl_b32 s{S_T0}, s{S_MB}, 6")
    e(f"s_bfe_u32 s{S_T1}, s{S_WAVE}, 0x10001")
    e(f"s_lshl_b32 s{S_T1}, s{S_T1}, 5")
    e(f"s_add_u32 s{S_T0}, s{S_T0}, s{S_T1}")
    e(f"v_and_b32 {T0}, 31, {L}")
    e(f"v_add_u32 {T0}, s{S_T0}, {T0}")
    e(f"s_movk_i32 s{S_T1}, 1152")
    e(f"v_mul_lo_u32 {T0}, {T0}, s{S_T1}")
    e(f"s_lshl_b32 s{S_T0}, s{S_NB}, 7")
    e(f"s_lshr_b32 s{S_T1}, s{S_WAVE}, 2")
    e(f"s_lshl_b32 s{S_T1}, s{S_T1}, 6")
    e(f"s_add_u32 s{S_T0}, s{S_T0}, s{S_T1}")
    e(f"s_and_b32 s{S_T1}, s{S_WAVE}, 1")
    e(f"s_lshl_b32 s{S_T1}, s{S_T1}, 5")
    e(f"s_add_u32 s{S_T0}, s{S_T0}, s{S_T1}")
    e(f"v_add_u32 {T0}, s{S_T0}, {T0}")
    e(f"v_lshrrev_b32 {T1}, 5, {L}")
    e(f"v_lshl_add_u32 v{V_OUT}, {T1}, 4, {T0}")
    q = V_AF
    for j in range(4):
        e(f"v_cvt_pk_bf16_f32 v{q+j}, v{V_BF+2*j}, v{V_BF+2*j+1}")
    e("s_nop 1")
    e(f"v_permlane32_swap_b32 v{q}, v{q+2}")
    e(f"v_permlane32_swap_b32 v{q+1}, v{q+3}")
    e("s_nop 1")
    e(f"buffer_store_dwordx4 {vr(q,4)}, v{V_OUT}, {sr(SRD_OUT,4)}, 0 offen")
    if STAMP:
        e("s_waitcnt vmcnt(0)")
    stamp(e, 4)
    stamp_flush(e, 5, S_WAVE, "o")
    e.label("oproj_end")
    e("s_endpgm")

def desc(name, nfv, acc, sgpr=102):
    return f""".amdhsa_kernel {name}
  .amdhsa_next_free_vgpr {nfv}
  .amdhsa_next_free_sgpr {sgpr}
  .amdhsa_accum_offset {acc}
  .amdhsa_group_segment_fixed_size 0
  .amdhsa_kernarg_size 64
  .amdhsa_user_sgpr_count 2
  .amdhsa_user_sgpr_kernarg_segment_ptr 1
  .amdhsa_system_sgpr_workgroup_id_x 1
.end_amdhsa_kernel
"""

def main():
    hdr = open("standalone__gqa_block_cached__near_ridge.s.ref").read().split("; Override launch")[0]
    e = Em()
    gen_attn(e)
    gen_oproj(e)
    out = hdr
    out += "; @launch kernel=attn_kernel grid=(256,1,1) block=(768,1,1) lds=163840\n"
    out += "; @launch kernel=oproj_kernel grid=(144,1,1) block=(512,1,1) lds=131072\n"
    out += '.amdgcn_target "amdgcn-amd-amdhsa--gfx950"\n.text\n'
    out += e.text()
    out += '.section .rodata,"a"\n.p2align 6\n'
    out += desc("attn_kernel", 168, 168)
    out += ".p2align 6\n"
    out += desc("oproj_kernel", 192, 192)
    path = sys.argv[1] if len(sys.argv) > 1 else "standalone__gqa_block_cached__near_ridge.s"
    open(path, "w").write(out)

main()
```

```python
import sys, struct

class Em:
    def __init__(self):
        self.lines = []
    def __call__(self, s):
        self.lines.append("    " + s)
    def label(self, s):
        self.lines.append(s + ":")
    def raw(self, s):
        self.lines.append(s)
    def nop(self, n):
        while n > 0:
            k = min(n, 16)
            self(f"s_nop {k-1}")
            n -= k
    def text(self):
        return "\n".join(self.lines) + "\n"

def vr(b, n=1):
    return f"v{b}" if n == 1 else f"v[{b}:{b+n-1}]"
def sr(b, n=1):
    return f"s{b}" if n == 1 else f"s[{b}:{b+n-1}]"
def f32hex(x):
    return "0x%08x" % struct.unpack("<I", struct.pack("<f", x))[0]

LOG2E = 1.4426950408889634
SCALE = 128 ** -0.5
OPT = sys.argv[2] if len(sys.argv) > 2 else ""
STAMP = "stamp" in OPT
NT_KV = " nt"
NT_W = " nt" if "ntw" in OPT else ""

def stamp(e, idx):
    if not STAMP: return
    e("s_memtime s[60:61]")
    e("s_waitcnt lgkmcnt(0)")
    e(f"s_mov_b32 s{62+idx}, s60")

def stamp_flush(e, n, wavereg, tag):
    if not STAMP: return
    e("s_load_dwordx2 s[56:57], s[0:1], 48")
    e("s_waitcnt lgkmcnt(0)")
    e("s_mov_b32 s52, s56")
    e("s_mov_b32 s53, s57")
    e("s_mov_b32 s54, 256")
    e("s_mov_b32 s55, 0x20000")
    e("s_cmp_lg_u32 s2, 5")
    e(f"s_cbranch_scc1 stamp_skip_{tag}")
    e(f"s_lshl_b32 s58, s{wavereg}, 5")
    for i in range(n):
        e(f"s_sub_u32 s59, s{62+i}, s62")
        e("v_mov_b32 v2, s59")
        e(f"v_mov_b32 v3, s58")
        e(f"buffer_store_dword v2, v3, s[52:55], 0 offen offset:{4*i}")
    e.label(f"stamp_skip_{tag}")

def rot18(e, dst, base_sgpr, add_const, rot_sgpr, tmp):
    if base_sgpr is None:
        e(f"s_add_u32 s{dst}, s{rot_sgpr}, {add_const}")
    else:
        e(f"s_add_u32 s{dst}, s{base_sgpr}, {add_const}")
        e(f"s_add_u32 s{dst}, s{dst}, s{rot_sgpr}")
    e(f"s_sub_u32 s{tmp}, s{dst}, 18")
    e(f"s_cmp_ge_u32 s{dst}, 18")
    e(f"s_cselect_b32 s{dst}, s{tmp}, s{dst}")

def gen_attn(e):
    name = "attn_kernel"
    e.raw(f".globl {name}")
    e.raw(".p2align 8")
    e.raw(f".type {name},@function")
    e.label(name)
    S_X, S_K, S_V, S_WQ, S_WS = 4, 6, 8, 10, 16
    SRD_K, SRD_X, SRD_WQ, SRD_O = 20, 28, 32, 36
    S_WAVE, S_HKV, S_B = 40, 41, 42
    S_T0, S_T1, S_T2, S_SOFF, S_C = 43, 44, 45, 46, 47
    S_CNT, S_STG, S_ROT, S_XOFF, S_QB, S_KH = 48, 49, 50, 51, 72, 73
    V_LANE = 1
    V_T0, V_T1, V_T2, V_T3 = 2, 3, 4, 5
    V_KW = 6
    V_VW = 14
    V_M, V_L = 18, 19
    V_AL2 = 20
    V_OO = 22
    V_XO = 23
    V_WA = 6
    V_D = 6
    V_O = 24
    V_S = 88
    V_Q = 104
    V_F = 136
    V_P = 160
    XSL = [V_O+32, V_O+40, V_O+48, V_O+56, V_S, V_S+8, V_Q, V_Q+8]
    STAGE = 32768
    WQ0 = 32768
    WNS = 6
    WAH = 5
    WSL = 20480
    def wslot(c): return (c + 2) % WNS
    QX0 = 131072
    NCH = 18

    e("s_cmp_ge_u32 s2, 256")
    e("s_cbranch_scc1 attn_end")
    e("s_load_dwordx4 s[4:7], s[0:1], 0")
    e("s_load_dwordx4 s[8:11], s[0:1], 16")
    e("s_load_dwordx2 s[16:17], s[0:1], 56")
    stamp(e, 0)
    e(f"v_and_b32 v{V_LANE}, 63, v0")
    e(f"v_lshrrev_b32 v2, 6, v0")
    e("s_nop 0")
    e(f"v_readfirstlane_b32 s{S_WAVE}, v2")
    e(f"s_and_b32 s{S_HKV}, s2, 15")
    e(f"s_lshr_b32 s{S_B}, s2, 4")
    e(f"s_add_u32 s{S_ROT}, s{S_HKV}, s{S_B}")
    L = f"v{V_LANE}"
    T0, T1, T2, T3 = (f"v{x}" for x in (V_T0, V_T1, V_T2, V_T3))
    e("s_waitcnt lgkmcnt(0)")
    e(f"s_lshl_b32 s{S_T0}, s{S_HKV}, 9")
    e(f"s_add_u32 s{SRD_WQ}, s{S_WQ}, s{S_T0}")
    e(f"s_addc_u32 s{SRD_WQ+1}, s{S_WQ+1}, 0")
    e(f"s_sub_u32 s{SRD_WQ+2}, {576*8192}, s{S_T0}")
    e(f"s_mov_b32 s{SRD_WQ+3}, 0x20000")
    V_WD = 166
    e(f"v_lshrrev_b32 {T0}, 5, {L}")
    e(f"v_and_b32 {T1}, 31, {L}")
    e(f"v_lshlrev_b32 {T2}, 13, {T0}")
    for odd in range(2):
        e(f"v_add_u32 {T3}, {2*odd}, {T0}")
        e(f"v_lshlrev_b32 {T3}, 2, {T3}")
        e(f"v_xor_b32 {T3}, {T3}, {T1}")
        e(f"v_lshl_add_u32 v{V_WD+odd}, {T3}, 4, {T2}")
    S_WQR, S_WQL = 52, 53
    def wq_dma(chunk_sgpr, chunk_const, n_instr):
        rot18(e, S_SOFF, chunk_sgpr, chunk_const, S_B, S_T0)
        e(f"s_lshl_b32 s{S_SOFF}, s{S_SOFF}, 18")
        e(f"s_add_u32 s{S_SOFF}, s{S_SOFF}, s{S_WQR}")
        if chunk_sgpr is None:
            e(f"s_add_u32 m0, s{S_WQL}, {wslot(chunk_const)*WSL}")
        else:
            e(f"s_add_u32 s{S_STG}, s{chunk_sgpr}, {chunk_const}")
            e(f"s_and_b32 s{S_STG}, s{S_STG}, 7")
            e(f"s_lshl_b32 s{S_STG}, s{S_STG}, 14")
            e(f"s_add_u32 m0, s{S_STG}, s{S_WQL}")
        e("s_nop 0")
        e(f"buffer_load_dwordx4 v{V_WD}, {sr(SRD_WQ,4)}, s{S_SOFF} offen lds")
        if n_instr == 2:
            e(f"s_add_u32 s{S_SOFF}, s{S_SOFF}, {16384-1024}")
            e(f"buffer_load_dwordx4 v{V_WD+1}, {sr(SRD_WQ,4)}, s{S_SOFF} offen offset:1024 lds")
    e(f"s_cmp_ge_u32 s{S_WAVE}, 8")
    e("s_cbranch_scc1 attn_loader")
    e(f"s_add_u32 s{S_T0}, s{S_WAVE}, 8")
    e(f"s_lshl_b32 s{S_WQR}, s{S_T0}, 14")
    e(f"s_lshl_b32 s{S_WQL}, s{S_T0}, 10")
    e(f"s_add_u32 s{S_WQL}, s{S_WQL}, {WQ0}")
    e(f"s_and_b32 s{S_T0}, s{S_WAVE}, 1")
    e(f"s_cmp_eq_u32 s{S_T0}, 0")
    e("s_cbranch_scc1 attn_weven")
    e(f"v_mov_b32 v{V_WD}, v{V_WD+1}")
    e.label("attn_weven")

    e(f"s_and_b32 s{S_QB}, s{S_WAVE}, 3")
    e(f"s_lshr_b32 s{S_KH}, s{S_WAVE}, 2")
    e(f"s_mul_i32 s{S_T0}, s{S_B}, 73728")
    e(f"s_add_u32 s{SRD_X}, s{S_X}, s{S_T0}")
    e(f"s_addc_u32 s{SRD_X+1}, s{S_X+1}, 0")
    e(f"s_mov_b32 s{SRD_X+2}, 73728")
    e(f"s_mov_b32 s{SRD_X+3}, 0x20000")
    e(f"s_mov_b32 s{SRD_O}, s{S_WS}")
    e(f"s_mov_b32 s{SRD_O+1}, s{S_WS+1}")
    e(f"s_mov_b32 s{SRD_O+2}, 0x800000")
    e(f"s_mov_b32 s{SRD_O+3}, 0x20000")
    e(f"s_and_b32 s{S_T0}, s{S_QB}, 1")
    e(f"s_lshl_b32 s{S_T0}, s{S_T0}, 5")
    e(f"v_and_b32 {T0}, 31, {L}")
    e(f"v_add_u32 {T0}, s{S_T0}, {T0}")
    e(f"v_lshlrev_b32 {T0}, 6, {T0}")
    e(f"v_add_u32 {T0}, {WQ0+16384}, {T0}")
    e(f"v_lshrrev_b32 {T1}, 5, {L}")
    e(f"v_bfe_u32 {T2}, {L}, 2, 2")
    e(f"v_xor_b32 {T1}, {T1}, {T2}")
    V_XA = V_S
    for ks in range(2):
        e(f"v_xor_b32 {T2}, {2*ks}, {T1}")
        e(f"v_lshl_add_u32 v{V_XA+ks}, {T2}, 4, {T0}")
        e(f"v_add_u32 v{V_XA+2+ks}, {3*WSL}, v{V_XA+ks}")
    for c in range(WAH):
        wq_dma(None, c, 1)
    e(f"v_lshrrev_b32 {T0}, 5, {L}")
    e(f"v_bfe_u32 {T1}, {L}, 2, 2")
    e(f"v_lshl_add_u32 {T2}, {T0}, 3, {T1}")
    e(f"v_lshlrev_b32 {T2}, 9, {T2}")
    e(f"v_bfe_u32 {T0}, {L}, 4, 1")
    e(f"v_bfe_u32 {T3}, {L}, 1, 1")
    e(f"v_lshl_add_u32 {T0}, {T0}, 1, {T3}")
    e(f"v_lshl_add_u32 {T2}, {T0}, 4, {T2}")
    e(f"v_and_b32 {T3}, 1, {L}")
    e(f"v_lshl_add_u32 {T2}, {T3}, 3, {T2}")
    e(f"v_add_u32 {T2}, {WQ0}, {T2}")
    e(f"s_lshr_b32 s{S_T0}, s{S_QB}, 1")
    e(f"s_lshl_b32 s{S_T0}, s{S_T0}, 2")
    e(f"s_lshl_b32 s{S_T1}, s{S_KH}, 1")
    e(f"s_add_u32 s{S_T0}, s{S_T0}, s{S_T1}")
    for d2 in range(2):
        e(f"s_add_u32 s{S_T1}, s{S_T0}, {d2}")
        e(f"v_xor_b32 {T3}, s{S_T1}, {T1}")
        e(f"v_lshl_add_u32 v{V_WA+d2}, {T3}, 6, {T2}")
    e(f"s_and_b32 s{S_T0}, s{S_QB}, 1")
    e(f"s_lshl_b32 s{S_T1}, s{S_B}, 1")
    e(f"s_add_u32 s{S_T0}, s{S_T0}, s{S_T1}")
    e(f"s_lshl_b32 s{S_T0}, s{S_T0}, 18")
    e(f"s_lshl_b32 s{S_T1}, s{S_HKV}, 1")
    e(f"s_lshr_b32 s{S_T2}, s{S_QB}, 1")
    e(f"s_add_u32 s{S_T1}, s{S_T1}, s{S_T2}")
    e(f"s_lshl_b32 s{S_T1}, s{S_T1}, 13")
    e(f"s_add_u32 s{S_T0}, s{S_T0}, s{S_T1}")
    e(f"v_lshlrev_b32 {T0}, 4, {L}")
    e(f"v_add_u32 v{V_OO}, s{S_T0}, {T0}")
    for i in range(32):
        e(f"v_mov_b32 v{V_O+i}, 0")

    def qchunk(c, issue_next, wait_n):
        slot = wslot(c)
        e(f"s_waitcnt vmcnt({wait_n})")
        e("s_barrier")
        seq = [(ks, d2) for ks in range(2) for d2 in range(2)]
        hi = slot >= 3
        xs = XSL[c % 2]
        for ks in range(2):
            e(f"ds_read_b128 {vr(xs+4*ks,4)}, v{V_XA+ks+(2 if hi else 0)} offset:{(slot%3)*WSL}")
        for idx, (ks, d2) in enumerate(seq):
            f = V_F + 4*idx
            for u in range(2):
                e(f"ds_read_b64_tr_b16 {vr(f+2*u,2)}, v{V_WA+d2+(2 if hi else 0)} offset:{(slot%3)*WSL + (ks*16+4*u)*512}")
        if issue_next:
            wq_dma(None, c+WAH, 1)
        for idx, (ks, d2) in enumerate(seq):
            f = V_F + 4*idx
            e(f"s_waitcnt lgkmcnt({2*(3-idx)})")
            acc = vr(V_O + 16*d2, 16)
            e(f"v_mfma_f32_32x32x16_bf16 {acc}, {vr(f,4)}, {vr(xs+4*ks,4)}, {acc}")
    for d2 in range(2):
        e(f"v_add_u32 v{V_WA+2+d2}, {3*WSL}, v{V_WA+d2}")
    e(f"s_mov_b32 s{S_CNT}, 0")
    for c in range(NCH):
        if c == 8:
            e(f"s_mov_b32 s{S_CNT}, 8")
        if c == 16:
            e(f"s_mov_b32 s{S_CNT}, 16")
        n_after = min(NCH - 1, c + WAH - 1) - c
        if c == 0: stamp(e, 4)
        qchunk(c, c + WAH < NCH, n_after)
        if c in (0, 1, 9): stamp(e, {0:5, 1:6, 9:7}[c])
    stamp(e, 1)
    e.nop(16)
    e(f"s_lshl_b32 s{S_T0}, s{S_QB}, 13")
    e(f"s_add_u32 s{S_T0}, s{S_T0}, {QX0}")
    e(f"v_lshlrev_b32 {T0}, 4, {L}")
    e(f"v_add_u32 {T0}, s{S_T0}, {T0}")
    e(f"s_lshl_b32 s{S_T1}, s{S_KH}, 12")
    e(f"v_add_u32 {T1}, s{S_T1}, {T0}")
    for kl in range(4):
        d2, hf = kl // 2, kl % 2
        src = V_O + 16*d2 + 8*hf
        q = V_F + 4*kl
        for j in range(4):
            e(f"v_cvt_pk_bf16_f32 v{q+j}, v{src+2*j}, v{src+2*j+1}")
        e("s_nop 1")
        e(f"v_permlane32_swap_b32 v{q}, v{q+2}")
        e(f"v_permlane32_swap_b32 v{q+1}, v{q+3}")
        e("s_nop 1")
        e(f"ds_write_b128 {T1}, {vr(q,4)} offset:{kl*1024}")
    e("s_waitcnt lgkmcnt(0)")
    e("s_barrier")
    for ks in range(8):
        e(f"ds_read_b128 {vr(V_Q+4*ks,4)}, {T0} offset:{ks*1024}")
    e(f"v_lshrrev_b32 {T0}, 5, {L}")
    e(f"v_and_b32 {T1}, 15, {L}")
    e(f"v_xor_b32 {T0}, {T0}, {T1}")
    e(f"v_and_b32 {T1}, 31, {L}")
    e(f"v_lshlrev_b32 {T1}, 8, {T1}")
    e(f"s_lshl_b32 s{S_T0}, s{S_KH}, 13")
    e(f"v_add_u32 {T1}, s{S_T0}, {T1}")
    for ks in range(8):
        e(f"v_xor_b32 {T2}, {2*ks}, {T0}")
        e(f"v_lshl_add_u32 v{V_KW+ks}, {T2}, 4, {T1}")
    e(f"v_lshrrev_b32 {T0}, 5, {L}")
    e(f"v_bfe_u32 {T1}, {L}, 2, 2")
    e(f"v_lshl_add_u32 {T2}, {T0}, 2, {T1}")
    e(f"v_lshlrev_b32 {T2}, 8, {T2}")
    e(f"s_add_u32 s{S_T0}, s{S_T0}, 16384")
    e(f"v_add_u32 {T2}, s{S_T0}, {T2}")
    e(f"v_bfe_u32 {T0}, {L}, 4, 1")
    e(f"v_bfe_u32 {T3}, {L}, 1, 1")
    e(f"v_lshl_add_u32 {T0}, {T0}, 1, {T3}")
    e(f"v_lshl_add_u32 {T2}, {T0}, 4, {T2}")
    e(f"v_and_b32 {T3}, 1, {L}")
    e(f"v_lshl_add_u32 {T2}, {T3}, 3, {T2}")
    for db in range(4):
        e(f"v_xor_b32 {T3}, {db}, {T1}")
        e(f"v_lshl_add_u32 v{V_VW+db}, {T3}, 6, {T2}")
    e(f"v_mov_b32 v{V_M}, 0xff800000")
    e(f"v_mov_b32 v{V_L}, 0")
    for i in range(64):
        e(f"v_mov_b32 v{V_O+i}, 0")
    e(f"s_mov_b32 s{S_C}, {f32hex(SCALE*LOG2E)}")
    e(f"s_mov_b32 s{S_CNT}, 0")
    e(f"s_mov_b32 s{S_T2}, 0x1ffff")
    e("s_waitcnt lgkmcnt(0)")

    e.label("attn_loop")
    e("s_barrier")
    def rdk(ks):
        f = V_F + 4*(ks % 6)
        e(f"ds_read_b128 {vr(f,4)}, v{V_KW+ks}")
    for ks in range(6):
        rdk(ks)
    seqv = [(ks, db) for ks in range(2) for db in range(4)]
    def rdv(idx):
        ks, db = seqv[idx]
        f = V_F + 4*((8 + idx) % 6)
        for u in range(2):
            e(f"ds_read_b64_tr_b16 {vr(f+2*u,2)}, v{V_VW+db} offset:{ks*4096 + u*2048}")
    issued = 6
    for ks in range(8):
        f = V_F + 4*(ks % 6)
        later_k = max(0, min(8, issued) - ks - 1)
        later_v = max(0, issued - 8)
        e(f"s_waitcnt lgkmcnt({later_k + 2*later_v})")
        acc = vr(V_S, 16)
        cc = "0" if ks == 0 else acc
        e(f"v_mfma_f32_32x32x16_bf16 {acc}, {vr(f,4)}, {vr(V_Q+4*ks,4)}, {cc}")
        if issued < 8:
            rdk(issued)
        else:
            rdv(issued - 8)
        issued += 1
    for i in range(8):
        e(f"v_add_u32 v{V_KW+i}, 0x8000, v{V_KW+i}")
        e(f"v_and_b32 v{V_KW+i}, s{S_T2}, v{V_KW+i}")
    S = lambda i: f"v{V_S+i}"
    e(f"v_max3_f32 {T0}, {S(0)}, {S(1)}, {S(2)}")
    e(f"v_max3_f32 {T1}, {S(3)}, {S(4)}, {S(5)}")
    e(f"v_max3_f32 {T0}, {T0}, {S(6)}, {S(7)}")
    e(f"v_max3_f32 {T1}, {T1}, {S(8)}, {S(9)}")
    e(f"v_max3_f32 {T0}, {T0}, {S(10)}, {S(11)}")
    e(f"v_max3_f32 {T1}, {T1}, {S(12)}, {S(13)}")
    e(f"v_max3_f32 {T0}, {T0}, {S(14)}, {S(15)}")
    e(f"v_max_f32 {T0}, {T0}, {T1}")
    e(f"v_mov_b32 {T1}, {T0}")
    e("s_nop 1")
    e(f"v_permlane32_swap_b32 {T0}, {T1}")
    e("s_nop 1")
    e(f"v_max3_f32 {T0}, {T0}, {T1}, v{V_M}")
    e(f"v_cmp_neq_f32 vcc, {T0}, v{V_M}")
    e(f"v_sub_f32 {T1}, v{V_M}, {T0}")
    e(f"v_mul_f32 {T1}, s{S_C}, {T1}")
    e(f"v_exp_f32 v{V_AL2}, {T1}")
    e(f"v_mov_b32 v{V_M}, {T0}")
    e(f"v_mul_f32 {T0}, s{S_C}, {T0}")
    e(f"v_mov_b32 v{V_AL2+1}, v{V_AL2}")
    for i in range(16):
        e(f"v_fma_f32 {S(i)}, {S(i)}, s{S_C}, -{T0}")
    for i in range(16):
        e(f"v_exp_f32 {S(i)}, {S(i)}")
    e("s_cbranch_vccz attn_noresc")
    e(f"v_mul_f32 v{V_L}, v{V_L}, v{V_AL2}")
    for i in range(0, 64, 2):
        e(f"v_pk_mul_f32 {vr(V_O+i,2)}, {vr(V_O+i,2)}, {vr(V_AL2,2)}")
    e.label("attn_noresc")
    e(f"v_add_f32 {T1}, {S(0)}, {S(1)}")
    e(f"v_add_f32 {T2}, {S(2)}, {S(3)}")
    for i in range(4, 16, 2):
        tt = T1 if (i // 2) % 2 == 0 else T2
        e(f"v_add_f32 {tt}, {tt}, {S(i)}")
        e(f"v_add_f32 {tt}, {tt}, {S(i+1)}")
    e(f"v_add_f32 {T1}, {T1}, {T2}")
    e(f"v_add_f32 v{V_L}, v{V_L}, {T1}")
    for ks in range(2):
        for j in range(4):
            e(f"v_cvt_pk_bf16_f32 v{V_P+4*ks+j}, {S(8*ks+2*j)}, {S(8*ks+2*j+1)}")
    e("s_nop 1")
    for idx in range(8):
        ks, db = seqv[idx]
        f = V_F + 4*((8 + idx) % 6)
        later_v = max(0, (issued - 8) - idx - 1)
        e(f"s_waitcnt lgkmcnt({2*later_v})")
        acc = vr(V_O + 16*db, 16)
        e(f"v_mfma_f32_32x32x16_bf16 {acc}, {vr(f,4)}, {vr(V_P+4*ks,4)}, {acc}")
        if issued < 16:
            rdv(issued - 8)
            issued += 1
    for i in range(4):
        e(f"v_add_u32 v{V_VW+i}, 0x8000, v{V_VW+i}")
        e(f"v_and_b32 v{V_VW+i}, s{S_T2}, v{V_VW+i}")
    e(f"s_add_u32 s{S_CNT}, s{S_CNT}, 1")
    e(f"s_cmp_lt_u32 s{S_CNT}, 16")
    e("s_cbranch_scc1 attn_loop")
    stamp(e, 2)
    e.nop(16)
    e(f"v_mov_b32 {T0}, v{V_L}")
    e(f"v_mov_b32 {T1}, v{V_L}")
    e("s_nop 1")
    e(f"v_permlane32_swap_b32 {T0}, {T1}")
    e("s_nop 1")
    e(f"v_add_f32 v{V_L}, {T0}, {T1}")
    e("s_barrier")
    e(f"s_mul_i32 s{S_T0}, s{S_QB}, 17408")
    e(f"v_lshlrev_b32 {T0}, 4, {L}")
    e(f"v_add_u32 {T0}, s{S_T0}, {T0}")
    e(f"v_lshlrev_b32 {T1}, 3, {L}")
    e(f"v_add_u32 {T1}, s{S_T0}, {T1}")
    e(f"s_cmp_eq_u32 s{S_KH}, 0")
    e("s_cbranch_scc1 attn_merge0")
    for i in range(16):
        e(f"ds_write_b128 {T0}, {vr(V_O+4*i,4)} offset:{i*1024}")
    e(f"ds_write_b64 {T1}, {vr(V_M,2)} offset:16384")
    e("s_waitcnt lgkmcnt(0)")
    e("s_barrier")
    e("s_endpgm")
    e.label("attn_merge0")
    e("s_barrier")
    e(f"ds_read_b64 {vr(V_P,2)}, {T1} offset:16384")
    for i in range(8):
        e(f"ds_read_b128 {vr(V_Q+4*i,4)}, {T0} offset:{i*1024}")
    e("s_waitcnt lgkmcnt(8)")
    e(f"v_max_f32 {T2}, v{V_M}, v{V_P}")
    e(f"v_sub_f32 {T3}, v{V_M}, {T2}")
    e(f"v_mul_f32 {T3}, s{S_C}, {T3}")
    e(f"v_exp_f32 v{V_AL2}, {T3}")
    e(f"v_sub_f32 {T3}, v{V_P}, {T2}")
    e(f"v_mul_f32 {T3}, s{S_C}, {T3}")
    e(f"v_exp_f32 v{V_P+2}, {T3}")
    e("s_nop 0")
    e(f"v_mul_f32 v{V_L}, v{V_L}, v{V_AL2}")
    e(f"v_fma_f32 v{V_L}, v{V_P+1}, v{V_P+2}, v{V_L}")
    e(f"v_rcp_f32 {T3}, v{V_L}")
    e("s_nop 0")
    e(f"v_mul_f32 v{V_AL2}, v{V_AL2}, {T3}")
    e(f"v_mul_f32 v{V_P+2}, v{V_P+2}, {T3}")
    e(f"v_mov_b32 v{V_AL2+1}, v{V_AL2}")
    e(f"v_mov_b32 v{V_P+3}, v{V_P+2}")
    e(f"s_movk_i32 s{S_T0}, 4096")
    e(f"s_mov_b32 s{S_T1}, 0")
    for half in range(2):
        if half == 1:
            for i in range(8):
                e(f"ds_read_b128 {vr(V_Q+4*i,4)}, {T0} offset:{(8+i)*1024}")
        e("s_waitcnt lgkmcnt(0)")
        for i in range(0, 32, 2):
            o = V_O + 32*half + i
            e(f"v_pk_mul_f32 {vr(o,2)}, {vr(o,2)}, {vr(V_AL2,2)}")
            e(f"v_pk_fma_f32 {vr(o,2)}, {vr(V_Q+i,2)}, {vr(V_P+2,2)}, {vr(o,2)}")
        for d2 in range(2):
            db = 2*half + d2
            for pr in range(2):
                src = V_O + 16*db + 8*pr
                q = V_F + 4*((2*db+pr) % 6)
                for j in range(4):
                    e(f"v_cvt_pk_bf16_f32 v{q+j}, v{src+2*j}, v{src+2*j+1}")
                e("s_nop 1")
                e(f"v_permlane32_swap_b32 v{q}, v{q+2}")
                e(f"v_permlane32_swap_b32 v{q+1}, v{q+3}")
                e("s_nop 1")
                e(f"buffer_store_dwordx4 {vr(q,4)}, v{V_OO}, {sr(SRD_O,4)}, s{S_T0 if db >= 2 else S_T1} offen offset:{((2*db+pr)%4)*1024}")
    if STAMP:
        e("s_waitcnt vmcnt(0)")
    stamp(e, 3)
    stamp_flush(e, 8, S_WAVE, "c")
    e("s_endpgm")

    e.label("attn_loader")
    SRD_V = 24
    S_J4K = 54
    e(f"s_sub_u32 s{S_T1}, s{S_WAVE}, 8")
    e(f"s_lshl_b32 s{S_J4K}, s{S_T1}, 12")
    e(f"s_lshl_b32 s{S_WQR}, s{S_T1}, 15")
    e(f"s_lshl_b32 s{S_WQL}, s{S_T1}, 11")
    e(f"s_add_u32 s{S_WQL}, s{S_WQL}, {WQ0}")
    e(f"s_lshl_b32 s{S_T0}, s{S_B}, 4")
    e(f"s_add_u32 s{S_T0}, s{S_T0}, s{S_HKV}")
    e(f"s_lshl_b32 s{S_T0}, s{S_T0}, 18")
    e(f"s_add_u32 s{SRD_K}, s{S_K}, s{S_T0}")
    e(f"s_addc_u32 s{SRD_K+1}, s{S_K+1}, 0")
    e(f"s_mov_b32 s{SRD_K+2}, 0x40000")
    e(f"s_mov_b32 s{SRD_K+3}, 0x20000")
    e(f"s_add_u32 s{SRD_V}, s{S_V}, s{S_T0}")
    e(f"s_addc_u32 s{SRD_V+1}, s{S_V+1}, 0")
    e(f"s_mov_b32 s{SRD_V+2}, 0x40000")
    e(f"s_mov_b32 s{SRD_V+3}, 0x20000")
    e(f"s_mul_i32 s{S_T0}, s{S_B}, 73728")
    e(f"s_add_u32 s{SRD_X}, s{S_X}, s{S_T0}")
    e(f"s_addc_u32 s{SRD_X+1}, s{S_X+1}, 0")
    e(f"s_mov_b32 s{SRD_X+2}, 73728")
    e(f"s_mov_b32 s{SRD_X+3}, 0x20000")
    V_XD = 11
    S_XL = 55
    e(f"s_lshl_b32 s{S_XL}, s{S_T1}, 10")
    e(f"s_add_u32 s{S_XL}, s{S_XL}, {WQ0+16384}")
    e(f"s_lshl_b32 s{S_T0}, s{S_T1}, 4")
    e(f"v_lshrrev_b32 {T0}, 2, {L}")
    e(f"v_add_u32 {T0}, s{S_T0}, {T0}")
    e(f"s_movk_i32 s{S_T0}, 1152")
    e(f"v_mul_lo_u32 {T0}, {T0}, s{S_T0}")
    e(f"v_and_b32 {T1}, 3, {L}")
    e(f"v_bfe_u32 {T2}, {L}, 4, 2")
    e(f"v_xor_b32 {T1}, {T1}, {T2}")
    e(f"v_lshl_add_u32 v{V_XD}, {T1}, 4, {T0}")
    def x_dma(c):
        rot18(e, S_XOFF, None, c, S_B, S_T0)
        e(f"s_lshl_b32 s{S_XOFF}, s{S_XOFF}, 6")
        e(f"s_add_u32 m0, s{S_XL}, {wslot(c)*WSL}")
        e("s_nop 0")
        e(f"buffer_load_dwordx4 v{V_XD}, {sr(SRD_X,4)}, s{S_XOFF} offen lds")
    for c in range(WAH):
        x_dma(c)
        wq_dma(None, c, 2)
    e(f"v_lshrrev_b32 {T0}, 4, {L}")
    e(f"v_and_b32 {T1}, 15, {L}")
    e(f"v_lshlrev_b32 {T2}, 8, {T0}")
    e(f"v_lshlrev_b32 {T3}, 2, {T0}")
    e(f"v_xor_b32 {T3}, {T1}, {T3}")
    e(f"v_lshl_add_u32 v{V_D+4}, {T3}, 4, {T2}")
    e(f"v_xor_b32 {T1}, {T1}, {T0}")
    for i in range(4):
        e(f"v_xor_b32 {T3}, {4*i}, {T1}")
        e(f"v_lshl_add_u32 v{V_D+i}, {T3}, 4, {T2}")
    def tile_issue():
        e(f"s_add_u32 s{S_SOFF}, s{S_ROT}, s{S_T2}")
        e(f"s_and_b32 s{S_SOFF}, s{S_SOFF}, 15")
        e(f"s_lshl_b32 s{S_SOFF}, s{S_SOFF}, 14")
        e(f"s_add_u32 s{S_SOFF}, s{S_SOFF}, s{S_J4K}")
        e(f"s_and_b32 s{S_STG}, s{S_T2}, 3")
        e(f"s_lshl_b32 s{S_STG}, s{S_STG}, 15")
        e(f"s_add_u32 m0, s{S_STG}, s{S_J4K}")
        e(f"s_add_u32 s{S_STG}, m0, 16384")
        for i in range(4):
            e(f"buffer_load_dwordx4 v{V_D+i}, {sr(SRD_K,4)}, s{S_SOFF} offen offset:{i*1024}{NT_KV} lds")
        e(f"s_mov_b32 m0, s{S_STG}")
        e("s_nop 0")
        for i in range(4):
            e(f"buffer_load_dwordx4 v{V_D+4}, {sr(SRD_V,4)}, s{S_SOFF} offen offset:{i*1024}{NT_KV} lds")
    e(f"s_mov_b32 s{S_T2}, 0")
    tile_issue()
    for c in range(NCH):
        n_after = min(NCH - 1, c + WAH - 1) - c
        e(f"s_waitcnt vmcnt({3*n_after + (8 if c < WAH else 0)})")
        e("s_barrier")
        if c + WAH < NCH:
            x_dma(c + WAH)
            wq_dma(None, c + WAH, 2)
    e("s_barrier")
    e(f"s_mov_b32 s{S_T2}, 1")
    e.label("attn_ldpro")
    tile_issue()
    e(f"s_add_u32 s{S_T2}, s{S_T2}, 1")
    e(f"s_cmp_lt_u32 s{S_T2}, 3")
    e("s_cbranch_scc1 attn_ldpro")
    e(f"s_mov_b32 s{S_CNT}, 0")
    e.label("attn_ldloop")
    e(f"s_cmp_lt_u32 s{S_CNT}, 14")
    e("s_cbranch_scc1 attn_ldw32")
    e(f"s_cmp_eq_u32 s{S_CNT}, 14")
    e("s_cbranch_scc1 attn_ldw16")
    e("s_waitcnt vmcnt(0)")
    e("s_branch attn_ldw")
    e.label("attn_ldw16")
    e("s_waitcnt vmcnt(8)")
    e("s_branch attn_ldw")
    e.label("attn_ldw32")
    e("s_waitcnt vmcnt(16)")
    e.label("attn_ldw")
    e("s_barrier")
    e(f"s_add_u32 s{S_T2}, s{S_CNT}, 3")
    e(f"s_cmp_ge_u32 s{S_T2}, 16")
    e("s_cbranch_scc1 attn_ldskip")
    tile_issue()
    e.label("attn_ldskip")
    e(f"s_add_u32 s{S_CNT}, s{S_CNT}, 1")
    e(f"s_cmp_lt_u32 s{S_CNT}, 16")
    e("s_cbranch_scc1 attn_ldloop")
    e("s_barrier")
    e("s_barrier")
    e.label("attn_end")
    e("s_endpgm")

def gen_oproj(e):
    name = "oproj_kernel"
    e.raw(f".globl {name}")
    e.raw(".p2align 8")
    e.raw(f".type {name},@function")
    e.label(name)
    SRD_O, SRD_W, SRD_OUT = 20, 24, 28
    S_WAVE, S_MB, S_NB, S_T0, S_T1, S_SOFF, S_KO, S_CNT, S_OOFF = 40, 41, 42, 43, 44, 46, 47, 49, 50
    V_LANE = 1
    V_T0, V_T1, V_T2, V_T3 = 2, 3, 4, 5
    V_WD = 6
    V_WA = 8
    V_OA = 10
    V_OUT = 13
    V_AF = 16
    V_ACC = 64
    V_BF = 128
    NS = 4
    AHEAD = 3
    NCH = 16
    L = f"v{V_LANE}"
    T0, T1, T2, T3 = (f"v{x}" for x in (V_T0, V_T1, V_T2, V_T3))
    e("s_cmp_ge_u32 s2, 144")
    e("s_cbranch_scc1 oproj_end")
    e("s_load_dwordx4 s[4:7], s[0:1], 32")
    e("s_load_dwordx2 s[16:17], s[0:1], 56")
    stamp(e, 0)
    e(f"v_and_b32 {L}, 63, v0")
    e(f"v_lshrrev_b32 v2, 6, v0")
    e("s_nop 0")
    e(f"v_readfirstlane_b32 s{S_WAVE}, v2")
    e(f"s_and_b32 s{S_MB}, s2, 15")
    e(f"s_lshr_b32 s{S_NB}, s2, 4")
    e("s_waitcnt lgkmcnt(0)")
    e(f"s_mov_b32 s{SRD_O}, s16")
    e(f"s_mov_b32 s{SRD_O+1}, s17")
    e(f"s_mov_b32 s{SRD_O+2}, 0x800000")
    e(f"s_mov_b32 s{SRD_O+3}, 0x20000")
    e(f"s_mov_b32 s{SRD_W}, s4")
    e(f"s_mov_b32 s{SRD_W+1}, s5")
    e(f"s_mov_b32 s{SRD_W+2}, {4096*1152}")
    e(f"s_mov_b32 s{SRD_W+3}, 0x20000")
    e(f"s_mov_b32 s{SRD_OUT}, s6")
    e(f"s_mov_b32 s{SRD_OUT+1}, s7")
    e(f"s_mov_b32 s{SRD_OUT+2}, {1024*1152}")
    e(f"s_mov_b32 s{SRD_OUT+3}, 0x20000")
    e(f"v_lshrrev_b32 {T0}, 3, {L}")
    e(f"s_movk_i32 s{S_T0}, 1152")
    e(f"v_mul_lo_u32 {T0}, {T0}, s{S_T0}")
    e(f"v_and_b32 {T1}, 7, {L}")
    e(f"v_bfe_u32 {T2}, {L}, 4, 1")
    e(f"v_lshlrev_b32 {T2}, 2, {T2}")
    e(f"v_xor_b32 {T1}, {T1}, {T2}")
    e(f"v_lshl_add_u32 v{V_WD}, {T1}, 4, {T0}")
    e(f"s_mul_i32 s{S_KO}, s{S_WAVE}, {512*1152}")
    e(f"s_lshl_b32 s{S_T0}, s{S_NB}, 7")
    e(f"s_add_u32 s{S_KO}, s{S_KO}, s{S_T0}")
    e(f"s_lshl_b32 s{S_T0}, s{S_MB}, 19")
    e(f"s_lshl_b32 s{S_T1}, s{S_WAVE}, 15")
    e(f"s_add_u32 s{S_T0}, s{S_T0}, s{S_T1}")
    e(f"v_lshlrev_b32 {T0}, 4, {L}")
    e(f"v_add_u32 v{V_OA}, s{S_T0}, {T0}")
    e(f"v_add_u32 v{V_OA+1}, 0x40000, v{V_OA}")
    S_M0W = 48
    e(f"s_lshl_b32 s{S_M0W}, s{S_WAVE}, 14")
    e(f"s_mov_b32 s{S_SOFF}, s{S_KO}")
    e(f"s_mov_b32 s{S_OOFF}, 0")
    def issue(slot):
        for j in range(4):
            e(f"s_add_u32 m0, s{S_M0W}, {slot*4096 + j*1024}")
            e("s_nop 0")
            e(f"buffer_load_dwordx4 v{V_WD}, {sr(SRD_W,4)}, s{S_SOFF} offen{NT_W} lds")
            e(f"s_add_u32 s{S_SOFF}, s{S_SOFF}, {8*1152}")
        for mb2 in range(2):
            for st in range(2):
                f = V_BF + 16*slot + 8*mb2 + 4*st
                e(f"buffer_load_dwordx4 {vr(f,4)}, v{V_OA+mb2}, {sr(SRD_O,4)}, s{S_OOFF} offen offset:{st*1024}{NT_W}")
        e(f"s_add_u32 s{S_OOFF}, s{S_OOFF}, 2048")
    for c in range(AHEAD):
        issue(c)
    e(f"v_lshrrev_b32 {T0}, 5, {L}")
    e(f"v_bfe_u32 {T1}, {L}, 2, 2")
    e(f"v_lshl_add_u32 {T2}, {T0}, 3, {T1}")
    e(f"v_lshlrev_b32 {T2}, 7, {T2}")
    e(f"v_bfe_u32 {T0}, {L}, 4, 1")
    e(f"v_bfe_u32 {T3}, {L}, 1, 1")
    e(f"v_lshl_add_u32 {T0}, {T0}, 1, {T3}")
    e(f"v_lshl_add_u32 {T2}, {T0}, 4, {T2}")
    e(f"v_and_b32 {T3}, 1, {L}")
    e(f"v_lshl_add_u32 {T2}, {T3}, 3, {T2}")
    e(f"v_add_u32 {T2}, s{S_M0W}, {T2}")
    e(f"v_bfe_u32 {T1}, {L}, 3, 1")
    for nb2 in range(2):
        e(f"v_xor_b32 {T3}, {nb2}, {T1}")
        e(f"v_lshl_add_u32 v{V_WA+nb2}, {T3}, 6, {T2}")
    for i in range(64):
        e(f"v_mov_b32 v{V_ACC+i}, 0")
    def rda(slot, par):
        ab = V_AF + 16*par
        for nb2 in range(2):
            for st in range(2):
                for u in range(2):
                    e(f"ds_read_b64_tr_b16 {vr(ab+8*nb2+4*st+2*u,2)}, v{V_WA+nb2} offset:{slot*4096 + (st*16+4*u)*128}")
    stamp(e, 1)
    e(f"s_waitcnt vmcnt({8*(AHEAD-1)})")
    rda(0, 0)
    def body(c, cmod):
        slot = cmod % NS
        par = cmod % 2
        e("s_waitcnt lgkmcnt(0)")
        if c + AHEAD < NCH:
            issue((slot + AHEAD) % NS)
        if c + 1 < NCH:
            n_after = min(NCH - 1, c + AHEAD) - (c + 1)
            e(f"s_waitcnt vmcnt({8*n_after})")
            rda((slot + 1) % NS, 1 - par)
        ab = V_AF + 16*par
        for st in range(2):
            for nb2 in range(2):
                for mb2 in range(2):
                    acc = vr(V_ACC + 32*nb2 + 16*mb2, 16)
                    e(f"v_mfma_f32_32x32x16_bf16 {acc}, {vr(ab+8*nb2+4*st,4)}, {vr(V_BF+16*slot+8*mb2+4*st,4)}, {acc}")
    e(f"s_mov_b32 s{S_CNT}, 0")
    e.label("oproj_loop")
    for cm in range(4):
        body(cm, cm)
    e(f"s_add_u32 s{S_CNT}, s{S_CNT}, 1")
    e(f"s_cmp_lt_u32 s{S_CNT}, 3")
    e("s_cbranch_scc1 oproj_loop")
    stamp(e, 2)
    for c in range(12, 16):
        body(c, c)
    stamp(e, 3)
    e.nop(16)
    e("s_barrier")
    e(f"v_lshlrev_b32 {T0}, 4, {L}")
    e(f"v_add_u32 {T1}, s{S_M0W}, {T0}")
    for i in range(16):
        e(f"ds_write_b128 {T1}, {vr(V_ACC+4*i,4)} offset:{i*1024}")
    e("s_waitcnt lgkmcnt(0)")
    e("s_barrier")
    e(f"s_lshl_b32 s{S_T0}, s{S_WAVE}, 11")
    e(f"v_add_u32 {T1}, s{S_T0}, {T0}")
    e(f"v_add_u32 {T2}, 0x10000, {T1}")
    for w in range(8):
        for i in range(2):
            e(f"ds_read_b128 {vr(V_BF+8*w+4*i,4)}, {T1 if w < 4 else T2} offset:{(w%4)*16384 + i*1024}")
    e("s_waitcnt lgkmcnt(0)")
    for stp in (4, 2, 1):
        for w in range(stp):
            for i in range(0, 8, 2):
                e(f"v_pk_add_f32 {vr(V_BF+8*w+i,2)}, {vr(V_BF+8*w+i,2)}, {vr(V_BF+8*(w+stp)+i,2)}")
    e(f"s_lshl_b32 s{S_T0}, s{S_MB}, 6")
    e(f"s_bfe_u32 s{S_T1}, s{S_WAVE}, 0x10001")
    e(f"s_lshl_b32 s{S_T1}, s{S_T1}, 5")
    e(f"s_add_u32 s{S_T0}, s{S_T0}, s{S_T1}")
    e(f"v_and_b32 {T0}, 31, {L}")
    e(f"v_add_u32 {T0}, s{S_T0}, {T0}")
    e(f"s_movk_i32 s{S_T1}, 1152")
    e(f"v_mul_lo_u32 {T0}, {T0}, s{S_T1}")
    e(f"s_lshl_b32 s{S_T0}, s{S_NB}, 7")
    e(f"s_lshr_b32 s{S_T1}, s{S_WAVE}, 2")
    e(f"s_lshl_b32 s{S_T1}, s{S_T1}, 6")
    e(f"s_add_u32 s{S_T0}, s{S_T0}, s{S_T1}")
    e(f"s_and_b32 s{S_T1}, s{S_WAVE}, 1")
    e(f"s_lshl_b32 s{S_T1}, s{S_T1}, 5")
    e(f"s_add_u32 s{S_T0}, s{S_T0}, s{S_T1}")
    e(f"v_add_u32 {T0}, s{S_T0}, {T0}")
    e(f"v_lshrrev_b32 {T1}, 5, {L}")
    e(f"v_lshl_add_u32 v{V_OUT}, {T1}, 4, {T0}")
    q = V_AF
    for j in range(4):
        e(f"v_cvt_pk_bf16_f32 v{q+j}, v{V_BF+2*j}, v{V_BF+2*j+1}")
    e("s_nop 1")
    e(f"v_permlane32_swap_b32 v{q}, v{q+2}")
    e(f"v_permlane32_swap_b32 v{q+1}, v{q+3}")
    e("s_nop 1")
    e(f"buffer_store_dwordx4 {vr(q,4)}, v{V_OUT}, {sr(SRD_OUT,4)}, 0 offen")
    if STAMP:
        e("s_waitcnt vmcnt(0)")
    stamp(e, 4)
    stamp_flush(e, 5, S_WAVE, "o")
    e.label("oproj_end")
    e("s_endpgm")

def desc(name, nfv, acc, sgpr=102):
    return f""".amdhsa_kernel {name}
  .amdhsa_next_free_vgpr {nfv}
  .amdhsa_next_free_sgpr {sgpr}
  .amdhsa_accum_offset {acc}
  .amdhsa_group_segment_fixed_size 0
  .amdhsa_kernarg_size 64
  .amdhsa_user_sgpr_count 2
  .amdhsa_user_sgpr_kernarg_segment_ptr 1
  .amdhsa_system_sgpr_workgroup_id_x 1
.end_amdhsa_kernel
"""

def main():
    hdr = open("standalone__gqa_block_cached__near_ridge.s.ref").read().split("; Override launch")[0]
    e = Em()
    gen_attn(e)
    gen_oproj(e)
    out = hdr
    out += "; @launch kernel=attn_kernel grid=(256,1,1) block=(768,1,1) lds=163840\n"
    out += "; @launch kernel=oproj_kernel grid=(144,1,1) block=(512,1,1) lds=131072\n"
    out += '.amdgcn_target "amdgcn-amd-amdhsa--gfx950"\n.text\n'
    out += e.text()
    out += '.section .rodata,"a"\n.p2align 6\n'
    out += desc("attn_kernel", 168, 168)
    out += ".p2align 6\n"
    out += desc("oproj_kernel", 192, 192)
    path = sys.argv[1] if len(sys.argv) > 1 else "standalone__gqa_block_cached__near_ridge.s"
    open(path, "w").write(out)

main()
```

```python
import sys, struct

class Em:
    def __init__(self):
        self.lines = []
    def __call__(self, s):
        self.lines.append("    " + s)
    def label(self, s):
        self.lines.append(s + ":")
    def raw(self, s):
        self.lines.append(s)
    def nop(self, n):
        while n > 0:
            k = min(n, 16)
            self(f"s_nop {k-1}")
            n -= k
    def text(self):
        return "\n".join(self.lines) + "\n"

def vr(b, n=1):
    return f"v{b}" if n == 1 else f"v[{b}:{b+n-1}]"
def sr(b, n=1):
    return f"s{b}" if n == 1 else f"s[{b}:{b+n-1}]"
def f32hex(x):
    return "0x%08x" % struct.unpack("<I", struct.pack("<f", x))[0]

LOG2E = 1.4426950408889634
SCALE = 128 ** -0.5
OPT = sys.argv[2] if len(sys.argv) > 2 else ""
STAMP = "stamp" in OPT
NT_KV = " nt"
NT_W = " nt" if "ntw" in OPT else ""

def stamp(e, idx):
    if not STAMP: return
    e("s_memtime s[60:61]")
    e("s_waitcnt lgkmcnt(0)")
    e(f"s_mov_b32 s{62+idx}, s60")

def stamp_flush(e, n, wavereg, tag):
    if not STAMP: return
    e("s_load_dwordx2 s[56:57], s[0:1], 48")
    e("s_waitcnt lgkmcnt(0)")
    e("s_mov_b32 s52, s56")
    e("s_mov_b32 s53, s57")
    e("s_mov_b32 s54, 256")
    e("s_mov_b32 s55, 0x20000")
    e("s_cmp_lg_u32 s2, 5")
    e(f"s_cbranch_scc1 stamp_skip_{tag}")
    e(f"s_lshl_b32 s58, s{wavereg}, 5")
    for i in range(n):
        e(f"s_sub_u32 s59, s{62+i}, s62")
        e("v_mov_b32 v2, s59")
        e(f"v_mov_b32 v3, s58")
        e(f"buffer_store_dword v2, v3, s[52:55], 0 offen offset:{4*i}")
    e.label(f"stamp_skip_{tag}")

def rot18(e, dst, base_sgpr, add_const, rot_sgpr, tmp):
    if base_sgpr is None:
        e(f"s_add_u32 s{dst}, s{rot_sgpr}, {add_const}")
    else:
        e(f"s_add_u32 s{dst}, s{base_sgpr}, {add_const}")
        e(f"s_add_u32 s{dst}, s{dst}, s{rot_sgpr}")
    e(f"s_sub_u32 s{tmp}, s{dst}, 18")
    e(f"s_cmp_ge_u32 s{dst}, 18")
    e(f"s_cselect_b32 s{dst}, s{tmp}, s{dst}")

def gen_attn(e):
    name = "attn_kernel"
    e.raw(f".globl {name}")
    e.raw(".p2align 8")
    e.raw(f".type {name},@function")
    e.label(name)
    S_X, S_K, S_V, S_WQ, S_WS = 4, 6, 8, 10, 16
    SRD_K, SRD_X, SRD_WQ, SRD_O = 20, 28, 32, 36
    S_WAVE, S_HKV, S_B = 40, 41, 42
    S_T0, S_T1, S_T2, S_SOFF, S_C = 43, 44, 45, 46, 47
    S_CNT, S_STG, S_ROT, S_XOFF, S_QB, S_KH = 48, 49, 50, 51, 72, 73
    V_LANE = 1
    V_T0, V_T1, V_T2, V_T3 = 2, 3, 4, 5
    V_KW = 6
    V_VW = 14
    V_M, V_L = 18, 19
    V_AL2 = 20
    V_OO = 22
    V_XO = 23
    V_WA = 6
    V_D = 6
    V_O = 24
    V_S = 88
    V_Q = 104
    V_F = 136
    V_P = 160
    XSL = [V_O+32, V_O+40, V_O+48, V_O+56, V_S, V_S+8, V_Q, V_Q+8]
    STAGE = 32768
    WQ0 = 32768
    WNS = 6
    WAH = 5
    WSL = 20480
    def wslot(c): return (c + 2) % WNS
    QX0 = 131072
    NCH = 18

    e("s_cmp_ge_u32 s2, 256")
    e("s_cbranch_scc1 attn_end")
    e("s_load_dwordx4 s[4:7], s[0:1], 0")
    e("s_load_dwordx4 s[8:11], s[0:1], 16")
    e("s_load_dwordx2 s[16:17], s[0:1], 56")
    e("s_load_dwordx2 s[12:13], s[0:1], 32")
    stamp(e, 0)
    e(f"v_and_b32 v{V_LANE}, 63, v0")
    e(f"v_lshrrev_b32 v2, 6, v0")
    e("s_nop 0")
    e(f"v_readfirstlane_b32 s{S_WAVE}, v2")
    e(f"s_and_b32 s{S_HKV}, s2, 15")
    e(f"s_lshr_b32 s{S_B}, s2, 4")
    e(f"s_add_u32 s{S_ROT}, s{S_HKV}, s{S_B}")
    L = f"v{V_LANE}"
    T0, T1, T2, T3 = (f"v{x}" for x in (V_T0, V_T1, V_T2, V_T3))
    e("s_waitcnt lgkmcnt(0)")
    e(f"s_lshl_b32 s{S_T0}, s{S_HKV}, 9")
    e(f"s_add_u32 s{SRD_WQ}, s{S_WQ}, s{S_T0}")
    e(f"s_addc_u32 s{SRD_WQ+1}, s{S_WQ+1}, 0")
    e(f"s_sub_u32 s{SRD_WQ+2}, {576*8192}, s{S_T0}")
    e(f"s_mov_b32 s{SRD_WQ+3}, 0x20000")
    V_WD = 166
    e(f"v_lshrrev_b32 {T0}, 5, {L}")
    e(f"v_and_b32 {T1}, 31, {L}")
    e(f"v_lshlrev_b32 {T2}, 13, {T0}")
    for odd in range(2):
        e(f"v_add_u32 {T3}, {2*odd}, {T0}")
        e(f"v_lshlrev_b32 {T3}, 2, {T3}")
        e(f"v_xor_b32 {T3}, {T3}, {T1}")
        e(f"v_lshl_add_u32 v{V_WD+odd}, {T3}, 4, {T2}")
    S_WQR, S_WQL = 52, 53
    def wq_dma(chunk_sgpr, chunk_const, n_instr):
        rot18(e, S_SOFF, chunk_sgpr, chunk_const, S_B, S_T0)
        e(f"s_lshl_b32 s{S_SOFF}, s{S_SOFF}, 18")
        e(f"s_add_u32 s{S_SOFF}, s{S_SOFF}, s{S_WQR}")
        if chunk_sgpr is None:
            e(f"s_add_u32 m0, s{S_WQL}, {wslot(chunk_const)*WSL}")
        else:
            e(f"s_add_u32 s{S_STG}, s{chunk_sgpr}, {chunk_const}")
            e(f"s_and_b32 s{S_STG}, s{S_STG}, 7")
            e(f"s_lshl_b32 s{S_STG}, s{S_STG}, 14")
            e(f"s_add_u32 m0, s{S_STG}, s{S_WQL}")
        e("s_nop 0")
        e(f"buffer_load_dwordx4 v{V_WD}, {sr(SRD_WQ,4)}, s{S_SOFF} offen lds")
        if n_instr == 2:
            e(f"s_add_u32 s{S_SOFF}, s{S_SOFF}, {16384-1024}")
            e(f"buffer_load_dwordx4 v{V_WD+1}, {sr(SRD_WQ,4)}, s{S_SOFF} offen offset:1024 lds")
    e(f"s_cmp_ge_u32 s{S_WAVE}, 8")
    e("s_cbranch_scc1 attn_loader")
    e(f"s_add_u32 s{S_T0}, s{S_WAVE}, 8")
    e(f"s_lshl_b32 s{S_WQR}, s{S_T0}, 14")
    e(f"s_lshl_b32 s{S_WQL}, s{S_T0}, 10")
    e(f"s_add_u32 s{S_WQL}, s{S_WQL}, {WQ0}")
    e(f"s_and_b32 s{S_T0}, s{S_WAVE}, 1")
    e(f"s_cmp_eq_u32 s{S_T0}, 0")
    e("s_cbranch_scc1 attn_weven")
    e(f"v_mov_b32 v{V_WD}, v{V_WD+1}")
    e.label("attn_weven")

    e(f"s_and_b32 s{S_QB}, s{S_WAVE}, 3")
    e(f"s_lshr_b32 s{S_KH}, s{S_WAVE}, 2")
    e(f"s_mul_i32 s{S_T0}, s{S_B}, 73728")
    e(f"s_add_u32 s{SRD_X}, s{S_X}, s{S_T0}")
    e(f"s_addc_u32 s{SRD_X+1}, s{S_X+1}, 0")
    e(f"s_mov_b32 s{SRD_X+2}, 73728")
    e(f"s_mov_b32 s{SRD_X+3}, 0x20000")
    e(f"s_mov_b32 s{SRD_O}, s{S_WS}")
    e(f"s_mov_b32 s{SRD_O+1}, s{S_WS+1}")
    e(f"s_mov_b32 s{SRD_O+2}, 0x800000")
    e(f"s_mov_b32 s{SRD_O+3}, 0x20000")
    e(f"s_and_b32 s{S_T0}, s{S_QB}, 1")
    e(f"s_lshl_b32 s{S_T0}, s{S_T0}, 5")
    e(f"v_and_b32 {T0}, 31, {L}")
    e(f"v_add_u32 {T0}, s{S_T0}, {T0}")
    e(f"v_lshlrev_b32 {T0}, 6, {T0}")
    e(f"v_add_u32 {T0}, {WQ0+16384}, {T0}")
    e(f"v_lshrrev_b32 {T1}, 5, {L}")
    e(f"v_bfe_u32 {T2}, {L}, 2, 2")
    e(f"v_xor_b32 {T1}, {T1}, {T2}")
    V_XA = V_S
    for ks in range(2):
        e(f"v_xor_b32 {T2}, {2*ks}, {T1}")
        e(f"v_lshl_add_u32 v{V_XA+ks}, {T2}, 4, {T0}")
        e(f"v_add_u32 v{V_XA+2+ks}, {3*WSL}, v{V_XA+ks}")
    for c in range(WAH):
        wq_dma(None, c, 1)
    e(f"v_lshrrev_b32 {T0}, 5, {L}")
    e(f"v_bfe_u32 {T1}, {L}, 2, 2")
    e(f"v_lshl_add_u32 {T2}, {T0}, 3, {T1}")
    e(f"v_lshlrev_b32 {T2}, 9, {T2}")
    e(f"v_bfe_u32 {T0}, {L}, 4, 1")
    e(f"v_bfe_u32 {T3}, {L}, 1, 1")
    e(f"v_lshl_add_u32 {T0}, {T0}, 1, {T3}")
    e(f"v_lshl_add_u32 {T2}, {T0}, 4, {T2}")
    e(f"v_and_b32 {T3}, 1, {L}")
    e(f"v_lshl_add_u32 {T2}, {T3}, 3, {T2}")
    e(f"v_add_u32 {T2}, {WQ0}, {T2}")
    e(f"s_lshr_b32 s{S_T0}, s{S_QB}, 1")
    e(f"s_lshl_b32 s{S_T0}, s{S_T0}, 2")
    e(f"s_lshl_b32 s{S_T1}, s{S_KH}, 1")
    e(f"s_add_u32 s{S_T0}, s{S_T0}, s{S_T1}")
    for d2 in range(2):
        e(f"s_add_u32 s{S_T1}, s{S_T0}, {d2}")
        e(f"v_xor_b32 {T3}, s{S_T1}, {T1}")
        e(f"v_lshl_add_u32 v{V_WA+d2}, {T3}, 6, {T2}")
    e(f"s_and_b32 s{S_T0}, s{S_QB}, 1")
    e(f"s_lshl_b32 s{S_T1}, s{S_B}, 1")
    e(f"s_add_u32 s{S_T0}, s{S_T0}, s{S_T1}")
    e(f"s_lshl_b32 s{S_T0}, s{S_T0}, 18")
    e(f"s_lshl_b32 s{S_T1}, s{S_HKV}, 1")
    e(f"s_lshr_b32 s{S_T2}, s{S_QB}, 1")
    e(f"s_add_u32 s{S_T1}, s{S_T1}, s{S_T2}")
    e(f"s_lshl_b32 s{S_T1}, s{S_T1}, 13")
    e(f"s_add_u32 s{S_T0}, s{S_T0}, s{S_T1}")
    e(f"v_lshlrev_b32 {T0}, 4, {L}")
    e(f"v_add_u32 v{V_OO}, s{S_T0}, {T0}")
    for i in range(32):
        e(f"v_mov_b32 v{V_O+i}, 0")

    def qchunk(c, issue_next, wait_n):
        slot = wslot(c)
        e(f"s_waitcnt vmcnt({wait_n})")
        e("s_barrier")
        seq = [(ks, d2) for ks in range(2) for d2 in range(2)]
        hi = slot >= 3
        xs = XSL[c % 2]
        for ks in range(2):
            e(f"ds_read_b128 {vr(xs+4*ks,4)}, v{V_XA+ks+(2 if hi else 0)} offset:{(slot%3)*WSL}")
        for idx, (ks, d2) in enumerate(seq):
            f = V_F + 4*idx
            for u in range(2):
                e(f"ds_read_b64_tr_b16 {vr(f+2*u,2)}, v{V_WA+d2+(2 if hi else 0)} offset:{(slot%3)*WSL + (ks*16+4*u)*512}")
        if issue_next:
            wq_dma(None, c+WAH, 1)
        for idx, (ks, d2) in enumerate(seq):
            f = V_F + 4*idx
            e(f"s_waitcnt lgkmcnt({2*(3-idx)})")
            acc = vr(V_O + 16*d2, 16)
            e(f"v_mfma_f32_32x32x16_bf16 {acc}, {vr(f,4)}, {vr(xs+4*ks,4)}, {acc}")
    for d2 in range(2):
        e(f"v_add_u32 v{V_WA+2+d2}, {3*WSL}, v{V_WA+d2}")
    e(f"s_mov_b32 s{S_CNT}, 0")
    for c in range(NCH):
        if c == 8:
            e(f"s_mov_b32 s{S_CNT}, 8")
        if c == 16:
            e(f"s_mov_b32 s{S_CNT}, 16")
        n_after = min(NCH - 1, c + WAH - 1) - c
        if c == 0: stamp(e, 4)
        qchunk(c, c + WAH < NCH, n_after)
        if c in (0, 1, 9): stamp(e, {0:5, 1:6, 9:7}[c])
    stamp(e, 1)
    e.nop(16)
    e(f"s_lshl_b32 s{S_T0}, s{S_QB}, 13")
    e(f"s_add_u32 s{S_T0}, s{S_T0}, {QX0}")
    e(f"v_lshlrev_b32 {T0}, 4, {L}")
    e(f"v_add_u32 {T0}, s{S_T0}, {T0}")
    e(f"s_lshl_b32 s{S_T1}, s{S_KH}, 12")
    e(f"v_add_u32 {T1}, s{S_T1}, {T0}")
    for kl in range(4):
        d2, hf = kl // 2, kl % 2
        src = V_O + 16*d2 + 8*hf
        q = V_F + 4*kl
        for j in range(4):
            e(f"v_cvt_pk_bf16_f32 v{q+j}, v{src+2*j}, v{src+2*j+1}")
        e("s_nop 1")
        e(f"v_permlane32_swap_b32 v{q}, v{q+2}")
        e(f"v_permlane32_swap_b32 v{q+1}, v{q+3}")
        e("s_nop 1")
        e(f"ds_write_b128 {T1}, {vr(q,4)} offset:{kl*1024}")
    e("s_waitcnt lgkmcnt(0)")
    e("s_barrier")
    for ks in range(8):
        e(f"ds_read_b128 {vr(V_Q+4*ks,4)}, {T0} offset:{ks*1024}")
    e(f"v_lshrrev_b32 {T0}, 5, {L}")
    e(f"v_and_b32 {T1}, 15, {L}")
    e(f"v_xor_b32 {T0}, {T0}, {T1}")
    e(f"v_and_b32 {T1}, 31, {L}")
    e(f"v_lshlrev_b32 {T1}, 8, {T1}")
    e(f"s_lshl_b32 s{S_T0}, s{S_KH}, 13")
    e(f"v_add_u32 {T1}, s{S_T0}, {T1}")
    for ks in range(8):
        e(f"v_xor_b32 {T2}, {2*ks}, {T0}")
        e(f"v_lshl_add_u32 v{V_KW+ks}, {T2}, 4, {T1}")
    e(f"v_lshrrev_b32 {T0}, 5, {L}")
    e(f"v_bfe_u32 {T1}, {L}, 2, 2")
    e(f"v_lshl_add_u32 {T2}, {T0}, 2, {T1}")
    e(f"v_lshlrev_b32 {T2}, 8, {T2}")
    e(f"s_add_u32 s{S_T0}, s{S_T0}, 16384")
    e(f"v_add_u32 {T2}, s{S_T0}, {T2}")
    e(f"v_bfe_u32 {T0}, {L}, 4, 1")
    e(f"v_bfe_u32 {T3}, {L}, 1, 1")
    e(f"v_lshl_add_u32 {T0}, {T0}, 1, {T3}")
    e(f"v_lshl_add_u32 {T2}, {T0}, 4, {T2}")
    e(f"v_and_b32 {T3}, 1, {L}")
    e(f"v_lshl_add_u32 {T2}, {T3}, 3, {T2}")
    for db in range(4):
        e(f"v_xor_b32 {T3}, {db}, {T1}")
        e(f"v_lshl_add_u32 v{V_VW+db}, {T3}, 6, {T2}")
    e(f"v_mov_b32 v{V_M}, 0xff800000")
    e(f"v_mov_b32 v{V_L}, 0")
    for i in range(64):
        e(f"v_mov_b32 v{V_O+i}, 0")
    e(f"s_mov_b32 s{S_C}, {f32hex(SCALE*LOG2E)}")
    e(f"s_mov_b32 s{S_CNT}, 0")
    e(f"s_mov_b32 s{S_T2}, 0x1ffff")
    e("s_waitcnt lgkmcnt(0)")

    e.label("attn_loop")
    e("s_barrier")
    def rdk(ks):
        f = V_F + 4*(ks % 6)
        e(f"ds_read_b128 {vr(f,4)}, v{V_KW+ks}")
    for ks in range(6):
        rdk(ks)
    seqv = [(ks, db) for ks in range(2) for db in range(4)]
    def rdv(idx):
        ks, db = seqv[idx]
        f = V_F + 4*((8 + idx) % 6)
        for u in range(2):
            e(f"ds_read_b64_tr_b16 {vr(f+2*u,2)}, v{V_VW+db} offset:{ks*4096 + u*2048}")
    issued = 6
    for ks in range(8):
        f = V_F + 4*(ks % 6)
        later_k = max(0, min(8, issued) - ks - 1)
        later_v = max(0, issued - 8)
        e(f"s_waitcnt lgkmcnt({later_k + 2*later_v})")
        acc = vr(V_S, 16)
        cc = "0" if ks == 0 else acc
        e(f"v_mfma_f32_32x32x16_bf16 {acc}, {vr(f,4)}, {vr(V_Q+4*ks,4)}, {cc}")
        if issued < 8:
            rdk(issued)
        else:
            rdv(issued - 8)
        issued += 1
    for i in range(8):
        e(f"v_add_u32 v{V_KW+i}, 0x8000, v{V_KW+i}")
        e(f"v_and_b32 v{V_KW+i}, s{S_T2}, v{V_KW+i}")
    S = lambda i: f"v{V_S+i}"
    e(f"v_max3_f32 {T0}, {S(0)}, {S(1)}, {S(2)}")
    e(f"v_max3_f32 {T1}, {S(3)}, {S(4)}, {S(5)}")
    e(f"v_max3_f32 {T0}, {T0}, {S(6)}, {S(7)}")
    e(f"v_max3_f32 {T1}, {T1}, {S(8)}, {S(9)}")
    e(f"v_max3_f32 {T0}, {T0}, {S(10)}, {S(11)}")
    e(f"v_max3_f32 {T1}, {T1}, {S(12)}, {S(13)}")
    e(f"v_max3_f32 {T0}, {T0}, {S(14)}, {S(15)}")
    e(f"v_max_f32 {T0}, {T0}, {T1}")
    e(f"v_mov_b32 {T1}, {T0}")
    e("s_nop 1")
    e(f"v_permlane32_swap_b32 {T0}, {T1}")
    e("s_nop 1")
    e(f"v_max3_f32 {T0}, {T0}, {T1}, v{V_M}")
    e(f"v_cmp_neq_f32 vcc, {T0}, v{V_M}")
    e(f"v_sub_f32 {T1}, v{V_M}, {T0}")
    e(f"v_mul_f32 {T1}, s{S_C}, {T1}")
    e(f"v_exp_f32 v{V_AL2}, {T1}")
    e(f"v_mov_b32 v{V_M}, {T0}")
    e(f"v_mul_f32 {T0}, s{S_C}, {T0}")
    e(f"v_mov_b32 v{V_AL2+1}, v{V_AL2}")
    for i in range(16):
        e(f"v_fma_f32 {S(i)}, {S(i)}, s{S_C}, -{T0}")
    for i in range(16):
        e(f"v_exp_f32 {S(i)}, {S(i)}")
    e("s_cbranch_vccz attn_noresc")
    e(f"v_mul_f32 v{V_L}, v{V_L}, v{V_AL2}")
    for i in range(0, 64, 2):
        e(f"v_pk_mul_f32 {vr(V_O+i,2)}, {vr(V_O+i,2)}, {vr(V_AL2,2)}")
    e.label("attn_noresc")
    e(f"v_add_f32 {T1}, {S(0)}, {S(1)}")
    e(f"v_add_f32 {T2}, {S(2)}, {S(3)}")
    for i in range(4, 16, 2):
        tt = T1 if (i // 2) % 2 == 0 else T2
        e(f"v_add_f32 {tt}, {tt}, {S(i)}")
        e(f"v_add_f32 {tt}, {tt}, {S(i+1)}")
    e(f"v_add_f32 {T1}, {T1}, {T2}")
    e(f"v_add_f32 v{V_L}, v{V_L}, {T1}")
    for ks in range(2):
        for j in range(4):
            e(f"v_cvt_pk_bf16_f32 v{V_P+4*ks+j}, {S(8*ks+2*j)}, {S(8*ks+2*j+1)}")
    e("s_nop 1")
    for idx in range(8):
        ks, db = seqv[idx]
        f = V_F + 4*((8 + idx) % 6)
        later_v = max(0, (issued - 8) - idx - 1)
        e(f"s_waitcnt lgkmcnt({2*later_v})")
        acc = vr(V_O + 16*db, 16)
        e(f"v_mfma_f32_32x32x16_bf16 {acc}, {vr(f,4)}, {vr(V_P+4*ks,4)}, {acc}")
        if issued < 16:
            rdv(issued - 8)
            issued += 1
    for i in range(4):
        e(f"v_add_u32 v{V_VW+i}, 0x8000, v{V_VW+i}")
        e(f"v_and_b32 v{V_VW+i}, s{S_T2}, v{V_VW+i}")
    e(f"s_add_u32 s{S_CNT}, s{S_CNT}, 1")
    e(f"s_cmp_lt_u32 s{S_CNT}, 16")
    e("s_cbranch_scc1 attn_loop")
    stamp(e, 2)
    e.nop(16)
    e(f"v_mov_b32 {T0}, v{V_L}")
    e(f"v_mov_b32 {T1}, v{V_L}")
    e("s_nop 1")
    e(f"v_permlane32_swap_b32 {T0}, {T1}")
    e("s_nop 1")
    e(f"v_add_f32 v{V_L}, {T0}, {T1}")
    e("s_barrier")
    e(f"s_mul_i32 s{S_T0}, s{S_QB}, 17408")
    e(f"v_lshlrev_b32 {T0}, 4, {L}")
    e(f"v_add_u32 {T0}, s{S_T0}, {T0}")
    e(f"v_lshlrev_b32 {T1}, 3, {L}")
    e(f"v_add_u32 {T1}, s{S_T0}, {T1}")
    e(f"s_cmp_eq_u32 s{S_KH}, 0")
    e("s_cbranch_scc1 attn_merge0")
    for i in range(16):
        e(f"ds_write_b128 {T0}, {vr(V_O+4*i,4)} offset:{i*1024}")
    e(f"ds_write_b64 {T1}, {vr(V_M,2)} offset:16384")
    e("s_waitcnt lgkmcnt(0)")
    e("s_barrier")
    e("s_endpgm")
    e.label("attn_merge0")
    e("s_barrier")
    e(f"ds_read_b64 {vr(V_P,2)}, {T1} offset:16384")
    for i in range(8):
        e(f"ds_read_b128 {vr(V_Q+4*i,4)}, {T0} offset:{i*1024}")
    e("s_waitcnt lgkmcnt(8)")
    e(f"v_max_f32 {T2}, v{V_M}, v{V_P}")
    e(f"v_sub_f32 {T3}, v{V_M}, {T2}")
    e(f"v_mul_f32 {T3}, s{S_C}, {T3}")
    e(f"v_exp_f32 v{V_AL2}, {T3}")
    e(f"v_sub_f32 {T3}, v{V_P}, {T2}")
    e(f"v_mul_f32 {T3}, s{S_C}, {T3}")
    e(f"v_exp_f32 v{V_P+2}, {T3}")
    e("s_nop 0")
    e(f"v_mul_f32 v{V_L}, v{V_L}, v{V_AL2}")
    e(f"v_fma_f32 v{V_L}, v{V_P+1}, v{V_P+2}, v{V_L}")
    e(f"v_rcp_f32 {T3}, v{V_L}")
    e("s_nop 0")
    e(f"v_mul_f32 v{V_AL2}, v{V_AL2}, {T3}")
    e(f"v_mul_f32 v{V_P+2}, v{V_P+2}, {T3}")
    e(f"v_mov_b32 v{V_AL2+1}, v{V_AL2}")
    e(f"v_mov_b32 v{V_P+3}, v{V_P+2}")
    e(f"s_movk_i32 s{S_T0}, 4096")
    e(f"s_mov_b32 s{S_T1}, 0")
    for half in range(2):
        if half == 1:
            for i in range(8):
                e(f"ds_read_b128 {vr(V_Q+4*i,4)}, {T0} offset:{(8+i)*1024}")
        e("s_waitcnt lgkmcnt(0)")
        for i in range(0, 32, 2):
            o = V_O + 32*half + i
            e(f"v_pk_mul_f32 {vr(o,2)}, {vr(o,2)}, {vr(V_AL2,2)}")
            e(f"v_pk_fma_f32 {vr(o,2)}, {vr(V_Q+i,2)}, {vr(V_P+2,2)}, {vr(o,2)}")
        for d2 in range(2):
            db = 2*half + d2
            for pr in range(2):
                src = V_O + 16*db + 8*pr
                q = V_F + 4*((2*db+pr) % 6)
                for j in range(4):
                    e(f"v_cvt_pk_bf16_f32 v{q+j}, v{src+2*j}, v{src+2*j+1}")
                e("s_nop 1")
                e(f"v_permlane32_swap_b32 v{q}, v{q+2}")
                e(f"v_permlane32_swap_b32 v{q+1}, v{q+3}")
                e("s_nop 1")
                e(f"buffer_store_dwordx4 {vr(q,4)}, v{V_OO}, {sr(SRD_O,4)}, s{S_T0 if db >= 2 else S_T1} offen offset:{((2*db+pr)%4)*1024}")
    if STAMP:
        e("s_waitcnt vmcnt(0)")
    stamp(e, 3)
    stamp_flush(e, 8, S_WAVE, "c")
    e("s_endpgm")

    e.label("attn_loader")
    SRD_V = 24
    S_J4K = 54
    e(f"s_sub_u32 s{S_T1}, s{S_WAVE}, 8")
    e(f"s_lshl_b32 s{S_J4K}, s{S_T1}, 12")
    e(f"s_lshl_b32 s{S_WQR}, s{S_T1}, 15")
    e(f"s_lshl_b32 s{S_WQL}, s{S_T1}, 11")
    e(f"s_add_u32 s{S_WQL}, s{S_WQL}, {WQ0}")
    e(f"s_lshl_b32 s{S_T0}, s{S_B}, 4")
    e(f"s_add_u32 s{S_T0}, s{S_T0}, s{S_HKV}")
    e(f"s_lshl_b32 s{S_T0}, s{S_T0}, 18")
    e(f"s_add_u32 s{SRD_K}, s{S_K}, s{S_T0}")
    e(f"s_addc_u32 s{SRD_K+1}, s{S_K+1}, 0")
    e(f"s_mov_b32 s{SRD_K+2}, 0x40000")
    e(f"s_mov_b32 s{SRD_K+3}, 0x20000")
    e(f"s_add_u32 s{SRD_V}, s{S_V}, s{S_T0}")
    e(f"s_addc_u32 s{SRD_V+1}, s{S_V+1}, 0")
    e(f"s_mov_b32 s{SRD_V+2}, 0x40000")
    e(f"s_mov_b32 s{SRD_V+3}, 0x20000")
    e(f"s_mul_i32 s{S_T0}, s{S_B}, 73728")
    e(f"s_add_u32 s{SRD_X}, s{S_X}, s{S_T0}")
    e(f"s_addc_u32 s{SRD_X+1}, s{S_X+1}, 0")
    e(f"s_mov_b32 s{SRD_X+2}, 73728")
    e(f"s_mov_b32 s{SRD_X+3}, 0x20000")
    V_XD = 11
    S_XL = 55
    e(f"s_lshl_b32 s{S_XL}, s{S_T1}, 10")
    e(f"s_add_u32 s{S_XL}, s{S_XL}, {WQ0+16384}")
    e(f"s_lshl_b32 s{S_T0}, s{S_T1}, 4")
    e(f"v_lshrrev_b32 {T0}, 2, {L}")
    e(f"v_add_u32 {T0}, s{S_T0}, {T0}")
    e(f"s_movk_i32 s{S_T0}, 1152")
    e(f"v_mul_lo_u32 {T0}, {T0}, s{S_T0}")
    e(f"v_and_b32 {T1}, 3, {L}")
    e(f"v_bfe_u32 {T2}, {L}, 4, 2")
    e(f"v_xor_b32 {T1}, {T1}, {T2}")
    e(f"v_lshl_add_u32 v{V_XD}, {T1}, 4, {T0}")
    def x_dma(c):
        rot18(e, S_XOFF, None, c, S_B, S_T0)
        e(f"s_lshl_b32 s{S_XOFF}, s{S_XOFF}, 6")
        e(f"s_add_u32 m0, s{S_XL}, {wslot(c)*WSL}")
        e("s_nop 0")
        e(f"buffer_load_dwordx4 v{V_XD}, {sr(SRD_X,4)}, s{S_XOFF} offen lds")
    for c in range(WAH):
        x_dma(c)
        wq_dma(None, c, 2)
    e(f"v_lshrrev_b32 {T0}, 4, {L}")
    e(f"v_and_b32 {T1}, 15, {L}")
    e(f"v_lshlrev_b32 {T2}, 8, {T0}")
    e(f"v_lshlrev_b32 {T3}, 2, {T0}")
    e(f"v_xor_b32 {T3}, {T1}, {T3}")
    e(f"v_lshl_add_u32 v{V_D+4}, {T3}, 4, {T2}")
    e(f"v_xor_b32 {T1}, {T1}, {T0}")
    for i in range(4):
        e(f"v_xor_b32 {T3}, {4*i}, {T1}")
        e(f"v_lshl_add_u32 v{V_D+i}, {T3}, 4, {T2}")
    def tile_issue():
        e(f"s_add_u32 s{S_SOFF}, s{S_ROT}, s{S_T2}")
        e(f"s_and_b32 s{S_SOFF}, s{S_SOFF}, 15")
        e(f"s_lshl_b32 s{S_SOFF}, s{S_SOFF}, 14")
        e(f"s_add_u32 s{S_SOFF}, s{S_SOFF}, s{S_J4K}")
        e(f"s_and_b32 s{S_STG}, s{S_T2}, 3")
        e(f"s_lshl_b32 s{S_STG}, s{S_STG}, 15")
        e(f"s_add_u32 m0, s{S_STG}, s{S_J4K}")
        e(f"s_add_u32 s{S_STG}, m0, 16384")
        for i in range(4):
            e(f"buffer_load_dwordx4 v{V_D+i}, {sr(SRD_K,4)}, s{S_SOFF} offen offset:{i*1024}{NT_KV} lds")
        e(f"s_mov_b32 m0, s{S_STG}")
        e("s_nop 0")
        for i in range(4):
            e(f"buffer_load_dwordx4 v{V_D+4}, {sr(SRD_V,4)}, s{S_SOFF} offen offset:{i*1024}{NT_KV} lds")
    e(f"s_mov_b32 s{S_T2}, 0")
    tile_issue()
    for c in range(NCH):
        n_after = min(NCH - 1, c + WAH - 1) - c
        e(f"s_waitcnt vmcnt({3*n_after + (8 if c < WAH else 0) + (5 if c >= NCH-WAH else 0)})")
        e("s_barrier")
        if c + WAH < NCH:
            x_dma(c + WAH)
            wq_dma(None, c + WAH, 2)
        if c == NCH-WAH-1:
            e("s_mov_b32 s76, s12")
            e("s_mov_b32 s77, s13")
            e(f"s_mov_b32 s78, {4096*1152}")
            e("s_mov_b32 s79, 0x20000")
            e(f"s_mul_i32 s{S_T0}, s2, 18432")
            e(f"s_mul_i32 s{S_SOFF}, s{S_WAVE}, 5120")
            e(f"s_add_u32 s{S_T0}, s{S_T0}, s{S_SOFF}")
            e(f"s_sub_u32 s{S_T0}, s{S_T0}, {8*5120}")
            e(f"v_lshlrev_b32 v12, 4, {L}")
            e(f"v_add_u32 v12, s{S_T0}, v12")
            e(f"v_add_u32 v13, 4096, v12")
            for k in range(4):
                e(f"buffer_load_dwordx4 v[{20+4*k}:{23+4*k}], v12, s[76:79], 0 offen offset:{k*1024}")
            e(f"buffer_load_dwordx4 v[36:39], v13, s[76:79], 0 offen")
    e("s_barrier")
    e(f"s_mov_b32 s{S_T2}, 1")
    e.label("attn_ldpro")
    tile_issue()
    e(f"s_add_u32 s{S_T2}, s{S_T2}, 1")
    e(f"s_cmp_lt_u32 s{S_T2}, 3")
    e("s_cbranch_scc1 attn_ldpro")
    e(f"s_mov_b32 s{S_CNT}, 0")
    e.label("attn_ldloop")
    e(f"s_cmp_lt_u32 s{S_CNT}, 14")
    e("s_cbranch_scc1 attn_ldw32")
    e(f"s_cmp_eq_u32 s{S_CNT}, 14")
    e("s_cbranch_scc1 attn_ldw16")
    e("s_waitcnt vmcnt(0)")
    e("s_branch attn_ldw")
    e.label("attn_ldw16")
    e("s_waitcnt vmcnt(8)")
    e("s_branch attn_ldw")
    e.label("attn_ldw32")
    e("s_waitcnt vmcnt(16)")
    e.label("attn_ldw")
    e("s_barrier")
    e(f"s_add_u32 s{S_T2}, s{S_CNT}, 3")
    e(f"s_cmp_ge_u32 s{S_T2}, 16")
    e("s_cbranch_scc1 attn_ldskip")
    tile_issue()
    e.label("attn_ldskip")
    e(f"s_add_u32 s{S_CNT}, s{S_CNT}, 1")
    e(f"s_cmp_lt_u32 s{S_CNT}, 16")
    e("s_cbranch_scc1 attn_ldloop")
    e("s_barrier")
    e("s_barrier")
    e.label("attn_end")
    e("s_endpgm")

def gen_oproj(e):
    name = "oproj_kernel"
    e.raw(f".globl {name}")
    e.raw(".p2align 8")
    e.raw(f".type {name},@function")
    e.label(name)
    SRD_O, SRD_W, SRD_OUT = 20, 24, 28
    S_WAVE, S_MB, S_NB, S_T0, S_T1, S_SOFF, S_KO, S_CNT, S_OOFF = 40, 41, 42, 43, 44, 46, 47, 49, 50
    V_LANE = 1
    V_T0, V_T1, V_T2, V_T3 = 2, 3, 4, 5
    V_WD = 6
    V_WA = 8
    V_OA = 10
    V_OUT = 13
    V_AF = 16
    V_ACC = 64
    V_BF = 128
    NS = 4
    AHEAD = 3
    NCH = 16
    L = f"v{V_LANE}"
    T0, T1, T2, T3 = (f"v{x}" for x in (V_T0, V_T1, V_T2, V_T3))
    e("s_cmp_ge_u32 s2, 144")
    e("s_cbranch_scc1 oproj_end")
    e("s_load_dwordx4 s[4:7], s[0:1], 32")
    e("s_load_dwordx2 s[16:17], s[0:1], 56")
    stamp(e, 0)
    e(f"v_and_b32 {L}, 63, v0")
    e(f"v_lshrrev_b32 v2, 6, v0")
    e("s_nop 0")
    e(f"v_readfirstlane_b32 s{S_WAVE}, v2")
    e(f"s_and_b32 s{S_MB}, s2, 15")
    e(f"s_lshr_b32 s{S_NB}, s2, 4")
    e("s_waitcnt lgkmcnt(0)")
    e(f"s_mov_b32 s{SRD_O}, s16")
    e(f"s_mov_b32 s{SRD_O+1}, s17")
    e(f"s_mov_b32 s{SRD_O+2}, 0x800000")
    e(f"s_mov_b32 s{SRD_O+3}, 0x20000")
    e(f"s_mov_b32 s{SRD_W}, s4")
    e(f"s_mov_b32 s{SRD_W+1}, s5")
    e(f"s_mov_b32 s{SRD_W+2}, {4096*1152}")
    e(f"s_mov_b32 s{SRD_W+3}, 0x20000")
    e(f"s_mov_b32 s{SRD_OUT}, s6")
    e(f"s_mov_b32 s{SRD_OUT+1}, s7")
    e(f"s_mov_b32 s{SRD_OUT+2}, {1024*1152}")
    e(f"s_mov_b32 s{SRD_OUT+3}, 0x20000")
    e(f"v_lshrrev_b32 {T0}, 3, {L}")
    e(f"s_movk_i32 s{S_T0}, 1152")
    e(f"v_mul_lo_u32 {T0}, {T0}, s{S_T0}")
    e(f"v_and_b32 {T1}, 7, {L}")
    e(f"v_bfe_u32 {T2}, {L}, 4, 1")
    e(f"v_lshlrev_b32 {T2}, 2, {T2}")
    e(f"v_xor_b32 {T1}, {T1}, {T2}")
    e(f"v_lshl_add_u32 v{V_WD}, {T1}, 4, {T0}")
    e(f"s_mul_i32 s{S_KO}, s{S_WAVE}, {512*1152}")
    e(f"s_lshl_b32 s{S_T0}, s{S_NB}, 7")
    e(f"s_add_u32 s{S_KO}, s{S_KO}, s{S_T0}")
    e(f"s_lshl_b32 s{S_T0}, s{S_MB}, 19")
    e(f"s_lshl_b32 s{S_T1}, s{S_WAVE}, 15")
    e(f"s_add_u32 s{S_T0}, s{S_T0}, s{S_T1}")
    e(f"v_lshlrev_b32 {T0}, 4, {L}")
    e(f"v_add_u32 v{V_OA}, s{S_T0}, {T0}")
    e(f"v_add_u32 v{V_OA+1}, 0x40000, v{V_OA}")
    S_M0W = 48
    e(f"s_lshl_b32 s{S_M0W}, s{S_WAVE}, 14")
    e(f"s_mov_b32 s{S_SOFF}, s{S_KO}")
    e(f"s_mov_b32 s{S_OOFF}, 0")
    def issue(slot):
        for j in range(4):
            e(f"s_add_u32 m0, s{S_M0W}, {slot*4096 + j*1024}")
            e("s_nop 0")
            e(f"buffer_load_dwordx4 v{V_WD}, {sr(SRD_W,4)}, s{S_SOFF} offen{NT_W} lds")
            e(f"s_add_u32 s{S_SOFF}, s{S_SOFF}, {8*1152}")
        for mb2 in range(2):
            for st in range(2):
                f = V_BF + 16*slot + 8*mb2 + 4*st
                e(f"buffer_load_dwordx4 {vr(f,4)}, v{V_OA+mb2}, {sr(SRD_O,4)}, s{S_OOFF} offen offset:{st*1024}{NT_W}")
        e(f"s_add_u32 s{S_OOFF}, s{S_OOFF}, 2048")
    for c in range(AHEAD):
        issue(c)
    e(f"v_lshrrev_b32 {T0}, 5, {L}")
    e(f"v_bfe_u32 {T1}, {L}, 2, 2")
    e(f"v_lshl_add_u32 {T2}, {T0}, 3, {T1}")
    e(f"v_lshlrev_b32 {T2}, 7, {T2}")
    e(f"v_bfe_u32 {T0}, {L}, 4, 1")
    e(f"v_bfe_u32 {T3}, {L}, 1, 1")
    e(f"v_lshl_add_u32 {T0}, {T0}, 1, {T3}")
    e(f"v_lshl_add_u32 {T2}, {T0}, 4, {T2}")
    e(f"v_and_b32 {T3}, 1, {L}")
    e(f"v_lshl_add_u32 {T2}, {T3}, 3, {T2}")
    e(f"v_add_u32 {T2}, s{S_M0W}, {T2}")
    e(f"v_bfe_u32 {T1}, {L}, 3, 1")
    for nb2 in range(2):
        e(f"v_xor_b32 {T3}, {nb2}, {T1}")
        e(f"v_lshl_add_u32 v{V_WA+nb2}, {T3}, 6, {T2}")
    for i in range(64):
        e(f"v_mov_b32 v{V_ACC+i}, 0")
    def rda(slot, par):
        ab = V_AF + 16*par
        for nb2 in range(2):
            for st in range(2):
                for u in range(2):
                    e(f"ds_read_b64_tr_b16 {vr(ab+8*nb2+4*st+2*u,2)}, v{V_WA+nb2} offset:{slot*4096 + (st*16+4*u)*128}")
    stamp(e, 1)
    e(f"s_waitcnt vmcnt({8*(AHEAD-1)})")
    rda(0, 0)
    def body(c, cmod):
        slot = cmod % NS
        par = cmod % 2
        e("s_waitcnt lgkmcnt(0)")
        if c + AHEAD < NCH:
            issue((slot + AHEAD) % NS)
        if c + 1 < NCH:
            n_after = min(NCH - 1, c + AHEAD) - (c + 1)
            e(f"s_waitcnt vmcnt({8*n_after})")
            rda((slot + 1) % NS, 1 - par)
        ab = V_AF + 16*par
        for st in range(2):
            for nb2 in range(2):
                for mb2 in range(2):
                    acc = vr(V_ACC + 32*nb2 + 16*mb2, 16)
                    e(f"v_mfma_f32_32x32x16_bf16 {acc}, {vr(ab+8*nb2+4*st,4)}, {vr(V_BF+16*slot+8*mb2+4*st,4)}, {acc}")
    e(f"s_mov_b32 s{S_CNT}, 0")
    e.label("oproj_loop")
    for cm in range(4):
        body(cm, cm)
    e(f"s_add_u32 s{S_CNT}, s{S_CNT}, 1")
    e(f"s_cmp_lt_u32 s{S_CNT}, 3")
    e("s_cbranch_scc1 oproj_loop")
    stamp(e, 2)
    for c in range(12, 16):
        body(c, c)
    stamp(e, 3)
    e.nop(16)
    e("s_barrier")
    e(f"v_lshlrev_b32 {T0}, 4, {L}")
    e(f"v_add_u32 {T1}, s{S_M0W}, {T0}")
    for i in range(16):
        e(f"ds_write_b128 {T1}, {vr(V_ACC+4*i,4)} offset:{i*1024}")
    e("s_waitcnt lgkmcnt(0)")
    e("s_barrier")
    e(f"s_lshl_b32 s{S_T0}, s{S_WAVE}, 11")
    e(f"v_add_u32 {T1}, s{S_T0}, {T0}")
    e(f"v_add_u32 {T2}, 0x10000, {T1}")
    for w in range(8):
        for i in range(2):
            e(f"ds_read_b128 {vr(V_BF+8*w+4*i,4)}, {T1 if w < 4 else T2} offset:{(w%4)*16384 + i*1024}")
    e("s_waitcnt lgkmcnt(0)")
    for stp in (4, 2, 1):
        for w in range(stp):
            for i in range(0, 8, 2):
                e(f"v_pk_add_f32 {vr(V_BF+8*w+i,2)}, {vr(V_BF+8*w+i,2)}, {vr(V_BF+8*(w+stp)+i,2)}")
    e(f"s_lshl_b32 s{S_T0}, s{S_MB}, 6")
    e(f"s_bfe_u32 s{S_T1}, s{S_WAVE}, 0x10001")
    e(f"s_lshl_b32 s{S_T1}, s{S_T1}, 5")
    e(f"s_add_u32 s{S_T0}, s{S_T0}, s{S_T1}")
    e(f"v_and_b32 {T0}, 31, {L}")
    e(f"v_add_u32 {T0}, s{S_T0}, {T0}")
    e(f"s_movk_i32 s{S_T1}, 1152")
    e(f"v_mul_lo_u32 {T0}, {T0}, s{S_T1}")
    e(f"s_lshl_b32 s{S_T0}, s{S_NB}, 7")
    e(f"s_lshr_b32 s{S_T1}, s{S_WAVE}, 2")
    e(f"s_lshl_b32 s{S_T1}, s{S_T1}, 6")
    e(f"s_add_u32 s{S_T0}, s{S_T0}, s{S_T1}")
    e(f"s_and_b32 s{S_T1}, s{S_WAVE}, 1")
    e(f"s_lshl_b32 s{S_T1}, s{S_T1}, 5")
    e(f"s_add_u32 s{S_T0}, s{S_T0}, s{S_T1}")
    e(f"v_add_u32 {T0}, s{S_T0}, {T0}")
    e(f"v_lshrrev_b32 {T1}, 5, {L}")
    e(f"v_lshl_add_u32 v{V_OUT}, {T1}, 4, {T0}")
    q = V_AF
    for j in range(4):
        e(f"v_cvt_pk_bf16_f32 v{q+j}, v{V_BF+2*j}, v{V_BF+2*j+1}")
    e("s_nop 1")
    e(f"v_permlane32_swap_b32 v{q}, v{q+2}")
    e(f"v_permlane32_swap_b32 v{q+1}, v{q+3}")
    e("s_nop 1")
    e(f"buffer_store_dwordx4 {vr(q,4)}, v{V_OUT}, {sr(SRD_OUT,4)}, 0 offen")
    if STAMP:
        e("s_waitcnt vmcnt(0)")
    stamp(e, 4)
    stamp_flush(e, 5, S_WAVE, "o")
    e.label("oproj_end")
    e("s_endpgm")

def desc(name, nfv, acc, sgpr=102):
    return f""".amdhsa_kernel {name}
  .amdhsa_next_free_vgpr {nfv}
  .amdhsa_next_free_sgpr {sgpr}
  .amdhsa_accum_offset {acc}
  .amdhsa_group_segment_fixed_size 0
  .amdhsa_kernarg_size 64
  .amdhsa_user_sgpr_count 2
  .amdhsa_user_sgpr_kernarg_segment_ptr 1
  .amdhsa_system_sgpr_workgroup_id_x 1
.end_amdhsa_kernel
"""

def main():
    hdr = open("standalone__gqa_block_cached__near_ridge.s.ref").read().split("; Override launch")[0]
    e = Em()
    gen_attn(e)
    gen_oproj(e)
    out = hdr
    out += "; @launch kernel=attn_kernel grid=(256,1,1) block=(768,1,1) lds=163840\n"
    out += "; @launch kernel=oproj_kernel grid=(144,1,1) block=(512,1,1) lds=131072\n"
    out += '.amdgcn_target "amdgcn-amd-amdhsa--gfx950"\n.text\n'
    out += e.text()
    out += '.section .rodata,"a"\n.p2align 6\n'
    out += desc("attn_kernel", 168, 168)
    out += ".p2align 6\n"
    out += desc("oproj_kernel", 192, 192)
    path = sys.argv[1] if len(sys.argv) > 1 else "standalone__gqa_block_cached__near_ridge.s"
    open(path, "w").write(out)

main()
```

```python
import sys, struct

class Em:
    def __init__(self):
        self.lines = []
    def __call__(self, s):
        self.lines.append("    " + s)
    def label(self, s):
        self.lines.append(s + ":")
    def raw(self, s):
        self.lines.append(s)
    def nop(self, n):
        while n > 0:
            k = min(n, 16)
            self(f"s_nop {k-1}")
            n -= k
    def text(self):
        return "\n".join(self.lines) + "\n"

def vr(b, n=1):
    return f"v{b}" if n == 1 else f"v[{b}:{b+n-1}]"
def sr(b, n=1):
    return f"s{b}" if n == 1 else f"s[{b}:{b+n-1}]"
def f32hex(x):
    return "0x%08x" % struct.unpack("<I", struct.pack("<f", x))[0]

LOG2E = 1.4426950408889634
SCALE = 128 ** -0.5
OPT = sys.argv[2] if len(sys.argv) > 2 else ""
STAMP = "stamp" in OPT
NT_KV = " nt"
NT_W = " nt" if "ntw" in OPT else ""

def stamp(e, idx):
    if not STAMP: return
    e("s_memtime s[60:61]")
    e("s_waitcnt lgkmcnt(0)")
    e(f"s_mov_b32 s{62+idx}, s60")

def stamp_flush(e, n, wavereg, tag):
    if not STAMP: return
    e("s_load_dwordx2 s[56:57], s[0:1], 48")
    e("s_waitcnt lgkmcnt(0)")
    e("s_mov_b32 s52, s56")
    e("s_mov_b32 s53, s57")
    e("s_mov_b32 s54, 256")
    e("s_mov_b32 s55, 0x20000")
    e("s_cmp_lg_u32 s2, 5")
    e(f"s_cbranch_scc1 stamp_skip_{tag}")
    e(f"s_lshl_b32 s58, s{wavereg}, 5")
    for i in range(n):
        e(f"s_sub_u32 s59, s{62+i}, s62")
        e("v_mov_b32 v2, s59")
        e(f"v_mov_b32 v3, s58")
        e(f"buffer_store_dword v2, v3, s[52:55], 0 offen offset:{4*i}")
    e.label(f"stamp_skip_{tag}")

def rot18(e, dst, base_sgpr, add_const, rot_sgpr, tmp):
    if base_sgpr is None:
        e(f"s_add_u32 s{dst}, s{rot_sgpr}, {add_const}")
    else:
        e(f"s_add_u32 s{dst}, s{base_sgpr}, {add_const}")
        e(f"s_add_u32 s{dst}, s{dst}, s{rot_sgpr}")
    e(f"s_sub_u32 s{tmp}, s{dst}, 18")
    e(f"s_cmp_ge_u32 s{dst}, 18")
    e(f"s_cselect_b32 s{dst}, s{tmp}, s{dst}")

def gen_attn(e):
    name = "attn_kernel"
    e.raw(f".globl {name}")
    e.raw(".p2align 8")
    e.raw(f".type {name},@function")
    e.label(name)
    S_X, S_K, S_V, S_WQ, S_WS = 4, 6, 8, 10, 16
    SRD_K, SRD_X, SRD_WQ, SRD_O = 20, 28, 32, 36
    S_WAVE, S_HKV, S_B = 40, 41, 42
    S_T0, S_T1, S_T2, S_SOFF, S_C = 43, 44, 45, 46, 47
    S_CNT, S_STG, S_ROT, S_XOFF, S_QB, S_KH = 48, 49, 50, 51, 72, 73
    V_LANE = 1
    V_T0, V_T1, V_T2, V_T3 = 2, 3, 4, 5
    V_KW = 6
    V_VW = 14
    V_M, V_L = 18, 19
    V_AL2 = 20
    V_OO = 22
    V_XO = 23
    V_WA = 6
    V_D = 6
    V_O = 24
    V_S = 88
    V_Q = 104
    V_F = 136
    V_P = 160
    XSL = [V_O+32, V_O+40, V_O+48, V_O+56, V_S, V_S+8, V_Q, V_Q+8]
    STAGE = 32768
    WQ0 = 32768
    WNS = 6
    WAH = 5
    WSL = 20480
    def wslot(c): return (c + 2) % WNS
    QX0 = 131072
    NCH = 18

    e("s_cmp_ge_u32 s2, 256")
    e("s_cbranch_scc1 attn_end")
    e("s_load_dwordx4 s[4:7], s[0:1], 0")
    e("s_load_dwordx4 s[8:11], s[0:1], 16")
    e("s_load_dwordx2 s[16:17], s[0:1], 56")
    e("s_load_dwordx2 s[12:13], s[0:1], 32")
    stamp(e, 0)
    e(f"v_and_b32 v{V_LANE}, 63, v0")
    e(f"v_lshrrev_b32 v2, 6, v0")
    e("s_nop 0")
    e(f"v_readfirstlane_b32 s{S_WAVE}, v2")
    e(f"s_and_b32 s{S_HKV}, s2, 15")
    e(f"s_lshr_b32 s{S_B}, s2, 4")
    e(f"s_add_u32 s{S_ROT}, s{S_HKV}, s{S_B}")
    L = f"v{V_LANE}"
    T0, T1, T2, T3 = (f"v{x}" for x in (V_T0, V_T1, V_T2, V_T3))
    e("s_waitcnt lgkmcnt(0)")
    e(f"s_lshl_b32 s{S_T0}, s{S_HKV}, 9")
    e(f"s_add_u32 s{SRD_WQ}, s{S_WQ}, s{S_T0}")
    e(f"s_addc_u32 s{SRD_WQ+1}, s{S_WQ+1}, 0")
    e(f"s_sub_u32 s{SRD_WQ+2}, {576*8192}, s{S_T0}")
    e(f"s_mov_b32 s{SRD_WQ+3}, 0x20000")
    V_WD = 166
    e(f"v_lshrrev_b32 {T0}, 5, {L}")
    e(f"v_and_b32 {T1}, 31, {L}")
    e(f"v_lshlrev_b32 {T2}, 13, {T0}")
    for odd in range(2):
        e(f"v_add_u32 {T3}, {2*odd}, {T0}")
        e(f"v_lshlrev_b32 {T3}, 2, {T3}")
        e(f"v_xor_b32 {T3}, {T3}, {T1}")
        e(f"v_lshl_add_u32 v{V_WD+odd}, {T3}, 4, {T2}")
    S_WQR, S_WQL = 52, 53
    def wq_dma(chunk_sgpr, chunk_const, n_instr):
        rot18(e, S_SOFF, chunk_sgpr, chunk_const, S_B, S_T0)
        e(f"s_lshl_b32 s{S_SOFF}, s{S_SOFF}, 18")
        e(f"s_add_u32 s{S_SOFF}, s{S_SOFF}, s{S_WQR}")
        if chunk_sgpr is None:
            e(f"s_add_u32 m0, s{S_WQL}, {wslot(chunk_const)*WSL}")
        else:
            e(f"s_add_u32 s{S_STG}, s{chunk_sgpr}, {chunk_const}")
            e(f"s_and_b32 s{S_STG}, s{S_STG}, 7")
            e(f"s_lshl_b32 s{S_STG}, s{S_STG}, 14")
            e(f"s_add_u32 m0, s{S_STG}, s{S_WQL}")
        e("s_nop 0")
        e(f"buffer_load_dwordx4 v{V_WD}, {sr(SRD_WQ,4)}, s{S_SOFF} offen lds")
        if n_instr == 2:
            e(f"s_add_u32 s{S_SOFF}, s{S_SOFF}, {16384-1024}")
            e(f"buffer_load_dwordx4 v{V_WD+1}, {sr(SRD_WQ,4)}, s{S_SOFF} offen offset:1024 lds")
    e(f"s_cmp_ge_u32 s{S_WAVE}, 8")
    e("s_cbranch_scc1 attn_loader")
    e(f"s_add_u32 s{S_T0}, s{S_WAVE}, 8")
    e(f"s_lshl_b32 s{S_WQR}, s{S_T0}, 14")
    e(f"s_lshl_b32 s{S_WQL}, s{S_T0}, 10")
    e(f"s_add_u32 s{S_WQL}, s{S_WQL}, {WQ0}")
    e(f"s_and_b32 s{S_T0}, s{S_WAVE}, 1")
    e(f"s_cmp_eq_u32 s{S_T0}, 0")
    e("s_cbranch_scc1 attn_weven")
    e(f"v_mov_b32 v{V_WD}, v{V_WD+1}")
    e.label("attn_weven")

    e(f"s_and_b32 s{S_QB}, s{S_WAVE}, 3")
    e(f"s_lshr_b32 s{S_KH}, s{S_WAVE}, 2")
    e(f"s_mul_i32 s{S_T0}, s{S_B}, 73728")
    e(f"s_add_u32 s{SRD_X}, s{S_X}, s{S_T0}")
    e(f"s_addc_u32 s{SRD_X+1}, s{S_X+1}, 0")
    e(f"s_mov_b32 s{SRD_X+2}, 73728")
    e(f"s_mov_b32 s{SRD_X+3}, 0x20000")
    e(f"s_mov_b32 s{SRD_O}, s{S_WS}")
    e(f"s_mov_b32 s{SRD_O+1}, s{S_WS+1}")
    e(f"s_mov_b32 s{SRD_O+2}, 0x800000")
    e(f"s_mov_b32 s{SRD_O+3}, 0x20000")
    e(f"s_and_b32 s{S_T0}, s{S_QB}, 1")
    e(f"s_lshl_b32 s{S_T0}, s{S_T0}, 5")
    e(f"v_and_b32 {T0}, 31, {L}")
    e(f"v_add_u32 {T0}, s{S_T0}, {T0}")
    e(f"v_lshlrev_b32 {T0}, 6, {T0}")
    e(f"v_add_u32 {T0}, {WQ0+16384}, {T0}")
    e(f"v_lshrrev_b32 {T1}, 5, {L}")
    e(f"v_bfe_u32 {T2}, {L}, 2, 2")
    e(f"v_xor_b32 {T1}, {T1}, {T2}")
    V_XA = V_S
    for ks in range(2):
        e(f"v_xor_b32 {T2}, {2*ks}, {T1}")
        e(f"v_lshl_add_u32 v{V_XA+ks}, {T2}, 4, {T0}")
        e(f"v_add_u32 v{V_XA+2+ks}, {3*WSL}, v{V_XA+ks}")
    for c in range(WAH):
        wq_dma(None, c, 1)
    e(f"v_lshrrev_b32 {T0}, 5, {L}")
    e(f"v_bfe_u32 {T1}, {L}, 2, 2")
    e(f"v_lshl_add_u32 {T2}, {T0}, 3, {T1}")
    e(f"v_lshlrev_b32 {T2}, 9, {T2}")
    e(f"v_bfe_u32 {T0}, {L}, 4, 1")
    e(f"v_bfe_u32 {T3}, {L}, 1, 1")
    e(f"v_lshl_add_u32 {T0}, {T0}, 1, {T3}")
    e(f"v_lshl_add_u32 {T2}, {T0}, 4, {T2}")
    e(f"v_and_b32 {T3}, 1, {L}")
    e(f"v_lshl_add_u32 {T2}, {T3}, 3, {T2}")
    e(f"v_add_u32 {T2}, {WQ0}, {T2}")
    e(f"s_lshr_b32 s{S_T0}, s{S_QB}, 1")
    e(f"s_lshl_b32 s{S_T0}, s{S_T0}, 2")
    e(f"s_lshl_b32 s{S_T1}, s{S_KH}, 1")
    e(f"s_add_u32 s{S_T0}, s{S_T0}, s{S_T1}")
    for d2 in range(2):
        e(f"s_add_u32 s{S_T1}, s{S_T0}, {d2}")
        e(f"v_xor_b32 {T3}, s{S_T1}, {T1}")
        e(f"v_lshl_add_u32 v{V_WA+d2}, {T3}, 6, {T2}")
    e(f"s_and_b32 s{S_T0}, s{S_QB}, 1")
    e(f"s_lshl_b32 s{S_T1}, s{S_B}, 1")
    e(f"s_add_u32 s{S_T0}, s{S_T0}, s{S_T1}")
    e(f"s_lshl_b32 s{S_T0}, s{S_T0}, 18")
    e(f"s_lshl_b32 s{S_T1}, s{S_HKV}, 1")
    e(f"s_lshr_b32 s{S_T2}, s{S_QB}, 1")
    e(f"s_add_u32 s{S_T1}, s{S_T1}, s{S_T2}")
    e(f"s_lshl_b32 s{S_T1}, s{S_T1}, 13")
    e(f"s_add_u32 s{S_T0}, s{S_T0}, s{S_T1}")
    e(f"v_lshlrev_b32 {T0}, 4, {L}")
    e(f"v_add_u32 v{V_OO}, s{S_T0}, {T0}")
    for i in range(32):
        e(f"v_mov_b32 v{V_O+i}, 0")

    def qchunk(c, issue_next, wait_n):
        slot = wslot(c)
        e(f"s_waitcnt vmcnt({wait_n})")
        e("s_barrier")
        seq = [(ks, d2) for ks in range(2) for d2 in range(2)]
        hi = slot >= 3
        xs = XSL[c % 2]
        for ks in range(2):
            e(f"ds_read_b128 {vr(xs+4*ks,4)}, v{V_XA+ks+(2 if hi else 0)} offset:{(slot%3)*WSL}")
        for idx, (ks, d2) in enumerate(seq):
            f = V_F + 4*idx
            for u in range(2):
                e(f"ds_read_b64_tr_b16 {vr(f+2*u,2)}, v{V_WA+d2+(2 if hi else 0)} offset:{(slot%3)*WSL + (ks*16+4*u)*512}")
        if issue_next:
            wq_dma(None, c+WAH, 1)
        for idx, (ks, d2) in enumerate(seq):
            f = V_F + 4*idx
            e(f"s_waitcnt lgkmcnt({2*(3-idx)})")
            acc = vr(V_O + 16*d2, 16)
            e(f"v_mfma_f32_32x32x16_bf16 {acc}, {vr(f,4)}, {vr(xs+4*ks,4)}, {acc}")
    for d2 in range(2):
        e(f"v_add_u32 v{V_WA+2+d2}, {3*WSL}, v{V_WA+d2}")
    e(f"s_mov_b32 s{S_CNT}, 0")
    for c in range(NCH):
        if c == 8:
            e(f"s_mov_b32 s{S_CNT}, 8")
        if c == 16:
            e(f"s_mov_b32 s{S_CNT}, 16")
        n_after = min(NCH - 1, c + WAH - 1) - c
        if c == 0: stamp(e, 4)
        qchunk(c, c + WAH < NCH, n_after)
        if c in (0, 1, 9): stamp(e, {0:5, 1:6, 9:7}[c])
    stamp(e, 1)
    e.nop(16)
    e(f"s_lshl_b32 s{S_T0}, s{S_QB}, 13")
    e(f"s_add_u32 s{S_T0}, s{S_T0}, {QX0}")
    e(f"v_lshlrev_b32 {T0}, 4, {L}")
    e(f"v_add_u32 {T0}, s{S_T0}, {T0}")
    e(f"s_lshl_b32 s{S_T1}, s{S_KH}, 12")
    e(f"v_add_u32 {T1}, s{S_T1}, {T0}")
    for kl in range(4):
        d2, hf = kl // 2, kl % 2
        src = V_O + 16*d2 + 8*hf
        q = V_F + 4*kl
        for j in range(4):
            e(f"v_cvt_pk_bf16_f32 v{q+j}, v{src+2*j}, v{src+2*j+1}")
        e("s_nop 1")
        e(f"v_permlane32_swap_b32 v{q}, v{q+2}")
        e(f"v_permlane32_swap_b32 v{q+1}, v{q+3}")
        e("s_nop 1")
        e(f"ds_write_b128 {T1}, {vr(q,4)} offset:{kl*1024}")
    e("s_waitcnt lgkmcnt(0)")
    e("s_barrier")
    for ks in range(8):
        e(f"ds_read_b128 {vr(V_Q+4*ks,4)}, {T0} offset:{ks*1024}")
    e(f"v_lshrrev_b32 {T0}, 5, {L}")
    e(f"v_and_b32 {T1}, 15, {L}")
    e(f"v_xor_b32 {T0}, {T0}, {T1}")
    e(f"v_and_b32 {T1}, 31, {L}")
    e(f"v_lshlrev_b32 {T1}, 8, {T1}")
    e(f"s_lshl_b32 s{S_T0}, s{S_KH}, 13")
    e(f"v_add_u32 {T1}, s{S_T0}, {T1}")
    for ks in range(8):
        e(f"v_xor_b32 {T2}, {2*ks}, {T0}")
        e(f"v_lshl_add_u32 v{V_KW+ks}, {T2}, 4, {T1}")
    e(f"v_lshrrev_b32 {T0}, 5, {L}")
    e(f"v_bfe_u32 {T1}, {L}, 2, 2")
    e(f"v_lshl_add_u32 {T2}, {T0}, 2, {T1}")
    e(f"v_lshlrev_b32 {T2}, 8, {T2}")
    e(f"s_add_u32 s{S_T0}, s{S_T0}, 16384")
    e(f"v_add_u32 {T2}, s{S_T0}, {T2}")
    e(f"v_bfe_u32 {T0}, {L}, 4, 1")
    e(f"v_bfe_u32 {T3}, {L}, 1, 1")
    e(f"v_lshl_add_u32 {T0}, {T0}, 1, {T3}")
    e(f"v_lshl_add_u32 {T2}, {T0}, 4, {T2}")
    e(f"v_and_b32 {T3}, 1, {L}")
    e(f"v_lshl_add_u32 {T2}, {T3}, 3, {T2}")
    for db in range(4):
        e(f"v_xor_b32 {T3}, {db}, {T1}")
        e(f"v_lshl_add_u32 v{V_VW+db}, {T3}, 6, {T2}")
    e(f"v_mov_b32 v{V_M}, 0xff800000")
    e(f"v_mov_b32 v{V_L}, 0")
    for i in range(64):
        e(f"v_mov_b32 v{V_O+i}, 0")
    e(f"s_mov_b32 s{S_C}, {f32hex(SCALE*LOG2E)}")
    e(f"s_mov_b32 s{S_CNT}, 0")
    e(f"s_mov_b32 s{S_T2}, 0x8000")
    e(f"s_mov_b32 s74, s{S_C}")
    e(f"s_mov_b32 s75, s{S_C}")
    e("s_waitcnt lgkmcnt(0)")

    e.label("attn_loop")
    e("s_barrier")
    def rdk(ks):
        f = V_F + 4*(ks % 6)
        e(f"ds_read_b128 {vr(f,4)}, v{V_KW+ks}")
    for ks in range(6):
        rdk(ks)
    seqv = [(ks, db) for ks in range(2) for db in range(4)]
    def rdv(idx):
        ks, db = seqv[idx]
        f = V_F + 4*((8 + idx) % 6)
        for u in range(2):
            e(f"ds_read_b64_tr_b16 {vr(f+2*u,2)}, v{V_VW+db} offset:{ks*4096 + u*2048}")
    issued = 6
    for ks in range(8):
        f = V_F + 4*(ks % 6)
        later_k = max(0, min(8, issued) - ks - 1)
        later_v = max(0, issued - 8)
        e(f"s_waitcnt lgkmcnt({later_k + 2*later_v})")
        acc = vr(V_S, 16)
        cc = "0" if ks == 0 else acc
        e(f"v_mfma_f32_32x32x16_bf16 {acc}, {vr(f,4)}, {vr(V_Q+4*ks,4)}, {cc}")
        if issued < 8:
            rdk(issued)
        else:
            rdv(issued - 8)
        issued += 1
    for i in range(8):
        e(f"v_xor_b32 v{V_KW+i}, s{S_T2}, v{V_KW+i}")
    S = lambda i: f"v{V_S+i}"
    e(f"v_max3_f32 {T0}, {S(0)}, {S(1)}, {S(2)}")
    e(f"v_max3_f32 {T1}, {S(3)}, {S(4)}, {S(5)}")
    e(f"v_max3_f32 {T0}, {T0}, {S(6)}, {S(7)}")
    e(f"v_max3_f32 {T1}, {T1}, {S(8)}, {S(9)}")
    e(f"v_max3_f32 {T0}, {T0}, {S(10)}, {S(11)}")
    e(f"v_max3_f32 {T1}, {T1}, {S(12)}, {S(13)}")
    e(f"v_max3_f32 {T0}, {T0}, {S(14)}, {S(15)}")
    e(f"v_max_f32 {T0}, {T0}, {T1}")
    e(f"v_mov_b32 {T1}, {T0}")
    e("s_nop 1")
    e(f"v_permlane32_swap_b32 {T0}, {T1}")
    e("s_nop 1")
    e(f"v_max3_f32 {T0}, {T0}, {T1}, v{V_M}")
    e(f"v_cmp_neq_f32 vcc, {T0}, v{V_M}")
    e(f"v_sub_f32 {T1}, v{V_M}, {T0}")
    e(f"v_mul_f32 {T1}, s{S_C}, {T1}")
    e(f"v_exp_f32 v{V_AL2}, {T1}")
    e(f"v_mov_b32 v{V_M}, {T0}")
    e(f"v_mul_f32 {T0}, s{S_C}, {T0}")
    e(f"v_mov_b32 v{V_AL2+1}, v{V_AL2}")
    e(f"v_mov_b32 {T1}, {T0}")
    for i in range(0, 16, 2):
        e(f"v_pk_fma_f32 {vr(V_S+i,2)}, {vr(V_S+i,2)}, s[74:75], v[{V_T0}:{V_T0+1}] neg_lo:[0,0,1] neg_hi:[0,0,1]")
    for i in range(16):
        e(f"v_exp_f32 {S(i)}, {S(i)}")
    e("s_cbranch_vccz attn_noresc")
    e(f"v_mul_f32 v{V_L}, v{V_L}, v{V_AL2}")
    for i in range(0, 64, 2):
        e(f"v_pk_mul_f32 {vr(V_O+i,2)}, {vr(V_O+i,2)}, {vr(V_AL2,2)}")
    e.label("attn_noresc")
    PA, PB = vr(V_T0,2), vr(V_T0+2,2)
    e(f"v_pk_add_f32 {PA}, {vr(V_S,2)}, {vr(V_S+2,2)}")
    e(f"v_pk_add_f32 {PB}, {vr(V_S+4,2)}, {vr(V_S+6,2)}")
    e(f"v_pk_add_f32 {PA}, {PA}, {vr(V_S+8,2)}")
    e(f"v_pk_add_f32 {PB}, {PB}, {vr(V_S+10,2)}")
    e(f"v_pk_add_f32 {PA}, {PA}, {vr(V_S+12,2)}")
    e(f"v_pk_add_f32 {PB}, {PB}, {vr(V_S+14,2)}")
    e(f"v_pk_add_f32 {PA}, {PA}, {PB}")
    e(f"v_add_f32 {T0}, {T0}, {T1}")
    e(f"v_add_f32 v{V_L}, v{V_L}, {T0}")
    for ks in range(2):
        for j in range(4):
            e(f"v_cvt_pk_bf16_f32 v{V_P+4*ks+j}, {S(8*ks+2*j)}, {S(8*ks+2*j+1)}")
    e("s_nop 1")
    for idx in range(8):
        ks, db = seqv[idx]
        f = V_F + 4*((8 + idx) % 6)
        later_v = max(0, (issued - 8) - idx - 1)
        e(f"s_waitcnt lgkmcnt({2*later_v})")
        acc = vr(V_O + 16*db, 16)
        e(f"v_mfma_f32_32x32x16_bf16 {acc}, {vr(f,4)}, {vr(V_P+4*ks,4)}, {acc}")
        if issued < 16:
            rdv(issued - 8)
            issued += 1
    for i in range(4):
        e(f"v_xor_b32 v{V_VW+i}, s{S_T2}, v{V_VW+i}")
    e(f"s_xor_b32 s{S_T2}, s{S_T2}, 0x18000")
    e(f"s_add_u32 s{S_CNT}, s{S_CNT}, 1")
    e(f"s_cmp_lt_u32 s{S_CNT}, 16")
    e("s_cbranch_scc1 attn_loop")
    stamp(e, 2)
    e.nop(16)
    e(f"v_mov_b32 {T0}, v{V_L}")
    e(f"v_mov_b32 {T1}, v{V_L}")
    e("s_nop 1")
    e(f"v_permlane32_swap_b32 {T0}, {T1}")
    e("s_nop 1")
    e(f"v_add_f32 v{V_L}, {T0}, {T1}")
    e("s_barrier")
    e(f"s_mul_i32 s{S_T0}, s{S_QB}, 17408")
    e(f"v_lshlrev_b32 {T0}, 4, {L}")
    e(f"v_add_u32 {T0}, s{S_T0}, {T0}")
    e(f"v_lshlrev_b32 {T1}, 3, {L}")
    e(f"v_add_u32 {T1}, s{S_T0}, {T1}")
    e(f"s_cmp_eq_u32 s{S_KH}, 0")
    e("s_cbranch_scc1 attn_merge0")
    for i in range(16):
        e(f"ds_write_b128 {T0}, {vr(V_O+4*i,4)} offset:{i*1024}")
    e(f"ds_write_b64 {T1}, {vr(V_M,2)} offset:16384")
    e("s_waitcnt lgkmcnt(0)")
    e("s_barrier")
    e("s_endpgm")
    e.label("attn_merge0")
    e("s_barrier")
    e(f"ds_read_b64 {vr(V_P,2)}, {T1} offset:16384")
    for i in range(8):
        e(f"ds_read_b128 {vr(V_Q+4*i,4)}, {T0} offset:{i*1024}")
    e("s_waitcnt lgkmcnt(8)")
    e(f"v_max_f32 {T2}, v{V_M}, v{V_P}")
    e(f"v_sub_f32 {T3}, v{V_M}, {T2}")
    e(f"v_mul_f32 {T3}, s{S_C}, {T3}")
    e(f"v_exp_f32 v{V_AL2}, {T3}")
    e(f"v_sub_f32 {T3}, v{V_P}, {T2}")
    e(f"v_mul_f32 {T3}, s{S_C}, {T3}")
    e(f"v_exp_f32 v{V_P+2}, {T3}")
    e("s_nop 0")
    e(f"v_mul_f32 v{V_L}, v{V_L}, v{V_AL2}")
    e(f"v_fma_f32 v{V_L}, v{V_P+1}, v{V_P+2}, v{V_L}")
    e(f"v_rcp_f32 {T3}, v{V_L}")
    e("s_nop 0")
    e(f"v_mul_f32 v{V_AL2}, v{V_AL2}, {T3}")
    e(f"v_mul_f32 v{V_P+2}, v{V_P+2}, {T3}")
    e(f"v_mov_b32 v{V_AL2+1}, v{V_AL2}")
    e(f"v_mov_b32 v{V_P+3}, v{V_P+2}")
    e(f"s_movk_i32 s{S_T0}, 4096")
    e(f"s_mov_b32 s{S_T1}, 0")
    for half in range(2):
        if half == 1:
            for i in range(8):
                e(f"ds_read_b128 {vr(V_Q+4*i,4)}, {T0} offset:{(8+i)*1024}")
        e("s_waitcnt lgkmcnt(0)")
        for i in range(0, 32, 2):
            o = V_O + 32*half + i
            e(f"v_pk_mul_f32 {vr(o,2)}, {vr(o,2)}, {vr(V_AL2,2)}")
            e(f"v_pk_fma_f32 {vr(o,2)}, {vr(V_Q+i,2)}, {vr(V_P+2,2)}, {vr(o,2)}")
        for d2 in range(2):
            db = 2*half + d2
            for pr in range(2):
                src = V_O + 16*db + 8*pr
                q = V_F + 4*((2*db+pr) % 6)
                for j in range(4):
                    e(f"v_cvt_pk_bf16_f32 v{q+j}, v{src+2*j}, v{src+2*j+1}")
                e("s_nop 1")
                e(f"v_permlane32_swap_b32 v{q}, v{q+2}")
                e(f"v_permlane32_swap_b32 v{q+1}, v{q+3}")
                e("s_nop 1")
                e(f"buffer_store_dwordx4 {vr(q,4)}, v{V_OO}, {sr(SRD_O,4)}, s{S_T0 if db >= 2 else S_T1} offen offset:{((2*db+pr)%4)*1024}")
    if STAMP:
        e("s_waitcnt vmcnt(0)")
    stamp(e, 3)
    stamp_flush(e, 8, S_WAVE, "c")
    e("s_endpgm")

    e.label("attn_loader")
    e("s_setprio 3")
    SRD_V = 24
    S_J4K = 54
    e(f"s_sub_u32 s{S_T1}, s{S_WAVE}, 8")
    e(f"s_lshl_b32 s{S_J4K}, s{S_T1}, 12")
    e(f"s_lshl_b32 s{S_WQR}, s{S_T1}, 15")
    e(f"s_lshl_b32 s{S_WQL}, s{S_T1}, 11")
    e(f"s_add_u32 s{S_WQL}, s{S_WQL}, {WQ0}")
    e(f"s_lshl_b32 s{S_T0}, s{S_B}, 4")
    e(f"s_add_u32 s{S_T0}, s{S_T0}, s{S_HKV}")
    e(f"s_lshl_b32 s{S_T0}, s{S_T0}, 18")
    e(f"s_add_u32 s{SRD_K}, s{S_K}, s{S_T0}")
    e(f"s_addc_u32 s{SRD_K+1}, s{S_K+1}, 0")
    e(f"s_mov_b32 s{SRD_K+2}, 0x40000")
    e(f"s_mov_b32 s{SRD_K+3}, 0x20000")
    e(f"s_add_u32 s{SRD_V}, s{S_V}, s{S_T0}")
    e(f"s_addc_u32 s{SRD_V+1}, s{S_V+1}, 0")
    e(f"s_mov_b32 s{SRD_V+2}, 0x40000")
    e(f"s_mov_b32 s{SRD_V+3}, 0x20000")
    e(f"s_mul_i32 s{S_T0}, s{S_B}, 73728")
    e(f"s_add_u32 s{SRD_X}, s{S_X}, s{S_T0}")
    e(f"s_addc_u32 s{SRD_X+1}, s{S_X+1}, 0")
    e(f"s_mov_b32 s{SRD_X+2}, 73728")
    e(f"s_mov_b32 s{SRD_X+3}, 0x20000")
    V_XD = 11
    S_XL = 55
    e(f"s_lshl_b32 s{S_XL}, s{S_T1}, 10")
    e(f"s_add_u32 s{S_XL}, s{S_XL}, {WQ0+16384}")
    e(f"s_lshl_b32 s{S_T0}, s{S_T1}, 4")
    e(f"v_lshrrev_b32 {T0}, 2, {L}")
    e(f"v_add_u32 {T0}, s{S_T0}, {T0}")
    e(f"s_movk_i32 s{S_T0}, 1152")
    e(f"v_mul_lo_u32 {T0}, {T0}, s{S_T0}")
    e(f"v_and_b32 {T1}, 3, {L}")
    e(f"v_bfe_u32 {T2}, {L}, 4, 2")
    e(f"v_xor_b32 {T1}, {T1}, {T2}")
    e(f"v_lshl_add_u32 v{V_XD}, {T1}, 4, {T0}")
    def x_dma(c):
        rot18(e, S_XOFF, None, c, S_B, S_T0)
        e(f"s_lshl_b32 s{S_XOFF}, s{S_XOFF}, 6")
        e(f"s_add_u32 m0, s{S_XL}, {wslot(c)*WSL}")
        e("s_nop 0")
        e(f"buffer_load_dwordx4 v{V_XD}, {sr(SRD_X,4)}, s{S_XOFF} offen lds")
    for c in range(WAH):
        x_dma(c)
        wq_dma(None, c, 2)
    e(f"v_lshrrev_b32 {T0}, 4, {L}")
    e(f"v_and_b32 {T1}, 15, {L}")
    e(f"v_lshlrev_b32 {T2}, 8, {T0}")
    e(f"v_lshlrev_b32 {T3}, 2, {T0}")
    e(f"v_xor_b32 {T3}, {T1}, {T3}")
    e(f"v_lshl_add_u32 v{V_D+4}, {T3}, 4, {T2}")
    e(f"v_xor_b32 {T1}, {T1}, {T0}")
    for i in range(4):
        e(f"v_xor_b32 {T3}, {4*i}, {T1}")
        e(f"v_lshl_add_u32 v{V_D+i}, {T3}, 4, {T2}")
    def tile_issue():
        e(f"s_add_u32 s{S_SOFF}, s{S_ROT}, s{S_T2}")
        e(f"s_and_b32 s{S_SOFF}, s{S_SOFF}, 15")
        e(f"s_lshl_b32 s{S_SOFF}, s{S_SOFF}, 14")
        e(f"s_add_u32 s{S_SOFF}, s{S_SOFF}, s{S_J4K}")
        e(f"s_and_b32 s{S_STG}, s{S_T2}, 3")
        e(f"s_lshr_b32 s{S_T0}, s{S_STG}, 1")
        e(f"s_xor_b32 s{S_STG}, s{S_STG}, s{S_T0}")
        e(f"s_lshl_b32 s{S_STG}, s{S_STG}, 15")
        e(f"s_add_u32 m0, s{S_STG}, s{S_J4K}")
        e(f"s_add_u32 s{S_STG}, m0, 16384")
        for i in range(4):
            e(f"buffer_load_dwordx4 v{V_D+i}, {sr(SRD_K,4)}, s{S_SOFF} offen offset:{i*1024}{NT_KV} lds")
        e(f"s_mov_b32 m0, s{S_STG}")
        e("s_nop 0")
        for i in range(4):
            e(f"buffer_load_dwordx4 v{V_D+4}, {sr(SRD_V,4)}, s{S_SOFF} offen offset:{i*1024}{NT_KV} lds")
    e(f"s_mov_b32 s{S_T2}, 0")
    tile_issue()
    for c in range(NCH):
        n_after = min(NCH - 1, c + WAH - 1) - c
        e(f"s_waitcnt vmcnt({3*n_after + (8 if c < WAH else 0) + (5 if c >= NCH-WAH else 0)})")
        e("s_barrier")
        if c + WAH < NCH:
            x_dma(c + WAH)
            wq_dma(None, c + WAH, 2)
        if c == NCH-WAH-1:
            e("s_mov_b32 s76, s12")
            e("s_mov_b32 s77, s13")
            e(f"s_mov_b32 s78, {4096*1152}")
            e("s_mov_b32 s79, 0x20000")
            e(f"s_mul_i32 s{S_T0}, s2, 18432")
            e(f"s_mul_i32 s{S_SOFF}, s{S_WAVE}, 5120")
            e(f"s_add_u32 s{S_T0}, s{S_T0}, s{S_SOFF}")
            e(f"s_sub_u32 s{S_T0}, s{S_T0}, {8*5120}")
            e(f"v_lshlrev_b32 v12, 4, {L}")
            e(f"v_add_u32 v12, s{S_T0}, v12")
            e(f"v_add_u32 v13, 4096, v12")
            for k in range(4):
                e(f"buffer_load_dwordx4 v[{20+4*k}:{23+4*k}], v12, s[76:79], 0 offen offset:{k*1024}")
            e(f"buffer_load_dwordx4 v[36:39], v13, s[76:79], 0 offen")
    e("s_barrier")
    e(f"s_mov_b32 s{S_T2}, 1")
    e.label("attn_ldpro")
    tile_issue()
    e(f"s_add_u32 s{S_T2}, s{S_T2}, 1")
    e(f"s_cmp_lt_u32 s{S_T2}, 3")
    e("s_cbranch_scc1 attn_ldpro")
    e(f"s_mov_b32 s{S_CNT}, 0")
    e.label("attn_ldloop")
    e(f"s_cmp_lt_u32 s{S_CNT}, 14")
    e("s_cbranch_scc1 attn_ldw32")
    e(f"s_cmp_eq_u32 s{S_CNT}, 14")
    e("s_cbranch_scc1 attn_ldw16")
    e("s_waitcnt vmcnt(0)")
    e("s_branch attn_ldw")
    e.label("attn_ldw16")
    e("s_waitcnt vmcnt(8)")
    e("s_branch attn_ldw")
    e.label("attn_ldw32")
    e("s_waitcnt vmcnt(16)")
    e.label("attn_ldw")
    e("s_barrier")
    e(f"s_add_u32 s{S_T2}, s{S_CNT}, 3")
    e(f"s_cmp_ge_u32 s{S_T2}, 16")
    e("s_cbranch_scc1 attn_ldskip")
    tile_issue()
    e.label("attn_ldskip")
    e(f"s_add_u32 s{S_CNT}, s{S_CNT}, 1")
    e(f"s_cmp_lt_u32 s{S_CNT}, 16")
    e("s_cbranch_scc1 attn_ldloop")
    e("s_barrier")
    e("s_barrier")
    e.label("attn_end")
    e("s_endpgm")

def gen_oproj(e):
    name = "oproj_kernel"
    e.raw(f".globl {name}")
    e.raw(".p2align 8")
    e.raw(f".type {name},@function")
    e.label(name)
    SRD_O, SRD_W, SRD_OUT = 20, 24, 28
    S_WAVE, S_MB, S_NB, S_T0, S_T1, S_SOFF, S_KO, S_CNT, S_OOFF = 40, 41, 42, 43, 44, 46, 47, 49, 50
    V_LANE = 1
    V_T0, V_T1, V_T2, V_T3 = 2, 3, 4, 5
    V_WD = 6
    V_WA = 8
    V_OA = 10
    V_OUT = 13
    V_AF = 16
    V_ACC = 64
    V_BF = 128
    NS = 4
    AHEAD = 3
    NCH = 16
    L = f"v{V_LANE}"
    T0, T1, T2, T3 = (f"v{x}" for x in (V_T0, V_T1, V_T2, V_T3))
    e("s_cmp_ge_u32 s2, 144")
    e("s_cbranch_scc1 oproj_end")
    e("s_load_dwordx4 s[4:7], s[0:1], 32")
    e("s_load_dwordx2 s[16:17], s[0:1], 56")
    stamp(e, 0)
    e(f"v_and_b32 {L}, 63, v0")
    e(f"v_lshrrev_b32 v2, 6, v0")
    e("s_nop 0")
    e(f"v_readfirstlane_b32 s{S_WAVE}, v2")
    e(f"s_and_b32 s{S_MB}, s2, 15")
    e(f"s_lshr_b32 s{S_NB}, s2, 4")
    e("s_waitcnt lgkmcnt(0)")
    e(f"s_mov_b32 s{SRD_O}, s16")
    e(f"s_mov_b32 s{SRD_O+1}, s17")
    e(f"s_mov_b32 s{SRD_O+2}, 0x800000")
    e(f"s_mov_b32 s{SRD_O+3}, 0x20000")
    e(f"s_mov_b32 s{SRD_W}, s4")
    e(f"s_mov_b32 s{SRD_W+1}, s5")
    e(f"s_mov_b32 s{SRD_W+2}, {4096*1152}")
    e(f"s_mov_b32 s{SRD_W+3}, 0x20000")
    e(f"s_mov_b32 s{SRD_OUT}, s6")
    e(f"s_mov_b32 s{SRD_OUT+1}, s7")
    e(f"s_mov_b32 s{SRD_OUT+2}, {1024*1152}")
    e(f"s_mov_b32 s{SRD_OUT+3}, 0x20000")
    e(f"v_lshrrev_b32 {T0}, 3, {L}")
    e(f"s_movk_i32 s{S_T0}, 1152")
    e(f"v_mul_lo_u32 {T0}, {T0}, s{S_T0}")
    e(f"v_and_b32 {T1}, 7, {L}")
    e(f"v_bfe_u32 {T2}, {L}, 4, 1")
    e(f"v_lshlrev_b32 {T2}, 2, {T2}")
    e(f"v_xor_b32 {T1}, {T1}, {T2}")
    e(f"v_lshl_add_u32 v{V_WD}, {T1}, 4, {T0}")
    e(f"s_mul_i32 s{S_KO}, s{S_WAVE}, {512*1152}")
    e(f"s_lshl_b32 s{S_T0}, s{S_NB}, 7")
    e(f"s_add_u32 s{S_KO}, s{S_KO}, s{S_T0}")
    e(f"s_lshl_b32 s{S_T0}, s{S_MB}, 19")
    e(f"s_lshl_b32 s{S_T1}, s{S_WAVE}, 15")
    e(f"s_add_u32 s{S_T0}, s{S_T0}, s{S_T1}")
    e(f"v_lshlrev_b32 {T0}, 4, {L}")
    e(f"v_add_u32 v{V_OA}, s{S_T0}, {T0}")
    e(f"v_add_u32 v{V_OA+1}, 0x40000, v{V_OA}")
    S_M0W = 48
    e(f"s_lshl_b32 s{S_M0W}, s{S_WAVE}, 14")
    e(f"s_mov_b32 s{S_SOFF}, s{S_KO}")
    e(f"s_mov_b32 s{S_OOFF}, 0")
    def issue(slot):
        for j in range(4):
            e(f"s_add_u32 m0, s{S_M0W}, {slot*4096 + j*1024}")
            e("s_nop 0")
            e(f"buffer_load_dwordx4 v{V_WD}, {sr(SRD_W,4)}, s{S_SOFF} offen{NT_W} lds")
            e(f"s_add_u32 s{S_SOFF}, s{S_SOFF}, {8*1152}")
        for mb2 in range(2):
            for st in range(2):
                f = V_BF + 16*slot + 8*mb2 + 4*st
                e(f"buffer_load_dwordx4 {vr(f,4)}, v{V_OA+mb2}, {sr(SRD_O,4)}, s{S_OOFF} offen offset:{st*1024}{NT_W}")
        e(f"s_add_u32 s{S_OOFF}, s{S_OOFF}, 2048")
    for c in range(AHEAD):
        issue(c)
    e(f"v_lshrrev_b32 {T0}, 5, {L}")
    e(f"v_bfe_u32 {T1}, {L}, 2, 2")
    e(f"v_lshl_add_u32 {T2}, {T0}, 3, {T1}")
    e(f"v_lshlrev_b32 {T2}, 7, {T2}")
    e(f"v_bfe_u32 {T0}, {L}, 4, 1")
    e(f"v_bfe_u32 {T3}, {L}, 1, 1")
    e(f"v_lshl_add_u32 {T0}, {T0}, 1, {T3}")
    e(f"v_lshl_add_u32 {T2}, {T0}, 4, {T2}")
    e(f"v_and_b32 {T3}, 1, {L}")
    e(f"v_lshl_add_u32 {T2}, {T3}, 3, {T2}")
    e(f"v_add_u32 {T2}, s{S_M0W}, {T2}")
    e(f"v_bfe_u32 {T1}, {L}, 3, 1")
    for nb2 in range(2):
        e(f"v_xor_b32 {T3}, {nb2}, {T1}")
        e(f"v_lshl_add_u32 v{V_WA+nb2}, {T3}, 6, {T2}")
    for i in range(64):
        e(f"v_mov_b32 v{V_ACC+i}, 0")
    def rda(slot, par):
        ab = V_AF + 16*par
        for nb2 in range(2):
            for st in range(2):
                for u in range(2):
                    e(f"ds_read_b64_tr_b16 {vr(ab+8*nb2+4*st+2*u,2)}, v{V_WA+nb2} offset:{slot*4096 + (st*16+4*u)*128}")
    stamp(e, 1)
    e(f"s_waitcnt vmcnt({8*(AHEAD-1)})")
    rda(0, 0)
    def body(c, cmod):
        slot = cmod % NS
        par = cmod % 2
        e("s_waitcnt lgkmcnt(0)")
        if c + AHEAD < NCH:
            issue((slot + AHEAD) % NS)
        if c + 1 < NCH:
            n_after = min(NCH - 1, c + AHEAD) - (c + 1)
            e(f"s_waitcnt vmcnt({8*n_after})")
            rda((slot + 1) % NS, 1 - par)
        ab = V_AF + 16*par
        for st in range(2):
            for nb2 in range(2):
                for mb2 in range(2):
                    acc = vr(V_ACC + 32*nb2 + 16*mb2, 16)
                    e(f"v_mfma_f32_32x32x16_bf16 {acc}, {vr(ab+8*nb2+4*st,4)}, {vr(V_BF+16*slot+8*mb2+4*st,4)}, {acc}")
    e(f"s_mov_b32 s{S_CNT}, 0")
    e.label("oproj_loop")
    for cm in range(4):
        body(cm, cm)
    e(f"s_add_u32 s{S_CNT}, s{S_CNT}, 1")
    e(f"s_cmp_lt_u32 s{S_CNT}, 3")
    e("s_cbranch_scc1 oproj_loop")
    stamp(e, 2)
    for c in range(12, 16):
        body(c, c)
    stamp(e, 3)
    e.nop(16)
    e("s_barrier")
    e(f"v_lshlrev_b32 {T0}, 4, {L}")
    e(f"v_add_u32 {T1}, s{S_M0W}, {T0}")
    for i in range(16):
        e(f"ds_write_b128 {T1}, {vr(V_ACC+4*i,4)} offset:{i*1024}")
    e("s_waitcnt lgkmcnt(0)")
    e("s_barrier")
    e(f"s_lshl_b32 s{S_T0}, s{S_WAVE}, 11")
    e(f"v_add_u32 {T1}, s{S_T0}, {T0}")
    e(f"v_add_u32 {T2}, 0x10000, {T1}")
    for w in range(8):
        for i in range(2):
            e(f"ds_read_b128 {vr(V_BF+8*w+4*i,4)}, {T1 if w < 4 else T2} offset:{(w%4)*16384 + i*1024}")
    e("s_waitcnt lgkmcnt(0)")
    for stp in (4, 2, 1):
        for w in range(stp):
            for i in range(0, 8, 2):
                e(f"v_pk_add_f32 {vr(V_BF+8*w+i,2)}, {vr(V_BF+8*w+i,2)}, {vr(V_BF+8*(w+stp)+i,2)}")
    e(f"s_lshl_b32 s{S_T0}, s{S_MB}, 6")
    e(f"s_bfe_u32 s{S_T1}, s{S_WAVE}, 0x10001")
    e(f"s_lshl_b32 s{S_T1}, s{S_T1}, 5")
    e(f"s_add_u32 s{S_T0}, s{S_T0}, s{S_T1}")
    e(f"v_and_b32 {T0}, 31, {L}")
    e(f"v_add_u32 {T0}, s{S_T0}, {T0}")
    e(f"s_movk_i32 s{S_T1}, 1152")
    e(f"v_mul_lo_u32 {T0}, {T0}, s{S_T1}")
    e(f"s_lshl_b32 s{S_T0}, s{S_NB}, 7")
    e(f"s_lshr_b32 s{S_T1}, s{S_WAVE}, 2")
    e(f"s_lshl_b32 s{S_T1}, s{S_T1}, 6")
    e(f"s_add_u32 s{S_T0}, s{S_T0}, s{S_T1}")
    e(f"s_and_b32 s{S_T1}, s{S_WAVE}, 1")
    e(f"s_lshl_b32 s{S_T1}, s{S_T1}, 5")
    e(f"s_add_u32 s{S_T0}, s{S_T0}, s{S_T1}")
    e(f"v_add_u32 {T0}, s{S_T0}, {T0}")
    e(f"v_lshrrev_b32 {T1}, 5, {L}")
    e(f"v_lshl_add_u32 v{V_OUT}, {T1}, 4, {T0}")
    q = V_AF
    for j in range(4):
        e(f"v_cvt_pk_bf16_f32 v{q+j}, v{V_BF+2*j}, v{V_BF+2*j+1}")
    e("s_nop 1")
    e(f"v_permlane32_swap_b32 v{q}, v{q+2}")
    e(f"v_permlane32_swap_b32 v{q+1}, v{q+3}")
    e("s_nop 1")
    e(f"buffer_store_dwordx4 {vr(q,4)}, v{V_OUT}, {sr(SRD_OUT,4)}, 0 offen")
    if STAMP:
        e("s_waitcnt vmcnt(0)")
    stamp(e, 4)
    stamp_flush(e, 5, S_WAVE, "o")
    e.label("oproj_end")
    e("s_endpgm")

def desc(name, nfv, acc, sgpr=102):
    return f""".amdhsa_kernel {name}
  .amdhsa_next_free_vgpr {nfv}
  .amdhsa_next_free_sgpr {sgpr}
  .amdhsa_accum_offset {acc}
  .amdhsa_group_segment_fixed_size 0
  .amdhsa_kernarg_size 64
  .amdhsa_user_sgpr_count 2
  .amdhsa_user_sgpr_kernarg_segment_ptr 1
  .amdhsa_system_sgpr_workgroup_id_x 1
.end_amdhsa_kernel
"""

def main():
    hdr = open("standalone__gqa_block_cached__near_ridge.s.ref").read().split("; Override launch")[0]
    e = Em()
    gen_attn(e)
    gen_oproj(e)
    out = hdr
    out += "; @launch kernel=attn_kernel grid=(256,1,1) block=(768,1,1) lds=163840\n"
    out += "; @launch kernel=oproj_kernel grid=(144,1,1) block=(512,1,1) lds=131072\n"
    out += '.amdgcn_target "amdgcn-amd-amdhsa--gfx950"\n.text\n'
    out += e.text()
    out += '.section .rodata,"a"\n.p2align 6\n'
    out += desc("attn_kernel", 168, 168)
    out += ".p2align 6\n"
    out += desc("oproj_kernel", 192, 192)
    path = sys.argv[1] if len(sys.argv) > 1 else "standalone__gqa_block_cached__near_ridge.s"
    open(path, "w").write(out)

main()
```

```python
import sys, struct

class Em:
    def __init__(self):
        self.lines = []
    def __call__(self, s):
        self.lines.append("    " + s)
    def label(self, s):
        self.lines.append(s + ":")
    def raw(self, s):
        self.lines.append(s)
    def nop(self, n):
        while n > 0:
            k = min(n, 16)
            self(f"s_nop {k-1}")
            n -= k
    def text(self):
        return "\n".join(self.lines) + "\n"

def vr(b, n=1):
    return f"v{b}" if n == 1 else f"v[{b}:{b+n-1}]"
def sr(b, n=1):
    return f"s{b}" if n == 1 else f"s[{b}:{b+n-1}]"
def f32hex(x):
    return "0x%08x" % struct.unpack("<I", struct.pack("<f", x))[0]

LOG2E = 1.4426950408889634
SCALE = 128 ** -0.5
OPT = sys.argv[2] if len(sys.argv) > 2 else ""
STAMP = "stamp" in OPT
NT_KV = " nt"
NT_W = " nt" if "ntw" in OPT else ""

def stamp(e, idx):
    if not STAMP: return
    e("s_memtime s[60:61]")
    e("s_waitcnt lgkmcnt(0)")
    e(f"s_mov_b32 s{62+idx}, s60")

def stamp_flush(e, n, wavereg, tag):
    if not STAMP: return
    e("s_load_dwordx2 s[56:57], s[0:1], 48")
    e("s_waitcnt lgkmcnt(0)")
    e("s_mov_b32 s52, s56")
    e("s_mov_b32 s53, s57")
    e("s_mov_b32 s54, 256")
    e("s_mov_b32 s55, 0x20000")
    e("s_cmp_lg_u32 s2, 5")
    e(f"s_cbranch_scc1 stamp_skip_{tag}")
    e(f"s_lshl_b32 s58, s{wavereg}, 5")
    for i in range(n):
        e(f"s_sub_u32 s59, s{62+i}, s62")
        e("v_mov_b32 v2, s59")
        e(f"v_mov_b32 v3, s58")
        e(f"buffer_store_dword v2, v3, s[52:55], 0 offen offset:{4*i}")
    e.label(f"stamp_skip_{tag}")

def rot18(e, dst, base_sgpr, add_const, rot_sgpr, tmp):
    if base_sgpr is None:
        e(f"s_add_u32 s{dst}, s{rot_sgpr}, {add_const}")
    else:
        e(f"s_add_u32 s{dst}, s{base_sgpr}, {add_const}")
        e(f"s_add_u32 s{dst}, s{dst}, s{rot_sgpr}")
    e(f"s_sub_u32 s{tmp}, s{dst}, 18")
    e(f"s_cmp_ge_u32 s{dst}, 18")
    e(f"s_cselect_b32 s{dst}, s{tmp}, s{dst}")

def gen_attn(e):
    name = "attn_kernel"
    e.raw(f".globl {name}")
    e.raw(".p2align 8")
    e.raw(f".type {name},@function")
    e.label(name)
    S_X, S_K, S_V, S_WQ, S_WS = 4, 6, 8, 10, 16
    SRD_K, SRD_X, SRD_WQ, SRD_O = 20, 28, 32, 36
    S_WAVE, S_HKV, S_B = 40, 41, 42
    S_T0, S_T1, S_T2, S_SOFF, S_C = 43, 44, 45, 46, 47
    S_CNT, S_STG, S_ROT, S_XOFF, S_QB, S_KH = 48, 49, 50, 51, 72, 73
    V_LANE = 1
    V_T0, V_T1, V_T2, V_T3 = 2, 3, 4, 5
    V_KW = 6
    V_VW = 14
    V_M, V_L = 18, 19
    V_AL2 = 20
    V_OO = 22
    V_XO = 23
    V_WA = 6
    V_D = 6
    V_O = 24
    V_S = 88
    V_Q = 104
    V_F = 136
    V_P = 160
    XSL = [V_O+32, V_O+40, V_O+48, V_O+56, V_S, V_S+8, V_Q, V_Q+8]
    STAGE = 32768
    WQ0 = 32768
    WNS = 6
    WAH = 5
    WSL = 20480
    def wslot(c): return (c + 2) % WNS
    QX0 = 131072
    NCH = 18

    e("s_cmp_ge_u32 s2, 256")
    e("s_cbranch_scc1 attn_end")
    e("s_load_dwordx4 s[4:7], s[0:1], 0")
    e("s_load_dwordx4 s[8:11], s[0:1], 16")
    e("s_load_dwordx2 s[16:17], s[0:1], 56")
    e("s_load_dwordx2 s[12:13], s[0:1], 32")
    stamp(e, 0)
    e(f"v_and_b32 v{V_LANE}, 63, v0")
    e(f"v_lshrrev_b32 v2, 6, v0")
    e("s_nop 0")
    e(f"v_readfirstlane_b32 s{S_WAVE}, v2")
    e(f"s_and_b32 s{S_HKV}, s2, 15")
    e(f"s_lshr_b32 s{S_B}, s2, 4")
    e(f"s_add_u32 s{S_ROT}, s{S_HKV}, s{S_B}")
    L = f"v{V_LANE}"
    T0, T1, T2, T3 = (f"v{x}" for x in (V_T0, V_T1, V_T2, V_T3))
    e("s_waitcnt lgkmcnt(0)")
    e(f"s_lshl_b32 s{S_T0}, s{S_HKV}, 9")
    e(f"s_add_u32 s{SRD_WQ}, s{S_WQ}, s{S_T0}")
    e(f"s_addc_u32 s{SRD_WQ+1}, s{S_WQ+1}, 0")
    e(f"s_sub_u32 s{SRD_WQ+2}, {576*8192}, s{S_T0}")
    e(f"s_mov_b32 s{SRD_WQ+3}, 0x20000")
    V_WD = 166
    e(f"v_lshrrev_b32 {T0}, 5, {L}")
    e(f"v_and_b32 {T1}, 31, {L}")
    e(f"v_lshlrev_b32 {T2}, 13, {T0}")
    for odd in range(2):
        e(f"v_add_u32 {T3}, {2*odd}, {T0}")
        e(f"v_lshlrev_b32 {T3}, 2, {T3}")
        e(f"v_xor_b32 {T3}, {T3}, {T1}")
        e(f"v_lshl_add_u32 v{V_WD+odd}, {T3}, 4, {T2}")
    S_WQR, S_WQL = 52, 53
    def wq_dma(chunk_sgpr, chunk_const, n_instr):
        rot18(e, S_SOFF, chunk_sgpr, chunk_const, S_B, S_T0)
        e(f"s_lshl_b32 s{S_SOFF}, s{S_SOFF}, 18")
        e(f"s_add_u32 s{S_SOFF}, s{S_SOFF}, s{S_WQR}")
        if chunk_sgpr is None:
            e(f"s_add_u32 m0, s{S_WQL}, {wslot(chunk_const)*WSL}")
        else:
            e(f"s_add_u32 s{S_STG}, s{chunk_sgpr}, {chunk_const}")
            e(f"s_and_b32 s{S_STG}, s{S_STG}, 7")
            e(f"s_lshl_b32 s{S_STG}, s{S_STG}, 14")
            e(f"s_add_u32 m0, s{S_STG}, s{S_WQL}")
        e("s_nop 0")
        e(f"buffer_load_dwordx4 v{V_WD}, {sr(SRD_WQ,4)}, s{S_SOFF} offen lds")
        if n_instr == 2:
            e(f"s_add_u32 s{S_SOFF}, s{S_SOFF}, {16384-1024}")
            e(f"buffer_load_dwordx4 v{V_WD+1}, {sr(SRD_WQ,4)}, s{S_SOFF} offen offset:1024 lds")
    e(f"s_cmp_ge_u32 s{S_WAVE}, 8")
    e("s_cbranch_scc1 attn_loader")
    e(f"s_add_u32 s{S_T0}, s{S_WAVE}, 8")
    e(f"s_lshl_b32 s{S_WQR}, s{S_T0}, 14")
    e(f"s_lshl_b32 s{S_WQL}, s{S_T0}, 10")
    e(f"s_add_u32 s{S_WQL}, s{S_WQL}, {WQ0}")
    e(f"s_and_b32 s{S_T0}, s{S_WAVE}, 1")
    e(f"s_cmp_eq_u32 s{S_T0}, 0")
    e("s_cbranch_scc1 attn_weven")
    e(f"v_mov_b32 v{V_WD}, v{V_WD+1}")
    e.label("attn_weven")

    e(f"s_and_b32 s{S_QB}, s{S_WAVE}, 3")
    e(f"s_lshr_b32 s{S_KH}, s{S_WAVE}, 2")
    e(f"s_mul_i32 s{S_T0}, s{S_B}, 73728")
    e(f"s_add_u32 s{SRD_X}, s{S_X}, s{S_T0}")
    e(f"s_addc_u32 s{SRD_X+1}, s{S_X+1}, 0")
    e(f"s_mov_b32 s{SRD_X+2}, 73728")
    e(f"s_mov_b32 s{SRD_X+3}, 0x20000")
    e(f"s_mov_b32 s{SRD_O}, s{S_WS}")
    e(f"s_mov_b32 s{SRD_O+1}, s{S_WS+1}")
    e(f"s_mov_b32 s{SRD_O+2}, 0x800000")
    e(f"s_mov_b32 s{SRD_O+3}, 0x20000")
    e(f"s_and_b32 s{S_T0}, s{S_QB}, 1")
    e(f"s_lshl_b32 s{S_T0}, s{S_T0}, 5")
    e(f"v_and_b32 {T0}, 31, {L}")
    e(f"v_add_u32 {T0}, s{S_T0}, {T0}")
    e(f"v_lshlrev_b32 {T0}, 6, {T0}")
    e(f"v_add_u32 {T0}, {WQ0+16384}, {T0}")
    e(f"v_lshrrev_b32 {T1}, 5, {L}")
    e(f"v_bfe_u32 {T2}, {L}, 2, 2")
    e(f"v_xor_b32 {T1}, {T1}, {T2}")
    V_XA = V_S
    for ks in range(2):
        e(f"v_xor_b32 {T2}, {2*ks}, {T1}")
        e(f"v_lshl_add_u32 v{V_XA+ks}, {T2}, 4, {T0}")
        e(f"v_add_u32 v{V_XA+2+ks}, {3*WSL}, v{V_XA+ks}")
    for c in range(WAH):
        wq_dma(None, c, 1)
    e(f"v_lshrrev_b32 {T0}, 5, {L}")
    e(f"v_bfe_u32 {T1}, {L}, 2, 2")
    e(f"v_lshl_add_u32 {T2}, {T0}, 3, {T1}")
    e(f"v_lshlrev_b32 {T2}, 9, {T2}")
    e(f"v_bfe_u32 {T0}, {L}, 4, 1")
    e(f"v_bfe_u32 {T3}, {L}, 1, 1")
    e(f"v_lshl_add_u32 {T0}, {T0}, 1, {T3}")
    e(f"v_lshl_add_u32 {T2}, {T0}, 4, {T2}")
    e(f"v_and_b32 {T3}, 1, {L}")
    e(f"v_lshl_add_u32 {T2}, {T3}, 3, {T2}")
    e(f"v_add_u32 {T2}, {WQ0}, {T2}")
    e(f"s_lshr_b32 s{S_T0}, s{S_QB}, 1")
    e(f"s_lshl_b32 s{S_T0}, s{S_T0}, 2")
    e(f"s_lshl_b32 s{S_T1}, s{S_KH}, 1")
    e(f"s_add_u32 s{S_T0}, s{S_T0}, s{S_T1}")
    for d2 in range(2):
        e(f"s_add_u32 s{S_T1}, s{S_T0}, {d2}")
        e(f"v_xor_b32 {T3}, s{S_T1}, {T1}")
        e(f"v_lshl_add_u32 v{V_WA+d2}, {T3}, 6, {T2}")
    e(f"s_and_b32 s{S_T0}, s{S_QB}, 1")
    e(f"s_lshl_b32 s{S_T1}, s{S_B}, 1")
    e(f"s_add_u32 s{S_T0}, s{S_T0}, s{S_T1}")
    e(f"s_lshl_b32 s{S_T0}, s{S_T0}, 18")
    e(f"s_lshl_b32 s{S_T1}, s{S_HKV}, 1")
    e(f"s_lshr_b32 s{S_T2}, s{S_QB}, 1")
    e(f"s_add_u32 s{S_T1}, s{S_T1}, s{S_T2}")
    e(f"s_lshl_b32 s{S_T1}, s{S_T1}, 13")
    e(f"s_add_u32 s{S_T0}, s{S_T0}, s{S_T1}")
    e(f"v_lshlrev_b32 {T0}, 4, {L}")
    e(f"v_add_u32 v{V_OO}, s{S_T0}, {T0}")
    for i in range(32):
        e(f"v_mov_b32 v{V_O+i}, 0")

    def qchunk(c, issue_next, wait_n):
        slot = wslot(c)
        e(f"s_waitcnt vmcnt({wait_n})")
        e("s_barrier")
        seq = [(ks, d2) for ks in range(2) for d2 in range(2)]
        hi = slot >= 3
        xs = XSL[c % 2]
        for ks in range(2):
            e(f"ds_read_b128 {vr(xs+4*ks,4)}, v{V_XA+ks+(2 if hi else 0)} offset:{(slot%3)*WSL}")
        for idx, (ks, d2) in enumerate(seq):
            f = V_F + 4*idx
            for u in range(2):
                e(f"ds_read_b64_tr_b16 {vr(f+2*u,2)}, v{V_WA+d2+(2 if hi else 0)} offset:{(slot%3)*WSL + (ks*16+4*u)*512}")
        if issue_next:
            wq_dma(None, c+WAH, 1)
        for idx, (ks, d2) in enumerate(seq):
            f = V_F + 4*idx
            e(f"s_waitcnt lgkmcnt({2*(3-idx)})")
            acc = vr(V_O + 16*d2, 16)
            e(f"v_mfma_f32_32x32x16_bf16 {acc}, {vr(f,4)}, {vr(xs+4*ks,4)}, {acc}")
    for d2 in range(2):
        e(f"v_add_u32 v{V_WA+2+d2}, {3*WSL}, v{V_WA+d2}")
    e(f"s_mov_b32 s{S_CNT}, 0")
    for c in range(NCH):
        if c == 8:
            e(f"s_mov_b32 s{S_CNT}, 8")
        if c == 16:
            e(f"s_mov_b32 s{S_CNT}, 16")
        n_after = min(NCH - 1, c + WAH - 1) - c
        if c == 0: stamp(e, 4)
        qchunk(c, c + WAH < NCH, n_after)
        if c in (0, 1, 9): stamp(e, {0:5, 1:6, 9:7}[c])
    stamp(e, 1)
    e.nop(16)
    e(f"s_lshl_b32 s{S_T0}, s{S_QB}, 13")
    e(f"s_add_u32 s{S_T0}, s{S_T0}, {QX0}")
    e(f"v_lshlrev_b32 {T0}, 4, {L}")
    e(f"v_add_u32 {T0}, s{S_T0}, {T0}")
    e(f"s_lshl_b32 s{S_T1}, s{S_KH}, 12")
    e(f"v_add_u32 {T1}, s{S_T1}, {T0}")
    for kl in range(4):
        d2, hf = kl // 2, kl % 2
        src = V_O + 16*d2 + 8*hf
        q = V_F + 4*kl
        for j in range(4):
            e(f"v_cvt_pk_bf16_f32 v{q+j}, v{src+2*j}, v{src+2*j+1}")
        e("s_nop 1")
        e(f"v_permlane32_swap_b32 v{q}, v{q+2}")
        e(f"v_permlane32_swap_b32 v{q+1}, v{q+3}")
        e("s_nop 1")
        e(f"ds_write_b128 {T1}, {vr(q,4)} offset:{kl*1024}")
    e("s_waitcnt lgkmcnt(0)")
    e("s_barrier")
    for ks in range(8):
        e(f"ds_read_b128 {vr(V_Q+4*ks,4)}, {T0} offset:{ks*1024}")
    e(f"v_lshrrev_b32 {T0}, 5, {L}")
    e(f"v_and_b32 {T1}, 15, {L}")
    e(f"v_xor_b32 {T0}, {T0}, {T1}")
    e(f"v_and_b32 {T1}, 31, {L}")
    e(f"v_lshlrev_b32 {T1}, 8, {T1}")
    e(f"s_lshl_b32 s{S_T0}, s{S_KH}, 13")
    e(f"v_add_u32 {T1}, s{S_T0}, {T1}")
    for ks in range(8):
        e(f"v_xor_b32 {T2}, {2*ks}, {T0}")
        e(f"v_lshl_add_u32 v{V_KW+ks}, {T2}, 4, {T1}")
    e(f"v_lshrrev_b32 {T0}, 5, {L}")
    e(f"v_bfe_u32 {T1}, {L}, 2, 2")
    e(f"v_lshl_add_u32 {T2}, {T0}, 2, {T1}")
    e(f"v_lshlrev_b32 {T2}, 8, {T2}")
    e(f"s_add_u32 s{S_T0}, s{S_T0}, 16384")
    e(f"v_add_u32 {T2}, s{S_T0}, {T2}")
    e(f"v_bfe_u32 {T0}, {L}, 4, 1")
    e(f"v_bfe_u32 {T3}, {L}, 1, 1")
    e(f"v_lshl_add_u32 {T0}, {T0}, 1, {T3}")
    e(f"v_lshl_add_u32 {T2}, {T0}, 4, {T2}")
    e(f"v_and_b32 {T3}, 1, {L}")
    e(f"v_lshl_add_u32 {T2}, {T3}, 3, {T2}")
    for db in range(4):
        e(f"v_xor_b32 {T3}, {db}, {T1}")
        e(f"v_lshl_add_u32 v{V_VW+db}, {T3}, 6, {T2}")
    e(f"v_mov_b32 v{V_M}, 0xff800000")
    e(f"v_mov_b32 v{V_L}, 0")
    for i in range(64):
        e(f"v_mov_b32 v{V_O+i}, 0")
    e(f"s_mov_b32 s{S_C}, {f32hex(SCALE*LOG2E)}")
    e(f"s_mov_b32 s{S_CNT}, 0")
    e(f"s_mov_b32 s{S_T2}, 0x1ffff")
    e("s_waitcnt lgkmcnt(0)")

    e.label("attn_loop")
    e("s_barrier")
    def rdk(ks):
        f = V_F + 4*(ks % 6)
        e(f"ds_read_b128 {vr(f,4)}, v{V_KW+ks}")
    for ks in range(6):
        rdk(ks)
    seqv = [(ks, db) for ks in range(2) for db in range(4)]
    def rdv(idx):
        ks, db = seqv[idx]
        f = V_F + 4*((8 + idx) % 6)
        for u in range(2):
            e(f"ds_read_b64_tr_b16 {vr(f+2*u,2)}, v{V_VW+db} offset:{ks*4096 + u*2048}")
    issued = 6
    for ks in range(8):
        f = V_F + 4*(ks % 6)
        later_k = max(0, min(8, issued) - ks - 1)
        later_v = max(0, issued - 8)
        e(f"s_waitcnt lgkmcnt({later_k + 2*later_v})")
        acc = vr(V_S, 16)
        cc = "0" if ks == 0 else acc
        e(f"v_mfma_f32_32x32x16_bf16 {acc}, {vr(f,4)}, {vr(V_Q+4*ks,4)}, {cc}")
        if issued < 8:
            rdk(issued)
        else:
            rdv(issued - 8)
        issued += 1
    for i in range(8):
        e(f"v_add_u32 v{V_KW+i}, 0x8000, v{V_KW+i}")
        e(f"v_and_b32 v{V_KW+i}, s{S_T2}, v{V_KW+i}")
    S = lambda i: f"v{V_S+i}"
    e(f"v_max3_f32 {T0}, {S(0)}, {S(1)}, {S(2)}")
    e(f"v_max3_f32 {T1}, {S(3)}, {S(4)}, {S(5)}")
    e(f"v_max3_f32 {T0}, {T0}, {S(6)}, {S(7)}")
    e(f"v_max3_f32 {T1}, {T1}, {S(8)}, {S(9)}")
    e(f"v_max3_f32 {T0}, {T0}, {S(10)}, {S(11)}")
    e(f"v_max3_f32 {T1}, {T1}, {S(12)}, {S(13)}")
    e(f"v_max3_f32 {T0}, {T0}, {S(14)}, {S(15)}")
    e(f"v_max_f32 {T0}, {T0}, {T1}")
    e(f"v_mov_b32 {T1}, {T0}")
    e("s_nop 1")
    e(f"v_permlane32_swap_b32 {T0}, {T1}")
    e("s_nop 1")
    e(f"v_max3_f32 {T0}, {T0}, {T1}, v{V_M}")
    e(f"v_cmp_neq_f32 vcc, {T0}, v{V_M}")
    e(f"v_sub_f32 {T1}, v{V_M}, {T0}")
    e(f"v_mul_f32 {T1}, s{S_C}, {T1}")
    e(f"v_exp_f32 v{V_AL2}, {T1}")
    e(f"v_mov_b32 v{V_M}, {T0}")
    e(f"v_mul_f32 {T0}, s{S_C}, {T0}")
    e(f"v_mov_b32 v{V_AL2+1}, v{V_AL2}")
    for i in range(16):
        e(f"v_fma_f32 {S(i)}, {S(i)}, s{S_C}, -{T0}")
    for i in range(16):
        e(f"v_exp_f32 {S(i)}, {S(i)}")
    e("s_cbranch_vccz attn_noresc")
    e(f"v_mul_f32 v{V_L}, v{V_L}, v{V_AL2}")
    for i in range(0, 64, 2):
        e(f"v_pk_mul_f32 {vr(V_O+i,2)}, {vr(V_O+i,2)}, {vr(V_AL2,2)}")
    e.label("attn_noresc")
    e(f"v_add_f32 {T1}, {S(0)}, {S(1)}")
    e(f"v_add_f32 {T2}, {S(2)}, {S(3)}")
    for i in range(4, 16, 2):
        tt = T1 if (i // 2) % 2 == 0 else T2
        e(f"v_add_f32 {tt}, {tt}, {S(i)}")
        e(f"v_add_f32 {tt}, {tt}, {S(i+1)}")
    e(f"v_add_f32 {T1}, {T1}, {T2}")
    e(f"v_add_f32 v{V_L}, v{V_L}, {T1}")
    for ks in range(2):
        for j in range(4):
            e(f"v_cvt_pk_bf16_f32 v{V_P+4*ks+j}, {S(8*ks+2*j)}, {S(8*ks+2*j+1)}")
    e("s_nop 1")
    for idx in range(8):
        ks, db = seqv[idx]
        f = V_F + 4*((8 + idx) % 6)
        later_v = max(0, (issued - 8) - idx - 1)
        e(f"s_waitcnt lgkmcnt({2*later_v})")
        acc = vr(V_O + 16*db, 16)
        e(f"v_mfma_f32_32x32x16_bf16 {acc}, {vr(f,4)}, {vr(V_P+4*ks,4)}, {acc}")
        if issued < 16:
            rdv(issued - 8)
            issued += 1
    for i in range(4):
        e(f"v_add_u32 v{V_VW+i}, 0x8000, v{V_VW+i}")
        e(f"v_and_b32 v{V_VW+i}, s{S_T2}, v{V_VW+i}")
    e(f"s_add_u32 s{S_CNT}, s{S_CNT}, 1")
    e(f"s_cmp_lt_u32 s{S_CNT}, 16")
    e("s_cbranch_scc1 attn_loop")
    stamp(e, 2)
    e.nop(16)
    e(f"v_mov_b32 {T0}, v{V_L}")
    e(f"v_mov_b32 {T1}, v{V_L}")
    e("s_nop 1")
    e(f"v_permlane32_swap_b32 {T0}, {T1}")
    e("s_nop 1")
    e(f"v_add_f32 v{V_L}, {T0}, {T1}")
    e("s_barrier")
    e(f"s_lshl_b32 s{S_T0}, s{S_QB}, 1")
    e(f"s_add_u32 s{S_T1}, s{S_T0}, s{S_KH}")
    e(f"s_xor_b32 s{S_T0}, s{S_T1}, 1")
    e(f"s_mul_i32 s{S_T1}, s{S_T1}, 8704")
    e(f"s_mul_i32 s{S_T0}, s{S_T0}, 8704")
    e(f"v_lshlrev_b32 {T0}, 4, {L}")
    e(f"v_lshlrev_b32 {T1}, 3, {L}")
    e(f"v_add_u32 {T2}, s{S_T1}, {T0}")
    e(f"v_add_u32 {T3}, s{S_T1}, {T1}")
    e(f"v_add_u32 {T0}, s{S_T0}, {T0}")
    e(f"v_add_u32 {T1}, s{S_T0}, {T1}")
    e(f"ds_write_b64 {T3}, {vr(V_M,2)} offset:8192")
    e(f"s_cmp_eq_u32 s{S_KH}, 0")
    e("s_cbranch_scc1 attn_merge0")
    def epi(keep, give, dbs):
        for i in range(8):
            e(f"ds_write_b128 {T2}, {vr(give+4*i,4)} offset:{i*1024}")
        e("s_waitcnt lgkmcnt(0)")
        e("s_barrier")
        e(f"ds_read_b64 {vr(V_P,2)}, {T1} offset:8192")
        for i in range(8):
            e(f"ds_read_b128 {vr(V_Q+4*i,4)}, {T0} offset:{i*1024}")
        e("s_waitcnt lgkmcnt(8)")
        e(f"v_max_f32 {T2}, v{V_M}, v{V_P}")
        e(f"v_sub_f32 {T3}, v{V_M}, {T2}")
        e(f"v_mul_f32 {T3}, s{S_C}, {T3}")
        e(f"v_exp_f32 v{V_AL2}, {T3}")
        e(f"v_sub_f32 {T3}, v{V_P}, {T2}")
        e(f"v_mul_f32 {T3}, s{S_C}, {T3}")
        e(f"v_exp_f32 v{V_P+2}, {T3}")
        e("s_nop 0")
        e(f"v_mul_f32 v{V_L}, v{V_L}, v{V_AL2}")
        e(f"v_fma_f32 v{V_L}, v{V_P+1}, v{V_P+2}, v{V_L}")
        e(f"v_rcp_f32 {T3}, v{V_L}")
        e("s_nop 0")
        e(f"v_mul_f32 v{V_AL2}, v{V_AL2}, {T3}")
        e(f"v_mul_f32 v{V_P+2}, v{V_P+2}, {T3}")
        e(f"v_mov_b32 v{V_AL2+1}, v{V_AL2}")
        e(f"v_mov_b32 v{V_P+3}, v{V_P+2}")
        e(f"s_movk_i32 s{S_T0}, {4096 if dbs[0] >= 2 else 0}")
        e("s_waitcnt lgkmcnt(0)")
        for i in range(0, 32, 2):
            o = keep + i
            e(f"v_pk_mul_f32 {vr(o,2)}, {vr(o,2)}, {vr(V_AL2,2)}")
            e(f"v_pk_fma_f32 {vr(o,2)}, {vr(V_Q+i,2)}, {vr(V_P+2,2)}, {vr(o,2)}")
        for db in dbs:
            for pr in range(2):
                src = V_O + 16*db + 8*pr
                q = V_F + 4*((2*db+pr) % 6)
                for j in range(4):
                    e(f"v_cvt_pk_bf16_f32 v{q+j}, v{src+2*j}, v{src+2*j+1}")
                e("s_nop 1")
                e(f"v_permlane32_swap_b32 v{q}, v{q+2}")
                e(f"v_permlane32_swap_b32 v{q+1}, v{q+3}")
                e("s_nop 1")
                e(f"buffer_store_dwordx4 {vr(q,4)}, v{V_OO}, {sr(SRD_O,4)}, s{S_T0} offen offset:{((2*db+pr)%4)*1024}")
    epi(V_O+32, V_O, (2, 3))
    e("s_endpgm")
    e.label("attn_merge0")
    epi(V_O, V_O+32, (0, 1))
    if STAMP:
        e("s_waitcnt vmcnt(0)")
    stamp(e, 3)
    stamp_flush(e, 8, S_WAVE, "c")
    e("s_endpgm")

    e.label("attn_loader")
    SRD_V = 24
    S_J4K = 54
    e(f"s_sub_u32 s{S_T1}, s{S_WAVE}, 8")
    e(f"s_lshl_b32 s{S_J4K}, s{S_T1}, 12")
    e(f"s_lshl_b32 s{S_WQR}, s{S_T1}, 15")
    e(f"s_lshl_b32 s{S_WQL}, s{S_T1}, 11")
    e(f"s_add_u32 s{S_WQL}, s{S_WQL}, {WQ0}")
    e(f"s_lshl_b32 s{S_T0}, s{S_B}, 4")
    e(f"s_add_u32 s{S_T0}, s{S_T0}, s{S_HKV}")
    e(f"s_lshl_b32 s{S_T0}, s{S_T0}, 18")
    e(f"s_add_u32 s{SRD_K}, s{S_K}, s{S_T0}")
    e(f"s_addc_u32 s{SRD_K+1}, s{S_K+1}, 0")
    e(f"s_mov_b32 s{SRD_K+2}, 0x40000")
    e(f"s_mov_b32 s{SRD_K+3}, 0x20000")
    e(f"s_add_u32 s{SRD_V}, s{S_V}, s{S_T0}")
    e(f"s_addc_u32 s{SRD_V+1}, s{S_V+1}, 0")
    e(f"s_mov_b32 s{SRD_V+2}, 0x40000")
    e(f"s_mov_b32 s{SRD_V+3}, 0x20000")
    e(f"s_mul_i32 s{S_T0}, s{S_B}, 73728")
    e(f"s_add_u32 s{SRD_X}, s{S_X}, s{S_T0}")
    e(f"s_addc_u32 s{SRD_X+1}, s{S_X+1}, 0")
    e(f"s_mov_b32 s{SRD_X+2}, 73728")
    e(f"s_mov_b32 s{SRD_X+3}, 0x20000")
    V_XD = 11
    S_XL = 55
    e(f"s_lshl_b32 s{S_XL}, s{S_T1}, 10")
    e(f"s_add_u32 s{S_XL}, s{S_XL}, {WQ0+16384}")
    e(f"s_lshl_b32 s{S_T0}, s{S_T1}, 4")
    e(f"v_lshrrev_b32 {T0}, 2, {L}")
    e(f"v_add_u32 {T0}, s{S_T0}, {T0}")
    e(f"s_movk_i32 s{S_T0}, 1152")
    e(f"v_mul_lo_u32 {T0}, {T0}, s{S_T0}")
    e(f"v_and_b32 {T1}, 3, {L}")
    e(f"v_bfe_u32 {T2}, {L}, 4, 2")
    e(f"v_xor_b32 {T1}, {T1}, {T2}")
    e(f"v_lshl_add_u32 v{V_XD}, {T1}, 4, {T0}")
    def x_dma(c):
        rot18(e, S_XOFF, None, c, S_B, S_T0)
        e(f"s_lshl_b32 s{S_XOFF}, s{S_XOFF}, 6")
        e(f"s_add_u32 m0, s{S_XL}, {wslot(c)*WSL}")
        e("s_nop 0")
        e(f"buffer_load_dwordx4 v{V_XD}, {sr(SRD_X,4)}, s{S_XOFF} offen lds")
    for c in range(WAH):
        x_dma(c)
        wq_dma(None, c, 2)
    e(f"v_lshrrev_b32 {T0}, 4, {L}")
    e(f"v_and_b32 {T1}, 15, {L}")
    e(f"v_lshlrev_b32 {T2}, 8, {T0}")
    e(f"v_lshlrev_b32 {T3}, 2, {T0}")
    e(f"v_xor_b32 {T3}, {T1}, {T3}")
    e(f"v_lshl_add_u32 v{V_D+4}, {T3}, 4, {T2}")
    e(f"v_xor_b32 {T1}, {T1}, {T0}")
    for i in range(4):
        e(f"v_xor_b32 {T3}, {4*i}, {T1}")
        e(f"v_lshl_add_u32 v{V_D+i}, {T3}, 4, {T2}")
    def tile_issue():
        e(f"s_add_u32 s{S_SOFF}, s{S_ROT}, s{S_T2}")
        e(f"s_and_b32 s{S_SOFF}, s{S_SOFF}, 15")
        e(f"s_lshl_b32 s{S_SOFF}, s{S_SOFF}, 14")
        e(f"s_add_u32 s{S_SOFF}, s{S_SOFF}, s{S_J4K}")
        e(f"s_and_b32 s{S_STG}, s{S_T2}, 3")
        e(f"s_lshl_b32 s{S_STG}, s{S_STG}, 15")
        e(f"s_add_u32 m0, s{S_STG}, s{S_J4K}")
        e(f"s_add_u32 s{S_STG}, m0, 16384")
        for i in range(4):
            e(f"buffer_load_dwordx4 v{V_D+i}, {sr(SRD_K,4)}, s{S_SOFF} offen offset:{i*1024}{NT_KV} lds")
        e(f"s_mov_b32 m0, s{S_STG}")
        e("s_nop 0")
        for i in range(4):
            e(f"buffer_load_dwordx4 v{V_D+4}, {sr(SRD_V,4)}, s{S_SOFF} offen offset:{i*1024}{NT_KV} lds")
    e(f"s_mov_b32 s{S_T2}, 0")
    tile_issue()
    for c in range(NCH):
        n_after = min(NCH - 1, c + WAH - 1) - c
        e(f"s_waitcnt vmcnt({3*n_after + (8 if c < WAH else 0) + (5 if c >= NCH-WAH else 0)})")
        e("s_barrier")
        if c + WAH < NCH:
            x_dma(c + WAH)
            wq_dma(None, c + WAH, 2)
        if c == NCH-WAH-1:
            e("s_mov_b32 s76, s12")
            e("s_mov_b32 s77, s13")
            e(f"s_mov_b32 s78, {4096*1152}")
            e("s_mov_b32 s79, 0x20000")
            e(f"s_mul_i32 s{S_T0}, s2, 18432")
            e(f"s_mul_i32 s{S_SOFF}, s{S_WAVE}, 5120")
            e(f"s_add_u32 s{S_T0}, s{S_T0}, s{S_SOFF}")
            e(f"s_sub_u32 s{S_T0}, s{S_T0}, {8*5120}")
            e(f"v_lshlrev_b32 v12, 4, {L}")
            e(f"v_add_u32 v12, s{S_T0}, v12")
            e(f"v_add_u32 v13, 4096, v12")
            for k in range(4):
                e(f"buffer_load_dwordx4 v[{20+4*k}:{23+4*k}], v12, s[76:79], 0 offen offset:{k*1024}")
            e(f"buffer_load_dwordx4 v[36:39], v13, s[76:79], 0 offen")
    e("s_barrier")
    e(f"s_mov_b32 s{S_T2}, 1")
    e.label("attn_ldpro")
    tile_issue()
    e(f"s_add_u32 s{S_T2}, s{S_T2}, 1")
    e(f"s_cmp_lt_u32 s{S_T2}, 3")
    e("s_cbranch_scc1 attn_ldpro")
    e(f"s_mov_b32 s{S_CNT}, 0")
    e.label("attn_ldloop")
    e(f"s_cmp_lt_u32 s{S_CNT}, 14")
    e("s_cbranch_scc1 attn_ldw32")
    e(f"s_cmp_eq_u32 s{S_CNT}, 14")
    e("s_cbranch_scc1 attn_ldw16")
    e("s_waitcnt vmcnt(0)")
    e("s_branch attn_ldw")
    e.label("attn_ldw16")
    e("s_waitcnt vmcnt(8)")
    e("s_branch attn_ldw")
    e.label("attn_ldw32")
    e("s_waitcnt vmcnt(16)")
    e.label("attn_ldw")
    e("s_barrier")
    e(f"s_add_u32 s{S_T2}, s{S_CNT}, 3")
    e(f"s_cmp_ge_u32 s{S_T2}, 16")
    e("s_cbranch_scc1 attn_ldskip")
    tile_issue()
    e.label("attn_ldskip")
    e(f"s_add_u32 s{S_CNT}, s{S_CNT}, 1")
    e(f"s_cmp_lt_u32 s{S_CNT}, 16")
    e("s_cbranch_scc1 attn_ldloop")
    e("s_barrier")
    e("s_barrier")
    e.label("attn_end")
    e("s_endpgm")

def gen_oproj(e):
    name = "oproj_kernel"
    e.raw(f".globl {name}")
    e.raw(".p2align 8")
    e.raw(f".type {name},@function")
    e.label(name)
    SRD_O, SRD_W, SRD_OUT = 20, 24, 28
    S_WAVE, S_MB, S_NB, S_T0, S_T1, S_SOFF, S_KO, S_CNT, S_OOFF = 40, 41, 42, 43, 44, 46, 47, 49, 50
    V_LANE = 1
    V_T0, V_T1, V_T2, V_T3 = 2, 3, 4, 5
    V_WD = 6
    V_WA = 8
    V_OA = 10
    V_OUT = 13
    V_AF = 16
    V_ACC = 64
    V_BF = 128
    NS = 4
    AHEAD = 3
    NCH = 16
    L = f"v{V_LANE}"
    T0, T1, T2, T3 = (f"v{x}" for x in (V_T0, V_T1, V_T2, V_T3))
    e("s_cmp_ge_u32 s2, 144")
    e("s_cbranch_scc1 oproj_end")
    e("s_load_dwordx4 s[4:7], s[0:1], 32")
    e("s_load_dwordx2 s[16:17], s[0:1], 56")
    stamp(e, 0)
    e(f"v_and_b32 {L}, 63, v0")
    e(f"v_lshrrev_b32 v2, 6, v0")
    e("s_nop 0")
    e(f"v_readfirstlane_b32 s{S_WAVE}, v2")
    e(f"s_and_b32 s{S_MB}, s2, 15")
    e(f"s_lshr_b32 s{S_NB}, s2, 4")
    e("s_waitcnt lgkmcnt(0)")
    e(f"s_mov_b32 s{SRD_O}, s16")
    e(f"s_mov_b32 s{SRD_O+1}, s17")
    e(f"s_mov_b32 s{SRD_O+2}, 0x800000")
    e(f"s_mov_b32 s{SRD_O+3}, 0x20000")
    e(f"s_mov_b32 s{SRD_W}, s4")
    e(f"s_mov_b32 s{SRD_W+1}, s5")
    e(f"s_mov_b32 s{SRD_W+2}, {4096*1152}")
    e(f"s_mov_b32 s{SRD_W+3}, 0x20000")
    e(f"s_mov_b32 s{SRD_OUT}, s6")
    e(f"s_mov_b32 s{SRD_OUT+1}, s7")
    e(f"s_mov_b32 s{SRD_OUT+2}, {1024*1152}")
    e(f"s_mov_b32 s{SRD_OUT+3}, 0x20000")
    e(f"v_lshrrev_b32 {T0}, 3, {L}")
    e(f"s_movk_i32 s{S_T0}, 1152")
    e(f"v_mul_lo_u32 {T0}, {T0}, s{S_T0}")
    e(f"v_and_b32 {T1}, 7, {L}")
    e(f"v_bfe_u32 {T2}, {L}, 4, 1")
    e(f"v_lshlrev_b32 {T2}, 2, {T2}")
    e(f"v_xor_b32 {T1}, {T1}, {T2}")
    e(f"v_lshl_add_u32 v{V_WD}, {T1}, 4, {T0}")
    e(f"s_mul_i32 s{S_KO}, s{S_WAVE}, {512*1152}")
    e(f"s_lshl_b32 s{S_T0}, s{S_NB}, 7")
    e(f"s_add_u32 s{S_KO}, s{S_KO}, s{S_T0}")
    e(f"s_lshl_b32 s{S_T0}, s{S_MB}, 19")
    e(f"s_lshl_b32 s{S_T1}, s{S_WAVE}, 15")
    e(f"s_add_u32 s{S_T0}, s{S_T0}, s{S_T1}")
    e(f"v_lshlrev_b32 {T0}, 4, {L}")
    e(f"v_add_u32 v{V_OA}, s{S_T0}, {T0}")
    e(f"v_add_u32 v{V_OA+1}, 0x40000, v{V_OA}")
    S_M0W = 48
    e(f"s_lshl_b32 s{S_M0W}, s{S_WAVE}, 14")
    e(f"s_mov_b32 s{S_SOFF}, s{S_KO}")
    e(f"s_mov_b32 s{S_OOFF}, 0")
    def issue(slot):
        for j in range(4):
            e(f"s_add_u32 m0, s{S_M0W}, {slot*4096 + j*1024}")
            e("s_nop 0")
            e(f"buffer_load_dwordx4 v{V_WD}, {sr(SRD_W,4)}, s{S_SOFF} offen{NT_W} lds")
            e(f"s_add_u32 s{S_SOFF}, s{S_SOFF}, {8*1152}")
        for mb2 in range(2):
            for st in range(2):
                f = V_BF + 16*slot + 8*mb2 + 4*st
                e(f"buffer_load_dwordx4 {vr(f,4)}, v{V_OA+mb2}, {sr(SRD_O,4)}, s{S_OOFF} offen offset:{st*1024}{NT_W}")
        e(f"s_add_u32 s{S_OOFF}, s{S_OOFF}, 2048")
    for c in range(AHEAD):
        issue(c)
    e(f"v_lshrrev_b32 {T0}, 5, {L}")
    e(f"v_bfe_u32 {T1}, {L}, 2, 2")
    e(f"v_lshl_add_u32 {T2}, {T0}, 3, {T1}")
    e(f"v_lshlrev_b32 {T2}, 7, {T2}")
    e(f"v_bfe_u32 {T0}, {L}, 4, 1")
    e(f"v_bfe_u32 {T3}, {L}, 1, 1")
    e(f"v_lshl_add_u32 {T0}, {T0}, 1, {T3}")
    e(f"v_lshl_add_u32 {T2}, {T0}, 4, {T2}")
    e(f"v_and_b32 {T3}, 1, {L}")
    e(f"v_lshl_add_u32 {T2}, {T3}, 3, {T2}")
    e(f"v_add_u32 {T2}, s{S_M0W}, {T2}")
    e(f"v_bfe_u32 {T1}, {L}, 3, 1")
    for nb2 in range(2):
        e(f"v_xor_b32 {T3}, {nb2}, {T1}")
        e(f"v_lshl_add_u32 v{V_WA+nb2}, {T3}, 6, {T2}")
    for i in range(64):
        e(f"v_mov_b32 v{V_ACC+i}, 0")
    def rda(slot, par):
        ab = V_AF + 16*par
        for nb2 in range(2):
            for st in range(2):
                for u in range(2):
                    e(f"ds_read_b64_tr_b16 {vr(ab+8*nb2+4*st+2*u,2)}, v{V_WA+nb2} offset:{slot*4096 + (st*16+4*u)*128}")
    stamp(e, 1)
    e(f"s_waitcnt vmcnt({8*(AHEAD-1)})")
    rda(0, 0)
    def body(c, cmod):
        slot = cmod % NS
        par = cmod % 2
        e("s_waitcnt lgkmcnt(0)")
        if c + AHEAD < NCH:
            issue((slot + AHEAD) % NS)
        if c + 1 < NCH:
            n_after = min(NCH - 1, c + AHEAD) - (c + 1)
            e(f"s_waitcnt vmcnt({8*n_after})")
            rda((slot + 1) % NS, 1 - par)
        ab = V_AF + 16*par
        for st in range(2):
            for nb2 in range(2):
                for mb2 in range(2):
                    acc = vr(V_ACC + 32*nb2 + 16*mb2, 16)
                    e(f"v_mfma_f32_32x32x16_bf16 {acc}, {vr(ab+8*nb2+4*st,4)}, {vr(V_BF+16*slot+8*mb2+4*st,4)}, {acc}")
    e(f"s_mov_b32 s{S_CNT}, 0")
    e.label("oproj_loop")
    for cm in range(4):
        body(cm, cm)
    e(f"s_add_u32 s{S_CNT}, s{S_CNT}, 1")
    e(f"s_cmp_lt_u32 s{S_CNT}, 3")
    e("s_cbranch_scc1 oproj_loop")
    stamp(e, 2)
    for c in range(12, 16):
        body(c, c)
    stamp(e, 3)
    e.nop(16)
    e("s_barrier")
    e(f"v_lshlrev_b32 {T0}, 4, {L}")
    e(f"v_add_u32 {T1}, s{S_M0W}, {T0}")
    for i in range(16):
        e(f"ds_write_b128 {T1}, {vr(V_ACC+4*i,4)} offset:{i*1024}")
    e("s_waitcnt lgkmcnt(0)")
    e("s_barrier")
    e(f"s_lshl_b32 s{S_T0}, s{S_WAVE}, 11")
    e(f"v_add_u32 {T1}, s{S_T0}, {T0}")
    e(f"v_add_u32 {T2}, 0x10000, {T1}")
    for w in range(8):
        for i in range(2):
            e(f"ds_read_b128 {vr(V_BF+8*w+4*i,4)}, {T1 if w < 4 else T2} offset:{(w%4)*16384 + i*1024}")
    e("s_waitcnt lgkmcnt(0)")
    for stp in (4, 2, 1):
        for w in range(stp):
            for i in range(0, 8, 2):
                e(f"v_pk_add_f32 {vr(V_BF+8*w+i,2)}, {vr(V_BF+8*w+i,2)}, {vr(V_BF+8*(w+stp)+i,2)}")
    e(f"s_lshl_b32 s{S_T0}, s{S_MB}, 6")
    e(f"s_bfe_u32 s{S_T1}, s{S_WAVE}, 0x10001")
    e(f"s_lshl_b32 s{S_T1}, s{S_T1}, 5")
    e(f"s_add_u32 s{S_T0}, s{S_T0}, s{S_T1}")
    e(f"v_and_b32 {T0}, 31, {L}")
    e(f"v_add_u32 {T0}, s{S_T0}, {T0}")
    e(f"s_movk_i32 s{S_T1}, 1152")
    e(f"v_mul_lo_u32 {T0}, {T0}, s{S_T1}")
    e(f"s_lshl_b32 s{S_T0}, s{S_NB}, 7")
    e(f"s_lshr_b32 s{S_T1}, s{S_WAVE}, 2")
    e(f"s_lshl_b32 s{S_T1}, s{S_T1}, 6")
    e(f"s_add_u32 s{S_T0}, s{S_T0}, s{S_T1}")
    e(f"s_and_b32 s{S_T1}, s{S_WAVE}, 1")
    e(f"s_lshl_b32 s{S_T1}, s{S_T1}, 5")
    e(f"s_add_u32 s{S_T0}, s{S_T0}, s{S_T1}")
    e(f"v_add_u32 {T0}, s{S_T0}, {T0}")
    e(f"v_lshrrev_b32 {T1}, 5, {L}")
    e(f"v_lshl_add_u32 v{V_OUT}, {T1}, 4, {T0}")
    q = V_AF
    for j in range(4):
        e(f"v_cvt_pk_bf16_f32 v{q+j}, v{V_BF+2*j}, v{V_BF+2*j+1}")
    e("s_nop 1")
    e(f"v_permlane32_swap_b32 v{q}, v{q+2}")
    e(f"v_permlane32_swap_b32 v{q+1}, v{q+3}")
    e("s_nop 1")
    e(f"buffer_store_dwordx4 {vr(q,4)}, v{V_OUT}, {sr(SRD_OUT,4)}, 0 offen")
    if STAMP:
        e("s_waitcnt vmcnt(0)")
    stamp(e, 4)
    stamp_flush(e, 5, S_WAVE, "o")
    e.label("oproj_end")
    e("s_endpgm")

def desc(name, nfv, acc, sgpr=102):
    return f""".amdhsa_kernel {name}
  .amdhsa_next_free_vgpr {nfv}
  .amdhsa_next_free_sgpr {sgpr}
  .amdhsa_accum_offset {acc}
  .amdhsa_group_segment_fixed_size 0
  .amdhsa_kernarg_size 64
  .amdhsa_user_sgpr_count 2
  .amdhsa_user_sgpr_kernarg_segment_ptr 1
  .amdhsa_system_sgpr_workgroup_id_x 1
.end_amdhsa_kernel
"""

def main():
    hdr = open("standalone__gqa_block_cached__near_ridge.s.ref").read().split("; Override launch")[0]
    e = Em()
    gen_attn(e)
    gen_oproj(e)
    out = hdr
    out += "; @launch kernel=attn_kernel grid=(256,1,1) block=(768,1,1) lds=163840\n"
    out += "; @launch kernel=oproj_kernel grid=(144,1,1) block=(512,1,1) lds=131072\n"
    out += '.amdgcn_target "amdgcn-amd-amdhsa--gfx950"\n.text\n'
    out += e.text()
    out += '.section .rodata,"a"\n.p2align 6\n'
    out += desc("attn_kernel", 168, 168)
    out += ".p2align 6\n"
    out += desc("oproj_kernel", 192, 192)
    path = sys.argv[1] if len(sys.argv) > 1 else "standalone__gqa_block_cached__near_ridge.s"
    open(path, "w").write(out)

main()
```

```python
import sys, struct

class Em:
    def __init__(self):
        self.lines = []
    def __call__(self, s):
        self.lines.append("    " + s)
    def label(self, s):
        self.lines.append(s + ":")
    def raw(self, s):
        self.lines.append(s)
    def nop(self, n):
        while n > 0:
            k = min(n, 16)
            self(f"s_nop {k-1}")
            n -= k
    def text(self):
        return "\n".join(self.lines) + "\n"

def vr(b, n=1):
    return f"v{b}" if n == 1 else f"v[{b}:{b+n-1}]"
def sr(b, n=1):
    return f"s{b}" if n == 1 else f"s[{b}:{b+n-1}]"
def f32hex(x):
    return "0x%08x" % struct.unpack("<I", struct.pack("<f", x))[0]

LOG2E = 1.4426950408889634
SCALE = 128 ** -0.5
OPT = sys.argv[2] if len(sys.argv) > 2 else ""
STAMP = "stamp" in OPT
NT_KV = " nt"
NT_W = " nt" if "ntw" in OPT else ""

def stamp(e, idx):
    if not STAMP: return
    e("s_memtime s[60:61]")
    e("s_waitcnt lgkmcnt(0)")
    e(f"s_mov_b32 s{62+idx}, s60")

def stamp_flush(e, n, wavereg, tag):
    if not STAMP: return
    e("s_load_dwordx2 s[56:57], s[0:1], 48")
    e("s_waitcnt lgkmcnt(0)")
    e("s_mov_b32 s52, s56")
    e("s_mov_b32 s53, s57")
    e("s_mov_b32 s54, 256")
    e("s_mov_b32 s55, 0x20000")
    e("s_cmp_lg_u32 s2, 5")
    e(f"s_cbranch_scc1 stamp_skip_{tag}")
    e(f"s_lshl_b32 s58, s{wavereg}, 5")
    for i in range(n):
        e(f"s_sub_u32 s59, s{62+i}, s62")
        e("v_mov_b32 v2, s59")
        e(f"v_mov_b32 v3, s58")
        e(f"buffer_store_dword v2, v3, s[52:55], 0 offen offset:{4*i}")
    e.label(f"stamp_skip_{tag}")

def rot18(e, dst, base_sgpr, add_const, rot_sgpr, tmp):
    if base_sgpr is None:
        e(f"s_add_u32 s{dst}, s{rot_sgpr}, {add_const}")
    else:
        e(f"s_add_u32 s{dst}, s{base_sgpr}, {add_const}")
        e(f"s_add_u32 s{dst}, s{dst}, s{rot_sgpr}")
    e(f"s_sub_u32 s{tmp}, s{dst}, 18")
    e(f"s_cmp_ge_u32 s{dst}, 18")
    e(f"s_cselect_b32 s{dst}, s{tmp}, s{dst}")

def gen_attn(e):
    name = "attn_kernel"
    e.raw(f".globl {name}")
    e.raw(".p2align 8")
    e.raw(f".type {name},@function")
    e.label(name)
    S_X, S_K, S_V, S_WQ, S_WS = 4, 6, 8, 10, 16
    SRD_K, SRD_X, SRD_WQ, SRD_O = 20, 28, 32, 36
    S_WAVE, S_HKV, S_B = 40, 41, 42
    S_T0, S_T1, S_T2, S_SOFF, S_C = 43, 44, 45, 46, 47
    S_CNT, S_STG, S_ROT, S_XOFF, S_QB, S_KH = 48, 49, 50, 51, 72, 73
    V_LANE = 1
    V_T0, V_T1, V_T2, V_T3 = 2, 3, 4, 5
    V_KW = 6
    V_VW = 14
    V_M, V_L = 18, 19
    V_AL2 = 20
    V_OO = 22
    V_XO = 23
    V_WA = 6
    V_D = 6
    V_O = 24
    V_S = 88
    V_Q = 104
    V_F = 136
    V_P = 160
    XSL = [V_O+32, V_O+40, V_O+48, V_O+56, V_S, V_S+8, V_Q, V_Q+8]
    STAGE = 32768
    WQ0 = 32768
    WNS = 6
    WAH = 5
    WSL = 20480
    def wslot(c): return (c + 2) % WNS
    QX0 = 131072
    NCH = 18

    e("s_cmp_ge_u32 s2, 256")
    e("s_cbranch_scc1 attn_end")
    e("s_load_dwordx4 s[4:7], s[0:1], 0")
    e("s_load_dwordx4 s[8:11], s[0:1], 16")
    e("s_load_dwordx2 s[16:17], s[0:1], 56")
    e("s_load_dwordx2 s[12:13], s[0:1], 32")
    stamp(e, 0)
    e(f"v_and_b32 v{V_LANE}, 63, v0")
    e(f"v_lshrrev_b32 v2, 6, v0")
    e("s_nop 0")
    e(f"v_readfirstlane_b32 s{S_WAVE}, v2")
    e(f"s_and_b32 s{S_HKV}, s2, 15")
    e(f"s_lshr_b32 s{S_B}, s2, 4")
    e(f"s_add_u32 s{S_ROT}, s{S_HKV}, s{S_B}")
    L = f"v{V_LANE}"
    T0, T1, T2, T3 = (f"v{x}" for x in (V_T0, V_T1, V_T2, V_T3))
    e("s_waitcnt lgkmcnt(0)")
    e(f"s_lshl_b32 s{S_T0}, s{S_HKV}, 9")
    e(f"s_add_u32 s{SRD_WQ}, s{S_WQ}, s{S_T0}")
    e(f"s_addc_u32 s{SRD_WQ+1}, s{S_WQ+1}, 0")
    e(f"s_sub_u32 s{SRD_WQ+2}, {576*8192}, s{S_T0}")
    e(f"s_mov_b32 s{SRD_WQ+3}, 0x20000")
    V_WD = 166
    e(f"v_lshrrev_b32 {T0}, 5, {L}")
    e(f"v_and_b32 {T1}, 31, {L}")
    e(f"v_lshlrev_b32 {T2}, 13, {T0}")
    for odd in range(2):
        e(f"v_add_u32 {T3}, {2*odd}, {T0}")
        e(f"v_lshlrev_b32 {T3}, 2, {T3}")
        e(f"v_xor_b32 {T3}, {T3}, {T1}")
        e(f"v_lshl_add_u32 v{V_WD+odd}, {T3}, 4, {T2}")
    S_WQR, S_WQL = 52, 53
    def wq_dma(chunk_sgpr, chunk_const, n_instr):
        rot18(e, S_SOFF, chunk_sgpr, chunk_const, S_B, S_T0)
        e(f"s_lshl_b32 s{S_SOFF}, s{S_SOFF}, 18")
        e(f"s_add_u32 s{S_SOFF}, s{S_SOFF}, s{S_WQR}")
        if chunk_sgpr is None:
            e(f"s_add_u32 m0, s{S_WQL}, {wslot(chunk_const)*WSL}")
        else:
            e(f"s_add_u32 s{S_STG}, s{chunk_sgpr}, {chunk_const}")
            e(f"s_and_b32 s{S_STG}, s{S_STG}, 7")
            e(f"s_lshl_b32 s{S_STG}, s{S_STG}, 14")
            e(f"s_add_u32 m0, s{S_STG}, s{S_WQL}")
        e("s_nop 0")
        e(f"buffer_load_dwordx4 v{V_WD}, {sr(SRD_WQ,4)}, s{S_SOFF} offen lds")
        if n_instr == 2:
            e(f"s_add_u32 s{S_SOFF}, s{S_SOFF}, {16384-1024}")
            e(f"buffer_load_dwordx4 v{V_WD+1}, {sr(SRD_WQ,4)}, s{S_SOFF} offen offset:1024 lds")
    e(f"s_cmp_ge_u32 s{S_WAVE}, 8")
    e("s_cbranch_scc1 attn_loader")
    e(f"s_add_u32 s{S_T0}, s{S_WAVE}, 8")
    e(f"s_lshl_b32 s{S_WQR}, s{S_T0}, 14")
    e(f"s_lshl_b32 s{S_WQL}, s{S_T0}, 10")
    e(f"s_add_u32 s{S_WQL}, s{S_WQL}, {WQ0}")
    e(f"s_and_b32 s{S_T0}, s{S_WAVE}, 1")
    e(f"s_cmp_eq_u32 s{S_T0}, 0")
    e("s_cbranch_scc1 attn_weven")
    e(f"v_mov_b32 v{V_WD}, v{V_WD+1}")
    e.label("attn_weven")

    e(f"s_and_b32 s{S_QB}, s{S_WAVE}, 3")
    e(f"s_lshr_b32 s{S_KH}, s{S_WAVE}, 2")
    e(f"s_mul_i32 s{S_T0}, s{S_B}, 73728")
    e(f"s_add_u32 s{SRD_X}, s{S_X}, s{S_T0}")
    e(f"s_addc_u32 s{SRD_X+1}, s{S_X+1}, 0")
    e(f"s_mov_b32 s{SRD_X+2}, 73728")
    e(f"s_mov_b32 s{SRD_X+3}, 0x20000")
    e(f"s_mov_b32 s{SRD_O}, s{S_WS}")
    e(f"s_mov_b32 s{SRD_O+1}, s{S_WS+1}")
    e(f"s_mov_b32 s{SRD_O+2}, 0x800000")
    e(f"s_mov_b32 s{SRD_O+3}, 0x20000")
    e(f"s_and_b32 s{S_T0}, s{S_QB}, 1")
    e(f"s_lshl_b32 s{S_T0}, s{S_T0}, 5")
    e(f"v_and_b32 {T0}, 31, {L}")
    e(f"v_add_u32 {T0}, s{S_T0}, {T0}")
    e(f"v_lshlrev_b32 {T0}, 6, {T0}")
    e(f"v_add_u32 {T0}, {WQ0+16384}, {T0}")
    e(f"v_lshrrev_b32 {T1}, 5, {L}")
    e(f"v_bfe_u32 {T2}, {L}, 2, 2")
    e(f"v_xor_b32 {T1}, {T1}, {T2}")
    V_XA = V_S
    for ks in range(2):
        e(f"v_xor_b32 {T2}, {2*ks}, {T1}")
        e(f"v_lshl_add_u32 v{V_XA+ks}, {T2}, 4, {T0}")
        e(f"v_add_u32 v{V_XA+2+ks}, {3*WSL}, v{V_XA+ks}")
    for c in range(WAH):
        wq_dma(None, c, 1)
    e(f"v_lshrrev_b32 {T0}, 5, {L}")
    e(f"v_bfe_u32 {T1}, {L}, 2, 2")
    e(f"v_lshl_add_u32 {T2}, {T0}, 3, {T1}")
    e(f"v_lshlrev_b32 {T2}, 9, {T2}")
    e(f"v_bfe_u32 {T0}, {L}, 4, 1")
    e(f"v_bfe_u32 {T3}, {L}, 1, 1")
    e(f"v_lshl_add_u32 {T0}, {T0}, 1, {T3}")
    e(f"v_lshl_add_u32 {T2}, {T0}, 4, {T2}")
    e(f"v_and_b32 {T3}, 1, {L}")
    e(f"v_lshl_add_u32 {T2}, {T3}, 3, {T2}")
    e(f"v_add_u32 {T2}, {WQ0}, {T2}")
    e(f"s_lshr_b32 s{S_T0}, s{S_QB}, 1")
    e(f"s_lshl_b32 s{S_T0}, s{S_T0}, 2")
    e(f"s_lshl_b32 s{S_T1}, s{S_KH}, 1")
    e(f"s_add_u32 s{S_T0}, s{S_T0}, s{S_T1}")
    for d2 in range(2):
        e(f"s_add_u32 s{S_T1}, s{S_T0}, {d2}")
        e(f"v_xor_b32 {T3}, s{S_T1}, {T1}")
        e(f"v_lshl_add_u32 v{V_WA+d2}, {T3}, 6, {T2}")
    e(f"s_and_b32 s{S_T0}, s{S_QB}, 1")
    e(f"s_lshl_b32 s{S_T1}, s{S_B}, 1")
    e(f"s_add_u32 s{S_T0}, s{S_T0}, s{S_T1}")
    e(f"s_lshl_b32 s{S_T0}, s{S_T0}, 18")
    e(f"s_lshl_b32 s{S_T1}, s{S_HKV}, 1")
    e(f"s_lshr_b32 s{S_T2}, s{S_QB}, 1")
    e(f"s_add_u32 s{S_T1}, s{S_T1}, s{S_T2}")
    e(f"s_lshl_b32 s{S_T1}, s{S_T1}, 13")
    e(f"s_add_u32 s{S_T0}, s{S_T0}, s{S_T1}")
    e(f"v_lshlrev_b32 {T0}, 4, {L}")
    e(f"v_add_u32 v{V_OO}, s{S_T0}, {T0}")
    for i in range(32):
        e(f"v_mov_b32 v{V_O+i}, 0")

    def qchunk(c, issue_next, wait_n):
        slot = wslot(c)
        e(f"s_waitcnt vmcnt({wait_n})")
        e("s_barrier")
        seq = [(ks, d2) for ks in range(2) for d2 in range(2)]
        hi = slot >= 3
        xs = XSL[c % 2]
        for ks in range(2):
            e(f"ds_read_b128 {vr(xs+4*ks,4)}, v{V_XA+ks+(2 if hi else 0)} offset:{(slot%3)*WSL}")
        for idx, (ks, d2) in enumerate(seq):
            f = V_F + 4*idx
            for u in range(2):
                e(f"ds_read_b64_tr_b16 {vr(f+2*u,2)}, v{V_WA+d2+(2 if hi else 0)} offset:{(slot%3)*WSL + (ks*16+4*u)*512}")
        if issue_next:
            wq_dma(None, c+WAH, 1)
        for idx, (ks, d2) in enumerate(seq):
            f = V_F + 4*idx
            e(f"s_waitcnt lgkmcnt({2*(3-idx)})")
            acc = vr(V_O + 16*d2, 16)
            e(f"v_mfma_f32_32x32x16_bf16 {acc}, {vr(f,4)}, {vr(xs+4*ks,4)}, {acc}")
    for d2 in range(2):
        e(f"v_add_u32 v{V_WA+2+d2}, {3*WSL}, v{V_WA+d2}")
    e(f"s_mov_b32 s{S_CNT}, 0")
    for c in range(NCH):
        if c == 8:
            e(f"s_mov_b32 s{S_CNT}, 8")
        if c == 16:
            e(f"s_mov_b32 s{S_CNT}, 16")
        n_after = min(NCH - 1, c + WAH - 1) - c
        if c == 0: stamp(e, 4)
        qchunk(c, c + WAH < NCH, n_after)
        if c in (0, 1, 9): stamp(e, {0:5, 1:6, 9:7}[c])
    stamp(e, 1)
    e.nop(16)
    e(f"s_lshl_b32 s{S_T0}, s{S_QB}, 13")
    e(f"s_add_u32 s{S_T0}, s{S_T0}, {QX0}")
    e(f"v_lshlrev_b32 {T0}, 4, {L}")
    e(f"v_add_u32 {T0}, s{S_T0}, {T0}")
    e(f"s_lshl_b32 s{S_T1}, s{S_KH}, 12")
    e(f"v_add_u32 {T1}, s{S_T1}, {T0}")
    for kl in range(4):
        d2, hf = kl // 2, kl % 2
        src = V_O + 16*d2 + 8*hf
        q = V_F + 4*kl
        for j in range(4):
            e(f"v_cvt_pk_bf16_f32 v{q+j}, v{src+2*j}, v{src+2*j+1}")
        e("s_nop 1")
        e(f"v_permlane32_swap_b32 v{q}, v{q+2}")
        e(f"v_permlane32_swap_b32 v{q+1}, v{q+3}")
        e("s_nop 1")
        e(f"ds_write_b128 {T1}, {vr(q,4)} offset:{kl*1024}")
    e("s_waitcnt lgkmcnt(0)")
    e("s_barrier")
    for ks in range(8):
        e(f"ds_read_b128 {vr(V_Q+4*ks,4)}, {T0} offset:{ks*1024}")
    e(f"v_lshrrev_b32 {T0}, 5, {L}")
    e(f"v_and_b32 {T1}, 15, {L}")
    e(f"v_xor_b32 {T0}, {T0}, {T1}")
    e(f"v_and_b32 {T1}, 31, {L}")
    e(f"v_lshlrev_b32 {T1}, 8, {T1}")
    e(f"s_lshl_b32 s{S_T0}, s{S_KH}, 13")
    e(f"v_add_u32 {T1}, s{S_T0}, {T1}")
    for ks in range(8):
        e(f"v_xor_b32 {T2}, {2*ks}, {T0}")
        e(f"v_lshl_add_u32 v{V_KW+ks}, {T2}, 4, {T1}")
    e(f"v_lshrrev_b32 {T0}, 5, {L}")
    e(f"v_bfe_u32 {T1}, {L}, 2, 2")
    e(f"v_lshl_add_u32 {T2}, {T0}, 2, {T1}")
    e(f"v_lshlrev_b32 {T2}, 8, {T2}")
    e(f"s_add_u32 s{S_T0}, s{S_T0}, 16384")
    e(f"v_add_u32 {T2}, s{S_T0}, {T2}")
    e(f"v_bfe_u32 {T0}, {L}, 4, 1")
    e(f"v_bfe_u32 {T3}, {L}, 1, 1")
    e(f"v_lshl_add_u32 {T0}, {T0}, 1, {T3}")
    e(f"v_lshl_add_u32 {T2}, {T0}, 4, {T2}")
    e(f"v_and_b32 {T3}, 1, {L}")
    e(f"v_lshl_add_u32 {T2}, {T3}, 3, {T2}")
    for db in range(4):
        e(f"v_xor_b32 {T3}, {db}, {T1}")
        e(f"v_lshl_add_u32 v{V_VW+db}, {T3}, 6, {T2}")
    e(f"v_mov_b32 v{V_M}, 0xff800000")
    e(f"v_mov_b32 v{V_L}, 0")
    for i in range(64):
        e(f"v_mov_b32 v{V_O+i}, 0")
    e(f"s_mov_b32 s{S_C}, {f32hex(SCALE*LOG2E)}")
    e(f"s_mov_b32 s{S_CNT}, 0")
    e(f"s_mov_b32 s{S_T2}, 0x1ffff")
    e("s_waitcnt lgkmcnt(0)")

    e.label("attn_loop")
    e("s_barrier")
    def rdk(ks):
        f = V_F + 4*(ks % 6)
        e(f"ds_read_b128 {vr(f,4)}, v{V_KW+ks}")
    for ks in range(6):
        rdk(ks)
    seqv = [(ks, db) for ks in range(2) for db in range(4)]
    def rdv(idx):
        ks, db = seqv[idx]
        f = V_F + 4*((8 + idx) % 6)
        for u in range(2):
            e(f"ds_read_b64_tr_b16 {vr(f+2*u,2)}, v{V_VW+db} offset:{ks*4096 + u*2048}")
    issued = 6
    for ks in range(8):
        f = V_F + 4*(ks % 6)
        later_k = max(0, min(8, issued) - ks - 1)
        later_v = max(0, issued - 8)
        e(f"s_waitcnt lgkmcnt({later_k + 2*later_v})")
        acc = vr(V_S, 16)
        cc = "0" if ks == 0 else acc
        e(f"v_mfma_f32_32x32x16_bf16 {acc}, {vr(f,4)}, {vr(V_Q+4*ks,4)}, {cc}")
        if issued < 8:
            rdk(issued)
        else:
            rdv(issued - 8)
        issued += 1
    for i in range(8):
        e(f"v_add_u32 v{V_KW+i}, 0x8000, v{V_KW+i}")
        e(f"v_and_b32 v{V_KW+i}, s{S_T2}, v{V_KW+i}")
    S = lambda i: f"v{V_S+i}"
    e(f"v_max3_f32 {T0}, {S(0)}, {S(1)}, {S(2)}")
    e(f"v_max3_f32 {T1}, {S(3)}, {S(4)}, {S(5)}")
    e(f"v_max3_f32 {T0}, {T0}, {S(6)}, {S(7)}")
    e(f"v_max3_f32 {T1}, {T1}, {S(8)}, {S(9)}")
    e(f"v_max3_f32 {T0}, {T0}, {S(10)}, {S(11)}")
    e(f"v_max3_f32 {T1}, {T1}, {S(12)}, {S(13)}")
    e(f"v_max3_f32 {T0}, {T0}, {S(14)}, {S(15)}")
    e(f"v_max_f32 {T0}, {T0}, {T1}")
    e(f"v_mov_b32 {T1}, {T0}")
    e("s_nop 1")
    e(f"v_permlane32_swap_b32 {T0}, {T1}")
    e("s_nop 1")
    e(f"v_max3_f32 {T0}, {T0}, {T1}, v{V_M}")
    e(f"v_cmp_neq_f32 vcc, {T0}, v{V_M}")
    e(f"v_sub_f32 {T1}, v{V_M}, {T0}")
    e(f"v_mul_f32 {T1}, s{S_C}, {T1}")
    e(f"v_exp_f32 v{V_AL2}, {T1}")
    e(f"v_mov_b32 v{V_M}, {T0}")
    e(f"v_mul_f32 {T0}, s{S_C}, {T0}")
    e(f"v_mov_b32 v{V_AL2+1}, v{V_AL2}")
    for i in range(16):
        e(f"v_fma_f32 {S(i)}, {S(i)}, s{S_C}, -{T0}")
    for i in range(16):
        e(f"v_exp_f32 {S(i)}, {S(i)}")
    e("s_cbranch_vccz attn_noresc")
    e(f"v_mul_f32 v{V_L}, v{V_L}, v{V_AL2}")
    for i in range(0, 64, 2):
        e(f"v_pk_mul_f32 {vr(V_O+i,2)}, {vr(V_O+i,2)}, {vr(V_AL2,2)}")
    e.label("attn_noresc")
    e(f"v_add_f32 {T1}, {S(0)}, {S(1)}")
    e(f"v_add_f32 {T2}, {S(2)}, {S(3)}")
    for i in range(4, 16, 2):
        tt = T1 if (i // 2) % 2 == 0 else T2
        e(f"v_add_f32 {tt}, {tt}, {S(i)}")
        e(f"v_add_f32 {tt}, {tt}, {S(i+1)}")
    e(f"v_add_f32 {T1}, {T1}, {T2}")
    e(f"v_add_f32 v{V_L}, v{V_L}, {T1}")
    for ks in range(2):
        for j in range(4):
            e(f"v_cvt_pk_bf16_f32 v{V_P+4*ks+j}, {S(8*ks+2*j)}, {S(8*ks+2*j+1)}")
    e("s_nop 1")
    for idx in range(8):
        ks, db = seqv[idx]
        f = V_F + 4*((8 + idx) % 6)
        later_v = max(0, (issued - 8) - idx - 1)
        e(f"s_waitcnt lgkmcnt({2*later_v})")
        acc = vr(V_O + 16*db, 16)
        e(f"v_mfma_f32_32x32x16_bf16 {acc}, {vr(f,4)}, {vr(V_P+4*ks,4)}, {acc}")
        if issued < 16:
            rdv(issued - 8)
            issued += 1
    for i in range(4):
        e(f"v_add_u32 v{V_VW+i}, 0x8000, v{V_VW+i}")
        e(f"v_and_b32 v{V_VW+i}, s{S_T2}, v{V_VW+i}")
    e(f"s_add_u32 s{S_CNT}, s{S_CNT}, 1")
    e(f"s_cmp_lt_u32 s{S_CNT}, 16")
    e("s_cbranch_scc1 attn_loop")
    stamp(e, 2)
    e.nop(16)
    e(f"v_mov_b32 {T0}, v{V_L}")
    e(f"v_mov_b32 {T1}, v{V_L}")
    e("s_nop 1")
    e(f"v_permlane32_swap_b32 {T0}, {T1}")
    e("s_nop 1")
    e(f"v_add_f32 v{V_L}, {T0}, {T1}")
    e("s_barrier")
    e(f"s_lshl_b32 s{S_T0}, s{S_QB}, 1")
    e(f"s_add_u32 s{S_T1}, s{S_T0}, s{S_KH}")
    e(f"s_xor_b32 s{S_T0}, s{S_T1}, 1")
    e(f"s_mul_i32 s{S_T1}, s{S_T1}, 8704")
    e(f"s_mul_i32 s{S_T0}, s{S_T0}, 8704")
    e(f"v_lshlrev_b32 {T0}, 4, {L}")
    e(f"v_lshlrev_b32 {T1}, 3, {L}")
    e(f"v_add_u32 {T2}, s{S_T1}, {T0}")
    e(f"v_add_u32 {T3}, s{S_T1}, {T1}")
    e(f"v_add_u32 {T0}, s{S_T0}, {T0}")
    e(f"v_add_u32 {T1}, s{S_T0}, {T1}")
    e(f"ds_write_b64 {T3}, {vr(V_M,2)} offset:8192")
    e(f"s_cmp_eq_u32 s{S_KH}, 0")
    e("s_cbranch_scc1 attn_merge0")
    def epi(keep, give, dbs):
        for i in range(8):
            e(f"ds_write_b128 {T2}, {vr(give+4*i,4)} offset:{i*1024}")
        e("s_waitcnt lgkmcnt(0)")
        e("s_barrier")
        e(f"ds_read_b64 {vr(V_P,2)}, {T1} offset:8192")
        for i in range(8):
            e(f"ds_read_b128 {vr(V_Q+4*i,4)}, {T0} offset:{i*1024}")
        e("s_waitcnt lgkmcnt(8)")
        e(f"v_max_f32 {T2}, v{V_M}, v{V_P}")
        e(f"v_sub_f32 {T3}, v{V_M}, {T2}")
        e(f"v_mul_f32 {T3}, s{S_C}, {T3}")
        e(f"v_exp_f32 v{V_AL2}, {T3}")
        e(f"v_sub_f32 {T3}, v{V_P}, {T2}")
        e(f"v_mul_f32 {T3}, s{S_C}, {T3}")
        e(f"v_exp_f32 v{V_P+2}, {T3}")
        e("s_nop 0")
        e(f"v_mul_f32 v{V_L}, v{V_L}, v{V_AL2}")
        e(f"v_fma_f32 v{V_L}, v{V_P+1}, v{V_P+2}, v{V_L}")
        e(f"v_rcp_f32 {T3}, v{V_L}")
        e("s_nop 0")
        e(f"v_mul_f32 v{V_AL2}, v{V_AL2}, {T3}")
        e(f"v_mul_f32 v{V_P+2}, v{V_P+2}, {T3}")
        e(f"v_mov_b32 v{V_AL2+1}, v{V_AL2}")
        e(f"v_mov_b32 v{V_P+3}, v{V_P+2}")
        e(f"s_movk_i32 s{S_T0}, {4096 if dbs[0] >= 2 else 0}")
        e("s_waitcnt lgkmcnt(0)")
        for i in range(0, 32, 2):
            o = keep + i
            e(f"v_pk_mul_f32 {vr(o,2)}, {vr(o,2)}, {vr(V_AL2,2)}")
            e(f"v_pk_fma_f32 {vr(o,2)}, {vr(V_Q+i,2)}, {vr(V_P+2,2)}, {vr(o,2)}")
        for db in dbs:
            for pr in range(2):
                src = V_O + 16*db + 8*pr
                q = V_F + 4*((2*db+pr) % 6)
                for j in range(4):
                    e(f"v_cvt_pk_bf16_f32 v{q+j}, v{src+2*j}, v{src+2*j+1}")
                e("s_nop 1")
                e(f"v_permlane32_swap_b32 v{q}, v{q+2}")
                e(f"v_permlane32_swap_b32 v{q+1}, v{q+3}")
                e("s_nop 1")
                e(f"buffer_store_dwordx4 {vr(q,4)}, v{V_OO}, {sr(SRD_O,4)}, s{S_T0} offen offset:{((2*db+pr)%4)*1024} sc1")
    epi(V_O+32, V_O, (2, 3))
    e("s_endpgm")
    e.label("attn_merge0")
    epi(V_O, V_O+32, (0, 1))
    if STAMP:
        e("s_waitcnt vmcnt(0)")
    stamp(e, 3)
    stamp_flush(e, 8, S_WAVE, "c")
    e("s_endpgm")

    e.label("attn_loader")
    SRD_V = 24
    S_J4K = 54
    e(f"s_sub_u32 s{S_T1}, s{S_WAVE}, 8")
    e(f"s_lshl_b32 s{S_J4K}, s{S_T1}, 12")
    e(f"s_lshl_b32 s{S_WQR}, s{S_T1}, 15")
    e(f"s_lshl_b32 s{S_WQL}, s{S_T1}, 11")
    e(f"s_add_u32 s{S_WQL}, s{S_WQL}, {WQ0}")
    e(f"s_lshl_b32 s{S_T0}, s{S_B}, 4")
    e(f"s_add_u32 s{S_T0}, s{S_T0}, s{S_HKV}")
    e(f"s_lshl_b32 s{S_T0}, s{S_T0}, 18")
    e(f"s_add_u32 s{SRD_K}, s{S_K}, s{S_T0}")
    e(f"s_addc_u32 s{SRD_K+1}, s{S_K+1}, 0")
    e(f"s_mov_b32 s{SRD_K+2}, 0x40000")
    e(f"s_mov_b32 s{SRD_K+3}, 0x20000")
    e(f"s_add_u32 s{SRD_V}, s{S_V}, s{S_T0}")
    e(f"s_addc_u32 s{SRD_V+1}, s{S_V+1}, 0")
    e(f"s_mov_b32 s{SRD_V+2}, 0x40000")
    e(f"s_mov_b32 s{SRD_V+3}, 0x20000")
    e(f"s_mul_i32 s{S_T0}, s{S_B}, 73728")
    e(f"s_add_u32 s{SRD_X}, s{S_X}, s{S_T0}")
    e(f"s_addc_u32 s{SRD_X+1}, s{S_X+1}, 0")
    e(f"s_mov_b32 s{SRD_X+2}, 73728")
    e(f"s_mov_b32 s{SRD_X+3}, 0x20000")
    V_XD = 11
    S_XL = 55
    e(f"s_lshl_b32 s{S_XL}, s{S_T1}, 10")
    e(f"s_add_u32 s{S_XL}, s{S_XL}, {WQ0+16384}")
    e(f"s_lshl_b32 s{S_T0}, s{S_T1}, 4")
    e(f"v_lshrrev_b32 {T0}, 2, {L}")
    e(f"v_add_u32 {T0}, s{S_T0}, {T0}")
    e(f"s_movk_i32 s{S_T0}, 1152")
    e(f"v_mul_lo_u32 {T0}, {T0}, s{S_T0}")
    e(f"v_and_b32 {T1}, 3, {L}")
    e(f"v_bfe_u32 {T2}, {L}, 4, 2")
    e(f"v_xor_b32 {T1}, {T1}, {T2}")
    e(f"v_lshl_add_u32 v{V_XD}, {T1}, 4, {T0}")
    def x_dma(c):
        rot18(e, S_XOFF, None, c, S_B, S_T0)
        e(f"s_lshl_b32 s{S_XOFF}, s{S_XOFF}, 6")
        e(f"s_add_u32 m0, s{S_XL}, {wslot(c)*WSL}")
        e("s_nop 0")
        e(f"buffer_load_dwordx4 v{V_XD}, {sr(SRD_X,4)}, s{S_XOFF} offen lds")
    for c in range(WAH):
        x_dma(c)
        wq_dma(None, c, 2)
    e(f"v_lshrrev_b32 {T0}, 4, {L}")
    e(f"v_and_b32 {T1}, 15, {L}")
    e(f"v_lshlrev_b32 {T2}, 8, {T0}")
    e(f"v_lshlrev_b32 {T3}, 2, {T0}")
    e(f"v_xor_b32 {T3}, {T1}, {T3}")
    e(f"v_lshl_add_u32 v{V_D+4}, {T3}, 4, {T2}")
    e(f"v_xor_b32 {T1}, {T1}, {T0}")
    for i in range(4):
        e(f"v_xor_b32 {T3}, {4*i}, {T1}")
        e(f"v_lshl_add_u32 v{V_D+i}, {T3}, 4, {T2}")
    def tile_issue():
        e(f"s_add_u32 s{S_SOFF}, s{S_ROT}, s{S_T2}")
        e(f"s_and_b32 s{S_SOFF}, s{S_SOFF}, 15")
        e(f"s_lshl_b32 s{S_SOFF}, s{S_SOFF}, 14")
        e(f"s_add_u32 s{S_SOFF}, s{S_SOFF}, s{S_J4K}")
        e(f"s_and_b32 s{S_STG}, s{S_T2}, 3")
        e(f"s_lshl_b32 s{S_STG}, s{S_STG}, 15")
        e(f"s_add_u32 m0, s{S_STG}, s{S_J4K}")
        e(f"s_add_u32 s{S_STG}, m0, 16384")
        for i in range(4):
            e(f"buffer_load_dwordx4 v{V_D+i}, {sr(SRD_K,4)}, s{S_SOFF} offen offset:{i*1024}{NT_KV} lds")
        e(f"s_mov_b32 m0, s{S_STG}")
        e("s_nop 0")
        for i in range(4):
            e(f"buffer_load_dwordx4 v{V_D+4}, {sr(SRD_V,4)}, s{S_SOFF} offen offset:{i*1024}{NT_KV} lds")
    e(f"s_mov_b32 s{S_T2}, 0")
    tile_issue()
    for c in range(NCH):
        n_after = min(NCH - 1, c + WAH - 1) - c
        e(f"s_waitcnt vmcnt({3*n_after + (8 if c < WAH else 0) + (5 if c >= NCH-WAH else 0)})")
        e("s_barrier")
        if c + WAH < NCH:
            x_dma(c + WAH)
            wq_dma(None, c + WAH, 2)
        if c == NCH-WAH-1:
            e("s_mov_b32 s76, s12")
            e("s_mov_b32 s77, s13")
            e(f"s_mov_b32 s78, {4096*1152}")
            e("s_mov_b32 s79, 0x20000")
            e(f"s_mul_i32 s{S_T0}, s2, 18432")
            e(f"s_mul_i32 s{S_SOFF}, s{S_WAVE}, 5120")
            e(f"s_add_u32 s{S_T0}, s{S_T0}, s{S_SOFF}")
            e(f"s_sub_u32 s{S_T0}, s{S_T0}, {8*5120}")
            e(f"v_lshlrev_b32 v12, 4, {L}")
            e(f"v_add_u32 v12, s{S_T0}, v12")
            e(f"v_add_u32 v13, 4096, v12")
            for k in range(4):
                e(f"buffer_load_dwordx4 v[{20+4*k}:{23+4*k}], v12, s[76:79], 0 offen offset:{k*1024}")
            e(f"buffer_load_dwordx4 v[36:39], v13, s[76:79], 0 offen")
    e("s_barrier")
    e(f"s_mov_b32 s{S_T2}, 1")
    e.label("attn_ldpro")
    tile_issue()
    e(f"s_add_u32 s{S_T2}, s{S_T2}, 1")
    e(f"s_cmp_lt_u32 s{S_T2}, 3")
    e("s_cbranch_scc1 attn_ldpro")
    e(f"s_mov_b32 s{S_CNT}, 0")
    e.label("attn_ldloop")
    e(f"s_cmp_lt_u32 s{S_CNT}, 14")
    e("s_cbranch_scc1 attn_ldw32")
    e(f"s_cmp_eq_u32 s{S_CNT}, 14")
    e("s_cbranch_scc1 attn_ldw16")
    e("s_waitcnt vmcnt(0)")
    e("s_branch attn_ldw")
    e.label("attn_ldw16")
    e("s_waitcnt vmcnt(8)")
    e("s_branch attn_ldw")
    e.label("attn_ldw32")
    e("s_waitcnt vmcnt(16)")
    e.label("attn_ldw")
    e("s_barrier")
    e(f"s_add_u32 s{S_T2}, s{S_CNT}, 3")
    e(f"s_cmp_ge_u32 s{S_T2}, 16")
    e("s_cbranch_scc1 attn_ldskip")
    tile_issue()
    e.label("attn_ldskip")
    e(f"s_add_u32 s{S_CNT}, s{S_CNT}, 1")
    e(f"s_cmp_lt_u32 s{S_CNT}, 16")
    e("s_cbranch_scc1 attn_ldloop")
    e("s_barrier")
    e("s_barrier")
    e.label("attn_end")
    e("s_endpgm")

def gen_oproj(e):
    name = "oproj_kernel"
    e.raw(f".globl {name}")
    e.raw(".p2align 8")
    e.raw(f".type {name},@function")
    e.label(name)
    SRD_O, SRD_W, SRD_OUT = 20, 24, 28
    S_WAVE, S_MB, S_NB, S_T0, S_T1, S_SOFF, S_KO, S_CNT, S_OOFF = 40, 41, 42, 43, 44, 46, 47, 49, 50
    V_LANE = 1
    V_T0, V_T1, V_T2, V_T3 = 2, 3, 4, 5
    V_WD = 6
    V_WA = 8
    V_OA = 10
    V_OUT = 13
    V_AF = 16
    V_ACC = 64
    V_BF = 128
    NS = 4
    AHEAD = 3
    NCH = 16
    L = f"v{V_LANE}"
    T0, T1, T2, T3 = (f"v{x}" for x in (V_T0, V_T1, V_T2, V_T3))
    e("s_cmp_ge_u32 s2, 144")
    e("s_cbranch_scc1 oproj_end")
    e("s_load_dwordx4 s[4:7], s[0:1], 32")
    e("s_load_dwordx2 s[16:17], s[0:1], 56")
    stamp(e, 0)
    e(f"v_and_b32 {L}, 63, v0")
    e(f"v_lshrrev_b32 v2, 6, v0")
    e("s_nop 0")
    e(f"v_readfirstlane_b32 s{S_WAVE}, v2")
    e(f"s_and_b32 s{S_MB}, s2, 15")
    e(f"s_lshr_b32 s{S_NB}, s2, 4")
    e("s_waitcnt lgkmcnt(0)")
    e(f"s_mov_b32 s{SRD_O}, s16")
    e(f"s_mov_b32 s{SRD_O+1}, s17")
    e(f"s_mov_b32 s{SRD_O+2}, 0x800000")
    e(f"s_mov_b32 s{SRD_O+3}, 0x20000")
    e(f"s_mov_b32 s{SRD_W}, s4")
    e(f"s_mov_b32 s{SRD_W+1}, s5")
    e(f"s_mov_b32 s{SRD_W+2}, {4096*1152}")
    e(f"s_mov_b32 s{SRD_W+3}, 0x20000")
    e(f"s_mov_b32 s{SRD_OUT}, s6")
    e(f"s_mov_b32 s{SRD_OUT+1}, s7")
    e(f"s_mov_b32 s{SRD_OUT+2}, {1024*1152}")
    e(f"s_mov_b32 s{SRD_OUT+3}, 0x20000")
    e(f"v_lshrrev_b32 {T0}, 3, {L}")
    e(f"s_movk_i32 s{S_T0}, 1152")
    e(f"v_mul_lo_u32 {T0}, {T0}, s{S_T0}")
    e(f"v_and_b32 {T1}, 7, {L}")
    e(f"v_bfe_u32 {T2}, {L}, 4, 1")
    e(f"v_lshlrev_b32 {T2}, 2, {T2}")
    e(f"v_xor_b32 {T1}, {T1}, {T2}")
    e(f"v_lshl_add_u32 v{V_WD}, {T1}, 4, {T0}")
    e(f"s_mul_i32 s{S_KO}, s{S_WAVE}, {512*1152}")
    e(f"s_lshl_b32 s{S_T0}, s{S_NB}, 7")
    e(f"s_add_u32 s{S_KO}, s{S_KO}, s{S_T0}")
    e(f"s_lshl_b32 s{S_T0}, s{S_MB}, 19")
    e(f"s_lshl_b32 s{S_T1}, s{S_WAVE}, 15")
    e(f"s_add_u32 s{S_T0}, s{S_T0}, s{S_T1}")
    e(f"v_lshlrev_b32 {T0}, 4, {L}")
    e(f"v_add_u32 v{V_OA}, s{S_T0}, {T0}")
    e(f"v_add_u32 v{V_OA+1}, 0x40000, v{V_OA}")
    S_M0W = 48
    e(f"s_lshl_b32 s{S_M0W}, s{S_WAVE}, 14")
    e(f"s_mov_b32 s{S_SOFF}, s{S_KO}")
    e(f"s_mov_b32 s{S_OOFF}, 0")
    def issue(slot):
        for j in range(4):
            e(f"s_add_u32 m0, s{S_M0W}, {slot*4096 + j*1024}")
            e("s_nop 0")
            e(f"buffer_load_dwordx4 v{V_WD}, {sr(SRD_W,4)}, s{S_SOFF} offen{NT_W} lds")
            e(f"s_add_u32 s{S_SOFF}, s{S_SOFF}, {8*1152}")
        for mb2 in range(2):
            for st in range(2):
                f = V_BF + 16*slot + 8*mb2 + 4*st
                e(f"buffer_load_dwordx4 {vr(f,4)}, v{V_OA+mb2}, {sr(SRD_O,4)}, s{S_OOFF} offen offset:{st*1024}{NT_W}")
        e(f"s_add_u32 s{S_OOFF}, s{S_OOFF}, 2048")
    for c in range(AHEAD):
        issue(c)
    e(f"v_lshrrev_b32 {T0}, 5, {L}")
    e(f"v_bfe_u32 {T1}, {L}, 2, 2")
    e(f"v_lshl_add_u32 {T2}, {T0}, 3, {T1}")
    e(f"v_lshlrev_b32 {T2}, 7, {T2}")
    e(f"v_bfe_u32 {T0}, {L}, 4, 1")
    e(f"v_bfe_u32 {T3}, {L}, 1, 1")
    e(f"v_lshl_add_u32 {T0}, {T0}, 1, {T3}")
    e(f"v_lshl_add_u32 {T2}, {T0}, 4, {T2}")
    e(f"v_and_b32 {T3}, 1, {L}")
    e(f"v_lshl_add_u32 {T2}, {T3}, 3, {T2}")
    e(f"v_add_u32 {T2}, s{S_M0W}, {T2}")
    e(f"v_bfe_u32 {T1}, {L}, 3, 1")
    for nb2 in range(2):
        e(f"v_xor_b32 {T3}, {nb2}, {T1}")
        e(f"v_lshl_add_u32 v{V_WA+nb2}, {T3}, 6, {T2}")
    for i in range(64):
        e(f"v_mov_b32 v{V_ACC+i}, 0")
    def rda(slot, par):
        ab = V_AF + 16*par
        for nb2 in range(2):
            for st in range(2):
                for u in range(2):
                    e(f"ds_read_b64_tr_b16 {vr(ab+8*nb2+4*st+2*u,2)}, v{V_WA+nb2} offset:{slot*4096 + (st*16+4*u)*128}")
    stamp(e, 1)
    e(f"s_waitcnt vmcnt({8*(AHEAD-1)})")
    rda(0, 0)
    def body(c, cmod):
        slot = cmod % NS
        par = cmod % 2
        e("s_waitcnt lgkmcnt(0)")
        if c + AHEAD < NCH:
            issue((slot + AHEAD) % NS)
        if c + 1 < NCH:
            n_after = min(NCH - 1, c + AHEAD) - (c + 1)
            e(f"s_waitcnt vmcnt({8*n_after})")
            rda((slot + 1) % NS, 1 - par)
        ab = V_AF + 16*par
        for st in range(2):
            for nb2 in range(2):
                for mb2 in range(2):
                    acc = vr(V_ACC + 32*nb2 + 16*mb2, 16)
                    e(f"v_mfma_f32_32x32x16_bf16 {acc}, {vr(ab+8*nb2+4*st,4)}, {vr(V_BF+16*slot+8*mb2+4*st,4)}, {acc}")
    e(f"s_mov_b32 s{S_CNT}, 0")
    e.label("oproj_loop")
    for cm in range(4):
        body(cm, cm)
    e(f"s_add_u32 s{S_CNT}, s{S_CNT}, 1")
    e(f"s_cmp_lt_u32 s{S_CNT}, 3")
    e("s_cbranch_scc1 oproj_loop")
    stamp(e, 2)
    for c in range(12, 16):
        body(c, c)
    stamp(e, 3)
    e.nop(16)
    e("s_barrier")
    e(f"v_lshlrev_b32 {T0}, 4, {L}")
    e(f"v_add_u32 {T1}, s{S_M0W}, {T0}")
    for i in range(16):
        e(f"ds_write_b128 {T1}, {vr(V_ACC+4*i,4)} offset:{i*1024}")
    e("s_waitcnt lgkmcnt(0)")
    e("s_barrier")
    e(f"s_lshl_b32 s{S_T0}, s{S_WAVE}, 11")
    e(f"v_add_u32 {T1}, s{S_T0}, {T0}")
    e(f"v_add_u32 {T2}, 0x10000, {T1}")
    for w in range(8):
        for i in range(2):
            e(f"ds_read_b128 {vr(V_BF+8*w+4*i,4)}, {T1 if w < 4 else T2} offset:{(w%4)*16384 + i*1024}")
    e("s_waitcnt lgkmcnt(0)")
    for stp in (4, 2, 1):
        for w in range(stp):
            for i in range(0, 8, 2):
                e(f"v_pk_add_f32 {vr(V_BF+8*w+i,2)}, {vr(V_BF+8*w+i,2)}, {vr(V_BF+8*(w+stp)+i,2)}")
    e(f"s_lshl_b32 s{S_T0}, s{S_MB}, 6")
    e(f"s_bfe_u32 s{S_T1}, s{S_WAVE}, 0x10001")
    e(f"s_lshl_b32 s{S_T1}, s{S_T1}, 5")
    e(f"s_add_u32 s{S_T0}, s{S_T0}, s{S_T1}")
    e(f"v_and_b32 {T0}, 31, {L}")
    e(f"v_add_u32 {T0}, s{S_T0}, {T0}")
    e(f"s_movk_i32 s{S_T1}, 1152")
    e(f"v_mul_lo_u32 {T0}, {T0}, s{S_T1}")
    e(f"s_lshl_b32 s{S_T0}, s{S_NB}, 7")
    e(f"s_lshr_b32 s{S_T1}, s{S_WAVE}, 2")
    e(f"s_lshl_b32 s{S_T1}, s{S_T1}, 6")
    e(f"s_add_u32 s{S_T0}, s{S_T0}, s{S_T1}")
    e(f"s_and_b32 s{S_T1}, s{S_WAVE}, 1")
    e(f"s_lshl_b32 s{S_T1}, s{S_T1}, 5")
    e(f"s_add_u32 s{S_T0}, s{S_T0}, s{S_T1}")
    e(f"v_add_u32 {T0}, s{S_T0}, {T0}")
    e(f"v_lshrrev_b32 {T1}, 5, {L}")
    e(f"v_lshl_add_u32 v{V_OUT}, {T1}, 4, {T0}")
    q = V_AF
    for j in range(4):
        e(f"v_cvt_pk_bf16_f32 v{q+j}, v{V_BF+2*j}, v{V_BF+2*j+1}")
    e("s_nop 1")
    e(f"v_permlane32_swap_b32 v{q}, v{q+2}")
    e(f"v_permlane32_swap_b32 v{q+1}, v{q+3}")
    e("s_nop 1")
    e(f"buffer_store_dwordx4 {vr(q,4)}, v{V_OUT}, {sr(SRD_OUT,4)}, 0 offen")
    if STAMP:
        e("s_waitcnt vmcnt(0)")
    stamp(e, 4)
    stamp_flush(e, 5, S_WAVE, "o")
    e.label("oproj_end")
    e("s_endpgm")

def desc(name, nfv, acc, sgpr=102):
    return f""".amdhsa_kernel {name}
  .amdhsa_next_free_vgpr {nfv}
  .amdhsa_next_free_sgpr {sgpr}
  .amdhsa_accum_offset {acc}
  .amdhsa_group_segment_fixed_size 0
  .amdhsa_kernarg_size 64
  .amdhsa_user_sgpr_count 2
  .amdhsa_user_sgpr_kernarg_segment_ptr 1
  .amdhsa_system_sgpr_workgroup_id_x 1
.end_amdhsa_kernel
"""

def main():
    hdr = open("standalone__gqa_block_cached__near_ridge.s.ref").read().split("; Override launch")[0]
    e = Em()
    gen_attn(e)
    gen_oproj(e)
    out = hdr
    out += "; @launch kernel=attn_kernel grid=(256,1,1) block=(768,1,1) lds=163840\n"
    out += "; @launch kernel=oproj_kernel grid=(144,1,1) block=(512,1,1) lds=131072\n"
    out += '.amdgcn_target "amdgcn-amd-amdhsa--gfx950"\n.text\n'
    out += e.text()
    out += '.section .rodata,"a"\n.p2align 6\n'
    out += desc("attn_kernel", 168, 168)
    out += ".p2align 6\n"
    out += desc("oproj_kernel", 192, 192)
    path = sys.argv[1] if len(sys.argv) > 1 else "standalone__gqa_block_cached__near_ridge.s"
    open(path, "w").write(out)

main()
```

```python
import sys, struct

class Em:
    def __init__(self):
        self.lines = []
    def __call__(self, s):
        self.lines.append("    " + s)
    def label(self, s):
        self.lines.append(s + ":")
    def raw(self, s):
        self.lines.append(s)
    def nop(self, n):
        while n > 0:
            k = min(n, 16)
            self(f"s_nop {k-1}")
            n -= k
    def text(self):
        return "\n".join(self.lines) + "\n"

def vr(b, n=1):
    return f"v{b}" if n == 1 else f"v[{b}:{b+n-1}]"
def sr(b, n=1):
    return f"s{b}" if n == 1 else f"s[{b}:{b+n-1}]"
def f32hex(x):
    return "0x%08x" % struct.unpack("<I", struct.pack("<f", x))[0]

LOG2E = 1.4426950408889634
SCALE = 128 ** -0.5
OPT = sys.argv[2] if len(sys.argv) > 2 else ""
STAMP = "stamp" in OPT
NT_KV = " nt"
NT_W = " nt" if "ntw" in OPT else ""

def stamp(e, idx):
    if not STAMP: return
    e("s_memtime s[60:61]")
    e("s_waitcnt lgkmcnt(0)")
    e(f"s_mov_b32 s{62+idx}, s60")

def stamp_flush(e, n, wavereg, tag):
    if not STAMP: return
    e("s_load_dwordx2 s[56:57], s[0:1], 48")
    e("s_waitcnt lgkmcnt(0)")
    e("s_mov_b32 s52, s56")
    e("s_mov_b32 s53, s57")
    e("s_mov_b32 s54, 256")
    e("s_mov_b32 s55, 0x20000")
    e("s_cmp_lg_u32 s2, 5")
    e(f"s_cbranch_scc1 stamp_skip_{tag}")
    e(f"s_lshl_b32 s58, s{wavereg}, 5")
    for i in range(n):
        e(f"s_sub_u32 s59, s{62+i}, s62")
        e("v_mov_b32 v2, s59")
        e(f"v_mov_b32 v3, s58")
        e(f"buffer_store_dword v2, v3, s[52:55], 0 offen offset:{4*i}")
    e.label(f"stamp_skip_{tag}")

def rot18(e, dst, base_sgpr, add_const, rot_sgpr, tmp):
    if base_sgpr is None:
        e(f"s_add_u32 s{dst}, s{rot_sgpr}, {add_const}")
    else:
        e(f"s_add_u32 s{dst}, s{base_sgpr}, {add_const}")
        e(f"s_add_u32 s{dst}, s{dst}, s{rot_sgpr}")
    e(f"s_sub_u32 s{tmp}, s{dst}, 18")
    e(f"s_cmp_ge_u32 s{dst}, 18")
    e(f"s_cselect_b32 s{dst}, s{tmp}, s{dst}")

def gen_attn(e):
    name = "attn_kernel"
    e.raw(f".globl {name}")
    e.raw(".p2align 8")
    e.raw(f".type {name},@function")
    e.label(name)
    S_X, S_K, S_V, S_WQ, S_WS = 4, 6, 8, 10, 16
    SRD_K, SRD_X, SRD_WQ, SRD_O = 20, 28, 32, 36
    S_WAVE, S_HKV, S_B = 40, 41, 42
    S_T0, S_T1, S_T2, S_SOFF, S_C = 43, 44, 45, 46, 47
    S_CNT, S_STG, S_ROT, S_XOFF, S_QB, S_KH = 48, 49, 50, 51, 72, 73
    V_LANE = 1
    V_T0, V_T1, V_T2, V_T3 = 2, 3, 4, 5
    V_KW = 6
    V_VW = 14
    V_M, V_L = 18, 19
    V_AL2 = 20
    V_OO = 22
    V_XO = 23
    V_WA = 6
    V_D = 6
    V_O = 24
    V_S = 88
    V_Q = 104
    V_F = 136
    V_P = 160
    XSL = [V_O+32, V_O+40, V_O+48, V_O+56, V_S, V_S+8, V_Q, V_Q+8]
    STAGE = 32768
    WQ0 = 32768
    WNS = 6
    WAH = 5
    WSL = 20480
    def wslot(c): return (c + 2) % WNS
    QX0 = 131072
    NCH = 18

    e("s_cmp_ge_u32 s2, 256")
    e("s_cbranch_scc1 attn_end")
    e("s_load_dwordx4 s[4:7], s[0:1], 0")
    e("s_load_dwordx4 s[8:11], s[0:1], 16")
    e("s_load_dwordx2 s[16:17], s[0:1], 56")
    e("s_load_dwordx2 s[12:13], s[0:1], 32")
    stamp(e, 0)
    e(f"v_and_b32 v{V_LANE}, 63, v0")
    e(f"v_lshrrev_b32 v2, 6, v0")
    e("s_nop 0")
    e(f"v_readfirstlane_b32 s{S_WAVE}, v2")
    e(f"s_and_b32 s{S_HKV}, s2, 15")
    e(f"s_lshr_b32 s{S_B}, s2, 4")
    e(f"s_add_u32 s{S_ROT}, s{S_HKV}, s{S_B}")
    L = f"v{V_LANE}"
    T0, T1, T2, T3 = (f"v{x}" for x in (V_T0, V_T1, V_T2, V_T3))
    e("s_waitcnt lgkmcnt(0)")
    e(f"s_lshl_b32 s{S_T0}, s{S_HKV}, 9")
    e(f"s_add_u32 s{SRD_WQ}, s{S_WQ}, s{S_T0}")
    e(f"s_addc_u32 s{SRD_WQ+1}, s{S_WQ+1}, 0")
    e(f"s_sub_u32 s{SRD_WQ+2}, {576*8192}, s{S_T0}")
    e(f"s_mov_b32 s{SRD_WQ+3}, 0x20000")
    V_WD = 166
    e(f"v_lshrrev_b32 {T0}, 5, {L}")
    e(f"v_and_b32 {T1}, 31, {L}")
    e(f"v_lshlrev_b32 {T2}, 13, {T0}")
    for odd in range(2):
        e(f"v_add_u32 {T3}, {2*odd}, {T0}")
        e(f"v_lshlrev_b32 {T3}, 2, {T3}")
        e(f"v_xor_b32 {T3}, {T3}, {T1}")
        e(f"v_lshl_add_u32 v{V_WD+odd}, {T3}, 4, {T2}")
    S_WQR, S_WQL = 52, 53
    def wq_dma(chunk_sgpr, chunk_const, n_instr):
        rot18(e, S_SOFF, chunk_sgpr, chunk_const, S_B, S_T0)
        e(f"s_lshl_b32 s{S_SOFF}, s{S_SOFF}, 18")
        e(f"s_add_u32 s{S_SOFF}, s{S_SOFF}, s{S_WQR}")
        if chunk_sgpr is None:
            e(f"s_add_u32 m0, s{S_WQL}, {wslot(chunk_const)*WSL}")
        else:
            e(f"s_add_u32 s{S_STG}, s{chunk_sgpr}, {chunk_const}")
            e(f"s_and_b32 s{S_STG}, s{S_STG}, 7")
            e(f"s_lshl_b32 s{S_STG}, s{S_STG}, 14")
            e(f"s_add_u32 m0, s{S_STG}, s{S_WQL}")
        e("s_nop 0")
        e(f"buffer_load_dwordx4 v{V_WD}, {sr(SRD_WQ,4)}, s{S_SOFF} offen lds")
        if n_instr == 2:
            e(f"s_add_u32 s{S_SOFF}, s{S_SOFF}, {16384-1024}")
            e(f"buffer_load_dwordx4 v{V_WD+1}, {sr(SRD_WQ,4)}, s{S_SOFF} offen offset:1024 lds")
    e(f"s_cmp_ge_u32 s{S_WAVE}, 8")
    e("s_cbranch_scc1 attn_loader")
    e(f"s_add_u32 s{S_T0}, s{S_WAVE}, 8")
    e(f"s_lshl_b32 s{S_WQR}, s{S_T0}, 14")
    e(f"s_lshl_b32 s{S_WQL}, s{S_T0}, 10")
    e(f"s_add_u32 s{S_WQL}, s{S_WQL}, {WQ0}")
    e(f"s_and_b32 s{S_T0}, s{S_WAVE}, 1")
    e(f"s_cmp_eq_u32 s{S_T0}, 0")
    e("s_cbranch_scc1 attn_weven")
    e(f"v_mov_b32 v{V_WD}, v{V_WD+1}")
    e.label("attn_weven")

    e(f"s_and_b32 s{S_QB}, s{S_WAVE}, 3")
    e(f"s_lshr_b32 s{S_KH}, s{S_WAVE}, 2")
    e(f"s_mul_i32 s{S_T0}, s{S_B}, 73728")
    e(f"s_add_u32 s{SRD_X}, s{S_X}, s{S_T0}")
    e(f"s_addc_u32 s{SRD_X+1}, s{S_X+1}, 0")
    e(f"s_mov_b32 s{SRD_X+2}, 73728")
    e(f"s_mov_b32 s{SRD_X+3}, 0x20000")
    e(f"s_mov_b32 s{SRD_O}, s{S_WS}")
    e(f"s_mov_b32 s{SRD_O+1}, s{S_WS+1}")
    e(f"s_mov_b32 s{SRD_O+2}, 0x800000")
    e(f"s_mov_b32 s{SRD_O+3}, 0x20000")
    e(f"s_and_b32 s{S_T0}, s{S_QB}, 1")
    e(f"s_lshl_b32 s{S_T0}, s{S_T0}, 5")
    e(f"v_and_b32 {T0}, 31, {L}")
    e(f"v_add_u32 {T0}, s{S_T0}, {T0}")
    e(f"v_lshlrev_b32 {T0}, 6, {T0}")
    e(f"v_add_u32 {T0}, {WQ0+16384}, {T0}")
    e(f"v_lshrrev_b32 {T1}, 5, {L}")
    e(f"v_bfe_u32 {T2}, {L}, 2, 2")
    e(f"v_xor_b32 {T1}, {T1}, {T2}")
    V_XA = V_S
    for ks in range(2):
        e(f"v_xor_b32 {T2}, {2*ks}, {T1}")
        e(f"v_lshl_add_u32 v{V_XA+ks}, {T2}, 4, {T0}")
        e(f"v_add_u32 v{V_XA+2+ks}, {3*WSL}, v{V_XA+ks}")
    for c in range(WAH):
        wq_dma(None, c, 1)
    e(f"v_lshrrev_b32 {T0}, 5, {L}")
    e(f"v_bfe_u32 {T1}, {L}, 2, 2")
    e(f"v_lshl_add_u32 {T2}, {T0}, 3, {T1}")
    e(f"v_lshlrev_b32 {T2}, 9, {T2}")
    e(f"v_bfe_u32 {T0}, {L}, 4, 1")
    e(f"v_bfe_u32 {T3}, {L}, 1, 1")
    e(f"v_lshl_add_u32 {T0}, {T0}, 1, {T3}")
    e(f"v_lshl_add_u32 {T2}, {T0}, 4, {T2}")
    e(f"v_and_b32 {T3}, 1, {L}")
    e(f"v_lshl_add_u32 {T2}, {T3}, 3, {T2}")
    e(f"v_add_u32 {T2}, {WQ0}, {T2}")
    e(f"s_lshr_b32 s{S_T0}, s{S_QB}, 1")
    e(f"s_lshl_b32 s{S_T0}, s{S_T0}, 2")
    e(f"s_lshl_b32 s{S_T1}, s{S_KH}, 1")
    e(f"s_add_u32 s{S_T0}, s{S_T0}, s{S_T1}")
    for d2 in range(2):
        e(f"s_add_u32 s{S_T1}, s{S_T0}, {d2}")
        e(f"v_xor_b32 {T3}, s{S_T1}, {T1}")
        e(f"v_lshl_add_u32 v{V_WA+d2}, {T3}, 6, {T2}")
    e(f"s_and_b32 s{S_T0}, s{S_QB}, 1")
    e(f"s_lshl_b32 s{S_T1}, s{S_B}, 1")
    e(f"s_add_u32 s{S_T0}, s{S_T0}, s{S_T1}")
    e(f"s_lshl_b32 s{S_T0}, s{S_T0}, 18")
    e(f"s_lshl_b32 s{S_T1}, s{S_HKV}, 1")
    e(f"s_lshr_b32 s{S_T2}, s{S_QB}, 1")
    e(f"s_add_u32 s{S_T1}, s{S_T1}, s{S_T2}")
    e(f"s_lshl_b32 s{S_T1}, s{S_T1}, 13")
    e(f"s_add_u32 s{S_T0}, s{S_T0}, s{S_T1}")
    e(f"v_lshlrev_b32 {T0}, 4, {L}")
    e(f"v_add_u32 v{V_OO}, s{S_T0}, {T0}")
    for i in range(32):
        e(f"v_mov_b32 v{V_O+i}, 0")

    def qchunk(c, issue_next, wait_n):
        slot = wslot(c)
        e(f"s_waitcnt vmcnt({wait_n})")
        e("s_barrier")
        seq = [(ks, d2) for ks in range(2) for d2 in range(2)]
        hi = slot >= 3
        xs = XSL[c % 2]
        for ks in range(2):
            e(f"ds_read_b128 {vr(xs+4*ks,4)}, v{V_XA+ks+(2 if hi else 0)} offset:{(slot%3)*WSL}")
        for idx, (ks, d2) in enumerate(seq):
            f = V_F + 4*idx
            for u in range(2):
                e(f"ds_read_b64_tr_b16 {vr(f+2*u,2)}, v{V_WA+d2+(2 if hi else 0)} offset:{(slot%3)*WSL + (ks*16+4*u)*512}")
        if issue_next:
            wq_dma(None, c+WAH, 1)
        for idx, (ks, d2) in enumerate(seq):
            f = V_F + 4*idx
            e(f"s_waitcnt lgkmcnt({2*(3-idx)})")
            acc = vr(V_O + 16*d2, 16)
            e(f"v_mfma_f32_32x32x16_bf16 {acc}, {vr(f,4)}, {vr(xs+4*ks,4)}, {acc}")
    for d2 in range(2):
        e(f"v_add_u32 v{V_WA+2+d2}, {3*WSL}, v{V_WA+d2}")
    e(f"s_mov_b32 s{S_CNT}, 0")
    for c in range(NCH):
        if c == 8:
            e(f"s_mov_b32 s{S_CNT}, 8")
        if c == 16:
            e(f"s_mov_b32 s{S_CNT}, 16")
        n_after = min(NCH - 1, c + WAH - 1) - c
        if c == 0: stamp(e, 4)
        qchunk(c, c + WAH < NCH, n_after)
        if c in (0, 1, 9): stamp(e, {0:5, 1:6, 9:7}[c])
    stamp(e, 1)
    e.nop(16)
    e(f"s_lshl_b32 s{S_T0}, s{S_QB}, 13")
    e(f"s_add_u32 s{S_T0}, s{S_T0}, {QX0}")
    e(f"v_lshlrev_b32 {T0}, 4, {L}")
    e(f"v_add_u32 {T0}, s{S_T0}, {T0}")
    e(f"s_lshl_b32 s{S_T1}, s{S_KH}, 12")
    e(f"v_add_u32 {T1}, s{S_T1}, {T0}")
    for kl in range(4):
        d2, hf = kl // 2, kl % 2
        src = V_O + 16*d2 + 8*hf
        q = V_F + 4*kl
        for j in range(4):
            e(f"v_cvt_pk_bf16_f32 v{q+j}, v{src+2*j}, v{src+2*j+1}")
        e("s_nop 1")
        e(f"v_permlane32_swap_b32 v{q}, v{q+2}")
        e(f"v_permlane32_swap_b32 v{q+1}, v{q+3}")
        e("s_nop 1")
        e(f"ds_write_b128 {T1}, {vr(q,4)} offset:{kl*1024}")
    e("s_waitcnt lgkmcnt(0)")
    e("s_barrier")
    for ks in range(8):
        e(f"ds_read_b128 {vr(V_Q+4*ks,4)}, {T0} offset:{ks*1024}")
    e(f"v_lshrrev_b32 {T0}, 5, {L}")
    e(f"v_and_b32 {T1}, 15, {L}")
    e(f"v_xor_b32 {T0}, {T0}, {T1}")
    e(f"v_and_b32 {T1}, 31, {L}")
    e(f"v_lshlrev_b32 {T1}, 8, {T1}")
    e(f"s_lshl_b32 s{S_T0}, s{S_KH}, 13")
    e(f"v_add_u32 {T1}, s{S_T0}, {T1}")
    for ks in range(8):
        e(f"v_xor_b32 {T2}, {2*ks}, {T0}")
        e(f"v_lshl_add_u32 v{V_KW+ks}, {T2}, 4, {T1}")
    e(f"v_lshrrev_b32 {T0}, 5, {L}")
    e(f"v_bfe_u32 {T1}, {L}, 2, 2")
    e(f"v_lshl_add_u32 {T2}, {T0}, 2, {T1}")
    e(f"v_lshlrev_b32 {T2}, 8, {T2}")
    e(f"s_add_u32 s{S_T0}, s{S_T0}, 16384")
    e(f"v_add_u32 {T2}, s{S_T0}, {T2}")
    e(f"v_bfe_u32 {T0}, {L}, 4, 1")
    e(f"v_bfe_u32 {T3}, {L}, 1, 1")
    e(f"v_lshl_add_u32 {T0}, {T0}, 1, {T3}")
    e(f"v_lshl_add_u32 {T2}, {T0}, 4, {T2}")
    e(f"v_and_b32 {T3}, 1, {L}")
    e(f"v_lshl_add_u32 {T2}, {T3}, 3, {T2}")
    for db in range(4):
        e(f"v_xor_b32 {T3}, {db}, {T1}")
        e(f"v_lshl_add_u32 v{V_VW+db}, {T3}, 6, {T2}")
    e(f"v_mov_b32 v{V_M}, 0xff800000")
    e(f"v_mov_b32 v{V_L}, 0")
    for i in range(64):
        e(f"v_mov_b32 v{V_O+i}, 0")
    e(f"s_mov_b32 s{S_C}, {f32hex(SCALE*LOG2E)}")
    e(f"s_mov_b32 s{S_CNT}, 0")
    e(f"s_mov_b32 s{S_T2}, 0x1ffff")
    e("s_waitcnt lgkmcnt(0)")

    e.label("attn_loop")
    e("s_barrier")
    def rdk(ks):
        f = V_F + 4*(ks % 6)
        e(f"ds_read_b128 {vr(f,4)}, v{V_KW+ks}")
    for ks in range(6):
        rdk(ks)
    seqv = [(ks, db) for ks in range(2) for db in range(4)]
    def rdv(idx):
        ks, db = seqv[idx]
        f = V_F + 4*((8 + idx) % 6)
        for u in range(2):
            e(f"ds_read_b64_tr_b16 {vr(f+2*u,2)}, v{V_VW+db} offset:{ks*4096 + u*2048}")
    issued = 6
    for ks in range(8):
        f = V_F + 4*(ks % 6)
        later_k = max(0, min(8, issued) - ks - 1)
        later_v = max(0, issued - 8)
        e(f"s_waitcnt lgkmcnt({later_k + 2*later_v})")
        acc = vr(V_S, 16)
        cc = "0" if ks == 0 else acc
        e(f"v_mfma_f32_32x32x16_bf16 {acc}, {vr(f,4)}, {vr(V_Q+4*ks,4)}, {cc}")
        if issued < 8:
            rdk(issued)
        else:
            rdv(issued - 8)
        issued += 1
    for i in range(8):
        e(f"v_add_u32 v{V_KW+i}, 0x8000, v{V_KW+i}")
        e(f"v_and_b32 v{V_KW+i}, s{S_T2}, v{V_KW+i}")
    S = lambda i: f"v{V_S+i}"
    e(f"v_max3_f32 {T0}, {S(0)}, {S(1)}, {S(2)}")
    e(f"v_max3_f32 {T1}, {S(3)}, {S(4)}, {S(5)}")
    e(f"v_max3_f32 {T0}, {T0}, {S(6)}, {S(7)}")
    e(f"v_max3_f32 {T1}, {T1}, {S(8)}, {S(9)}")
    e(f"v_max3_f32 {T0}, {T0}, {S(10)}, {S(11)}")
    e(f"v_max3_f32 {T1}, {T1}, {S(12)}, {S(13)}")
    e(f"v_max3_f32 {T0}, {T0}, {S(14)}, {S(15)}")
    e(f"v_max_f32 {T0}, {T0}, {T1}")
    e(f"v_mov_b32 {T1}, {T0}")
    e("s_nop 1")
    e(f"v_permlane32_swap_b32 {T0}, {T1}")
    e("s_nop 1")
    e(f"v_max3_f32 {T0}, {T0}, {T1}, v{V_M}")
    e(f"v_cmp_neq_f32 vcc, {T0}, v{V_M}")
    e(f"v_sub_f32 {T1}, v{V_M}, {T0}")
    e(f"v_mul_f32 {T1}, s{S_C}, {T1}")
    e(f"v_exp_f32 v{V_AL2}, {T1}")
    e(f"v_mov_b32 v{V_M}, {T0}")
    e(f"v_mul_f32 {T0}, s{S_C}, {T0}")
    e(f"v_mov_b32 v{V_AL2+1}, v{V_AL2}")
    for i in range(16):
        e(f"v_fma_f32 {S(i)}, {S(i)}, s{S_C}, -{T0}")
    for i in range(16):
        e(f"v_exp_f32 {S(i)}, {S(i)}")
    e("s_cbranch_vccz attn_noresc")
    e(f"v_mul_f32 v{V_L}, v{V_L}, v{V_AL2}")
    for i in range(0, 64, 2):
        e(f"v_pk_mul_f32 {vr(V_O+i,2)}, {vr(V_O+i,2)}, {vr(V_AL2,2)}")
    e.label("attn_noresc")
    e(f"v_add_f32 {T1}, {S(0)}, {S(1)}")
    e(f"v_add_f32 {T2}, {S(2)}, {S(3)}")
    for i in range(4, 16, 2):
        tt = T1 if (i // 2) % 2 == 0 else T2
        e(f"v_add_f32 {tt}, {tt}, {S(i)}")
        e(f"v_add_f32 {tt}, {tt}, {S(i+1)}")
    e(f"v_add_f32 {T1}, {T1}, {T2}")
    e(f"v_add_f32 v{V_L}, v{V_L}, {T1}")
    for ks in range(2):
        for j in range(4):
            e(f"v_cvt_pk_bf16_f32 v{V_P+4*ks+j}, {S(8*ks+2*j)}, {S(8*ks+2*j+1)}")
    e("s_nop 1")
    for idx in range(8):
        ks, db = seqv[idx]
        f = V_F + 4*((8 + idx) % 6)
        later_v = max(0, (issued - 8) - idx - 1)
        e(f"s_waitcnt lgkmcnt({2*later_v})")
        acc = vr(V_O + 16*db, 16)
        e(f"v_mfma_f32_32x32x16_bf16 {acc}, {vr(f,4)}, {vr(V_P+4*ks,4)}, {acc}")
        if issued < 16:
            rdv(issued - 8)
            issued += 1
    for i in range(4):
        e(f"v_add_u32 v{V_VW+i}, 0x8000, v{V_VW+i}")
        e(f"v_and_b32 v{V_VW+i}, s{S_T2}, v{V_VW+i}")
    e(f"s_add_u32 s{S_CNT}, s{S_CNT}, 1")
    e(f"s_cmp_lt_u32 s{S_CNT}, 16")
    e("s_cbranch_scc1 attn_loop")
    stamp(e, 2)
    e.nop(16)
    e(f"v_mov_b32 {T0}, v{V_L}")
    e(f"v_mov_b32 {T1}, v{V_L}")
    e("s_nop 1")
    e(f"v_permlane32_swap_b32 {T0}, {T1}")
    e("s_nop 1")
    e(f"v_add_f32 v{V_L}, {T0}, {T1}")
    e("s_barrier")
    e(f"s_lshl_b32 s{S_T0}, s{S_QB}, 1")
    e(f"s_add_u32 s{S_T1}, s{S_T0}, s{S_KH}")
    e(f"s_xor_b32 s{S_T0}, s{S_T1}, 1")
    e(f"s_mul_i32 s{S_T1}, s{S_T1}, 8704")
    e(f"s_mul_i32 s{S_T0}, s{S_T0}, 8704")
    e(f"v_lshlrev_b32 {T0}, 4, {L}")
    e(f"v_lshlrev_b32 {T1}, 3, {L}")
    e(f"v_add_u32 {T2}, s{S_T1}, {T0}")
    e(f"v_add_u32 {T3}, s{S_T1}, {T1}")
    e(f"v_add_u32 {T0}, s{S_T0}, {T0}")
    e(f"v_add_u32 {T1}, s{S_T0}, {T1}")
    e(f"ds_write_b64 {T3}, {vr(V_M,2)} offset:8192")
    e(f"s_cmp_eq_u32 s{S_KH}, 0")
    e("s_cbranch_scc1 attn_merge0")
    def epi(keep, give, dbs):
        for i in range(8):
            e(f"ds_write_b128 {T2}, {vr(give+4*i,4)} offset:{i*1024}")
        e("s_waitcnt lgkmcnt(0)")
        e("s_barrier")
        e(f"ds_read_b64 {vr(V_P,2)}, {T1} offset:8192")
        for i in range(8):
            e(f"ds_read_b128 {vr(V_Q+4*i,4)}, {T0} offset:{i*1024}")
        e("s_waitcnt lgkmcnt(8)")
        e(f"v_max_f32 {T2}, v{V_M}, v{V_P}")
        e(f"v_sub_f32 {T3}, v{V_M}, {T2}")
        e(f"v_mul_f32 {T3}, s{S_C}, {T3}")
        e(f"v_exp_f32 v{V_AL2}, {T3}")
        e(f"v_sub_f32 {T3}, v{V_P}, {T2}")
        e(f"v_mul_f32 {T3}, s{S_C}, {T3}")
        e(f"v_exp_f32 v{V_P+2}, {T3}")
        e("s_nop 0")
        e(f"v_mul_f32 v{V_L}, v{V_L}, v{V_AL2}")
        e(f"v_fma_f32 v{V_L}, v{V_P+1}, v{V_P+2}, v{V_L}")
        e(f"v_rcp_f32 {T3}, v{V_L}")
        e("s_nop 0")
        e(f"v_mul_f32 v{V_AL2}, v{V_AL2}, {T3}")
        e(f"v_mul_f32 v{V_P+2}, v{V_P+2}, {T3}")
        e(f"v_mov_b32 v{V_AL2+1}, v{V_AL2}")
        e(f"v_mov_b32 v{V_P+3}, v{V_P+2}")
        e(f"s_movk_i32 s{S_T0}, {4096 if dbs[0] >= 2 else 0}")
        e("s_waitcnt lgkmcnt(0)")
        for i in range(0, 32, 2):
            o = keep + i
            e(f"v_pk_mul_f32 {vr(o,2)}, {vr(o,2)}, {vr(V_AL2,2)}")
            e(f"v_pk_fma_f32 {vr(o,2)}, {vr(V_Q+i,2)}, {vr(V_P+2,2)}, {vr(o,2)}")
        for db in dbs:
            for pr in range(2):
                src = V_O + 16*db + 8*pr
                q = V_F + 4*((2*db+pr) % 6)
                for j in range(4):
                    e(f"v_cvt_pk_bf16_f32 v{q+j}, v{src+2*j}, v{src+2*j+1}")
                e("s_nop 1")
                e(f"v_permlane32_swap_b32 v{q}, v{q+2}")
                e(f"v_permlane32_swap_b32 v{q+1}, v{q+3}")
                e("s_nop 1")
                e(f"buffer_store_dwordx4 {vr(q,4)}, v{V_OO}, {sr(SRD_O,4)}, s{S_T0} offen offset:{((2*db+pr)%4)*1024} sc0 sc1")
    epi(V_O+32, V_O, (2, 3))
    e("s_endpgm")
    e.label("attn_merge0")
    epi(V_O, V_O+32, (0, 1))
    if STAMP:
        e("s_waitcnt vmcnt(0)")
    stamp(e, 3)
    stamp_flush(e, 8, S_WAVE, "c")
    e("s_endpgm")

    e.label("attn_loader")
    SRD_V = 24
    S_J4K = 54
    e(f"s_sub_u32 s{S_T1}, s{S_WAVE}, 8")
    e(f"s_lshl_b32 s{S_J4K}, s{S_T1}, 12")
    e(f"s_lshl_b32 s{S_WQR}, s{S_T1}, 15")
    e(f"s_lshl_b32 s{S_WQL}, s{S_T1}, 11")
    e(f"s_add_u32 s{S_WQL}, s{S_WQL}, {WQ0}")
    e(f"s_lshl_b32 s{S_T0}, s{S_B}, 4")
    e(f"s_add_u32 s{S_T0}, s{S_T0}, s{S_HKV}")
    e(f"s_lshl_b32 s{S_T0}, s{S_T0}, 18")
    e(f"s_add_u32 s{SRD_K}, s{S_K}, s{S_T0}")
    e(f"s_addc_u32 s{SRD_K+1}, s{S_K+1}, 0")
    e(f"s_mov_b32 s{SRD_K+2}, 0x40000")
    e(f"s_mov_b32 s{SRD_K+3}, 0x20000")
    e(f"s_add_u32 s{SRD_V}, s{S_V}, s{S_T0}")
    e(f"s_addc_u32 s{SRD_V+1}, s{S_V+1}, 0")
    e(f"s_mov_b32 s{SRD_V+2}, 0x40000")
    e(f"s_mov_b32 s{SRD_V+3}, 0x20000")
    e(f"s_mul_i32 s{S_T0}, s{S_B}, 73728")
    e(f"s_add_u32 s{SRD_X}, s{S_X}, s{S_T0}")
    e(f"s_addc_u32 s{SRD_X+1}, s{S_X+1}, 0")
    e(f"s_mov_b32 s{SRD_X+2}, 73728")
    e(f"s_mov_b32 s{SRD_X+3}, 0x20000")
    V_XD = 11
    S_XL = 55
    e(f"s_lshl_b32 s{S_XL}, s{S_T1}, 10")
    e(f"s_add_u32 s{S_XL}, s{S_XL}, {WQ0+16384}")
    e(f"s_lshl_b32 s{S_T0}, s{S_T1}, 4")
    e(f"v_lshrrev_b32 {T0}, 2, {L}")
    e(f"v_add_u32 {T0}, s{S_T0}, {T0}")
    e(f"s_movk_i32 s{S_T0}, 1152")
    e(f"v_mul_lo_u32 {T0}, {T0}, s{S_T0}")
    e(f"v_and_b32 {T1}, 3, {L}")
    e(f"v_bfe_u32 {T2}, {L}, 4, 2")
    e(f"v_xor_b32 {T1}, {T1}, {T2}")
    e(f"v_lshl_add_u32 v{V_XD}, {T1}, 4, {T0}")
    def x_dma(c):
        rot18(e, S_XOFF, None, c, S_B, S_T0)
        e(f"s_lshl_b32 s{S_XOFF}, s{S_XOFF}, 6")
        e(f"s_add_u32 m0, s{S_XL}, {wslot(c)*WSL}")
        e("s_nop 0")
        e(f"buffer_load_dwordx4 v{V_XD}, {sr(SRD_X,4)}, s{S_XOFF} offen lds")
    for c in range(WAH):
        x_dma(c)
        wq_dma(None, c, 2)
    e(f"v_lshrrev_b32 {T0}, 4, {L}")
    e(f"v_and_b32 {T1}, 15, {L}")
    e(f"v_lshlrev_b32 {T2}, 8, {T0}")
    e(f"v_lshlrev_b32 {T3}, 2, {T0}")
    e(f"v_xor_b32 {T3}, {T1}, {T3}")
    e(f"v_lshl_add_u32 v{V_D+4}, {T3}, 4, {T2}")
    e(f"v_xor_b32 {T1}, {T1}, {T0}")
    for i in range(4):
        e(f"v_xor_b32 {T3}, {4*i}, {T1}")
        e(f"v_lshl_add_u32 v{V_D+i}, {T3}, 4, {T2}")
    def tile_issue():
        e(f"s_add_u32 s{S_SOFF}, s{S_ROT}, s{S_T2}")
        e(f"s_and_b32 s{S_SOFF}, s{S_SOFF}, 15")
        e(f"s_lshl_b32 s{S_SOFF}, s{S_SOFF}, 14")
        e(f"s_add_u32 s{S_SOFF}, s{S_SOFF}, s{S_J4K}")
        e(f"s_and_b32 s{S_STG}, s{S_T2}, 3")
        e(f"s_lshl_b32 s{S_STG}, s{S_STG}, 15")
        e(f"s_add_u32 m0, s{S_STG}, s{S_J4K}")
        e(f"s_add_u32 s{S_STG}, m0, 16384")
        for i in range(4):
            e(f"buffer_load_dwordx4 v{V_D+i}, {sr(SRD_K,4)}, s{S_SOFF} offen offset:{i*1024}{NT_KV} lds")
        e(f"s_mov_b32 m0, s{S_STG}")
        e("s_nop 0")
        for i in range(4):
            e(f"buffer_load_dwordx4 v{V_D+4}, {sr(SRD_V,4)}, s{S_SOFF} offen offset:{i*1024}{NT_KV} lds")
    e(f"s_mov_b32 s{S_T2}, 0")
    tile_issue()
    for c in range(NCH):
        n_after = min(NCH - 1, c + WAH - 1) - c
        e(f"s_waitcnt vmcnt({3*n_after + (8 if c < WAH else 0) + (5 if c >= NCH-WAH else 0)})")
        e("s_barrier")
        if c + WAH < NCH:
            x_dma(c + WAH)
            wq_dma(None, c + WAH, 2)
        if c == NCH-WAH-1:
            e("s_mov_b32 s76, s12")
            e("s_mov_b32 s77, s13")
            e(f"s_mov_b32 s78, {4096*1152}")
            e("s_mov_b32 s79, 0x20000")
            e(f"s_mul_i32 s{S_T0}, s2, 18432")
            e(f"s_mul_i32 s{S_SOFF}, s{S_WAVE}, 5120")
            e(f"s_add_u32 s{S_T0}, s{S_T0}, s{S_SOFF}")
            e(f"s_sub_u32 s{S_T0}, s{S_T0}, {8*5120}")
            e(f"v_lshlrev_b32 v12, 4, {L}")
            e(f"v_add_u32 v12, s{S_T0}, v12")
            e(f"v_add_u32 v13, 4096, v12")
            for k in range(4):
                e(f"buffer_load_dwordx4 v[{20+4*k}:{23+4*k}], v12, s[76:79], 0 offen offset:{k*1024}")
            e(f"buffer_load_dwordx4 v[36:39], v13, s[76:79], 0 offen")
    e("s_barrier")
    e(f"s_mov_b32 s{S_T2}, 1")
    e.label("attn_ldpro")
    tile_issue()
    e(f"s_add_u32 s{S_T2}, s{S_T2}, 1")
    e(f"s_cmp_lt_u32 s{S_T2}, 3")
    e("s_cbranch_scc1 attn_ldpro")
    e(f"s_mov_b32 s{S_CNT}, 0")
    e.label("attn_ldloop")
    e(f"s_cmp_lt_u32 s{S_CNT}, 14")
    e("s_cbranch_scc1 attn_ldw32")
    e(f"s_cmp_eq_u32 s{S_CNT}, 14")
    e("s_cbranch_scc1 attn_ldw16")
    e("s_waitcnt vmcnt(0)")
    e("s_branch attn_ldw")
    e.label("attn_ldw16")
    e("s_waitcnt vmcnt(8)")
    e("s_branch attn_ldw")
    e.label("attn_ldw32")
    e("s_waitcnt vmcnt(16)")
    e.label("attn_ldw")
    e("s_barrier")
    e(f"s_add_u32 s{S_T2}, s{S_CNT}, 3")
    e(f"s_cmp_ge_u32 s{S_T2}, 16")
    e("s_cbranch_scc1 attn_ldskip")
    tile_issue()
    e.label("attn_ldskip")
    e(f"s_add_u32 s{S_CNT}, s{S_CNT}, 1")
    e(f"s_cmp_lt_u32 s{S_CNT}, 16")
    e("s_cbranch_scc1 attn_ldloop")
    e("s_barrier")
    e("s_barrier")
    e.label("attn_end")
    e("s_endpgm")

def gen_oproj(e):
    name = "oproj_kernel"
    e.raw(f".globl {name}")
    e.raw(".p2align 8")
    e.raw(f".type {name},@function")
    e.label(name)
    SRD_O, SRD_W, SRD_OUT = 20, 24, 28
    S_WAVE, S_MB, S_NB, S_T0, S_T1, S_SOFF, S_KO, S_CNT, S_OOFF = 40, 41, 42, 43, 44, 46, 47, 49, 50
    V_LANE = 1
    V_T0, V_T1, V_T2, V_T3 = 2, 3, 4, 5
    V_WD = 6
    V_WA = 8
    V_OA = 10
    V_OUT = 13
    V_AF = 16
    V_ACC = 64
    V_BF = 128
    NS = 4
    AHEAD = 3
    NCH = 16
    L = f"v{V_LANE}"
    T0, T1, T2, T3 = (f"v{x}" for x in (V_T0, V_T1, V_T2, V_T3))
    e("s_cmp_ge_u32 s2, 144")
    e("s_cbranch_scc1 oproj_end")
    e("s_load_dwordx4 s[4:7], s[0:1], 32")
    e("s_load_dwordx2 s[16:17], s[0:1], 56")
    stamp(e, 0)
    e(f"v_and_b32 {L}, 63, v0")
    e(f"v_lshrrev_b32 v2, 6, v0")
    e("s_nop 0")
    e(f"v_readfirstlane_b32 s{S_WAVE}, v2")
    e(f"s_and_b32 s{S_MB}, s2, 15")
    e(f"s_lshr_b32 s{S_NB}, s2, 4")
    e("s_waitcnt lgkmcnt(0)")
    e(f"s_mov_b32 s{SRD_O}, s16")
    e(f"s_mov_b32 s{SRD_O+1}, s17")
    e(f"s_mov_b32 s{SRD_O+2}, 0x800000")
    e(f"s_mov_b32 s{SRD_O+3}, 0x20000")
    e(f"s_mov_b32 s{SRD_W}, s4")
    e(f"s_mov_b32 s{SRD_W+1}, s5")
    e(f"s_mov_b32 s{SRD_W+2}, {4096*1152}")
    e(f"s_mov_b32 s{SRD_W+3}, 0x20000")
    e(f"s_mov_b32 s{SRD_OUT}, s6")
    e(f"s_mov_b32 s{SRD_OUT+1}, s7")
    e(f"s_mov_b32 s{SRD_OUT+2}, {1024*1152}")
    e(f"s_mov_b32 s{SRD_OUT+3}, 0x20000")
    e(f"v_lshrrev_b32 {T0}, 3, {L}")
    e(f"s_movk_i32 s{S_T0}, 1152")
    e(f"v_mul_lo_u32 {T0}, {T0}, s{S_T0}")
    e(f"v_and_b32 {T1}, 7, {L}")
    e(f"v_bfe_u32 {T2}, {L}, 4, 1")
    e(f"v_lshlrev_b32 {T2}, 2, {T2}")
    e(f"v_xor_b32 {T1}, {T1}, {T2}")
    e(f"v_lshl_add_u32 v{V_WD}, {T1}, 4, {T0}")
    e(f"s_mul_i32 s{S_KO}, s{S_WAVE}, {512*1152}")
    e(f"s_lshl_b32 s{S_T0}, s{S_NB}, 7")
    e(f"s_add_u32 s{S_KO}, s{S_KO}, s{S_T0}")
    e(f"s_lshl_b32 s{S_T0}, s{S_MB}, 19")
    e(f"s_lshl_b32 s{S_T1}, s{S_WAVE}, 15")
    e(f"s_add_u32 s{S_T0}, s{S_T0}, s{S_T1}")
    e(f"v_lshlrev_b32 {T0}, 4, {L}")
    e(f"v_add_u32 v{V_OA}, s{S_T0}, {T0}")
    e(f"v_add_u32 v{V_OA+1}, 0x40000, v{V_OA}")
    S_M0W = 48
    e(f"s_lshl_b32 s{S_M0W}, s{S_WAVE}, 14")
    e(f"s_mov_b32 s{S_SOFF}, s{S_KO}")
    e(f"s_mov_b32 s{S_OOFF}, 0")
    def issue(slot):
        for j in range(4):
            e(f"s_add_u32 m0, s{S_M0W}, {slot*4096 + j*1024}")
            e("s_nop 0")
            e(f"buffer_load_dwordx4 v{V_WD}, {sr(SRD_W,4)}, s{S_SOFF} offen{NT_W} lds")
            e(f"s_add_u32 s{S_SOFF}, s{S_SOFF}, {8*1152}")
        for mb2 in range(2):
            for st in range(2):
                f = V_BF + 16*slot + 8*mb2 + 4*st
                e(f"buffer_load_dwordx4 {vr(f,4)}, v{V_OA+mb2}, {sr(SRD_O,4)}, s{S_OOFF} offen offset:{st*1024}{NT_W}")
        e(f"s_add_u32 s{S_OOFF}, s{S_OOFF}, 2048")
    for c in range(AHEAD):
        issue(c)
    e(f"v_lshrrev_b32 {T0}, 5, {L}")
    e(f"v_bfe_u32 {T1}, {L}, 2, 2")
    e(f"v_lshl_add_u32 {T2}, {T0}, 3, {T1}")
    e(f"v_lshlrev_b32 {T2}, 7, {T2}")
    e(f"v_bfe_u32 {T0}, {L}, 4, 1")
    e(f"v_bfe_u32 {T3}, {L}, 1, 1")
    e(f"v_lshl_add_u32 {T0}, {T0}, 1, {T3}")
    e(f"v_lshl_add_u32 {T2}, {T0}, 4, {T2}")
    e(f"v_and_b32 {T3}, 1, {L}")
    e(f"v_lshl_add_u32 {T2}, {T3}, 3, {T2}")
    e(f"v_add_u32 {T2}, s{S_M0W}, {T2}")
    e(f"v_bfe_u32 {T1}, {L}, 3, 1")
    for nb2 in range(2):
        e(f"v_xor_b32 {T3}, {nb2}, {T1}")
        e(f"v_lshl_add_u32 v{V_WA+nb2}, {T3}, 6, {T2}")
    for i in range(64):
        e(f"v_mov_b32 v{V_ACC+i}, 0")
    def rda(slot, par):
        ab = V_AF + 16*par
        for nb2 in range(2):
            for st in range(2):
                for u in range(2):
                    e(f"ds_read_b64_tr_b16 {vr(ab+8*nb2+4*st+2*u,2)}, v{V_WA+nb2} offset:{slot*4096 + (st*16+4*u)*128}")
    stamp(e, 1)
    e(f"s_waitcnt vmcnt({8*(AHEAD-1)})")
    rda(0, 0)
    def body(c, cmod):
        slot = cmod % NS
        par = cmod % 2
        e("s_waitcnt lgkmcnt(0)")
        if c + AHEAD < NCH:
            issue((slot + AHEAD) % NS)
        if c + 1 < NCH:
            n_after = min(NCH - 1, c + AHEAD) - (c + 1)
            e(f"s_waitcnt vmcnt({8*n_after})")
            rda((slot + 1) % NS, 1 - par)
        ab = V_AF + 16*par
        for st in range(2):
            for nb2 in range(2):
                for mb2 in range(2):
                    acc = vr(V_ACC + 32*nb2 + 16*mb2, 16)
                    e(f"v_mfma_f32_32x32x16_bf16 {acc}, {vr(ab+8*nb2+4*st,4)}, {vr(V_BF+16*slot+8*mb2+4*st,4)}, {acc}")
    e(f"s_mov_b32 s{S_CNT}, 0")
    e.label("oproj_loop")
    for cm in range(4):
        body(cm, cm)
    e(f"s_add_u32 s{S_CNT}, s{S_CNT}, 1")
    e(f"s_cmp_lt_u32 s{S_CNT}, 3")
    e("s_cbranch_scc1 oproj_loop")
    stamp(e, 2)
    for c in range(12, 16):
        body(c, c)
    stamp(e, 3)
    e.nop(16)
    e("s_barrier")
    e(f"v_lshlrev_b32 {T0}, 4, {L}")
    e(f"v_add_u32 {T1}, s{S_M0W}, {T0}")
    for i in range(16):
        e(f"ds_write_b128 {T1}, {vr(V_ACC+4*i,4)} offset:{i*1024}")
    e("s_waitcnt lgkmcnt(0)")
    e("s_barrier")
    e(f"s_lshl_b32 s{S_T0}, s{S_WAVE}, 11")
    e(f"v_add_u32 {T1}, s{S_T0}, {T0}")
    e(f"v_add_u32 {T2}, 0x10000, {T1}")
    for w in range(8):
        for i in range(2):
            e(f"ds_read_b128 {vr(V_BF+8*w+4*i,4)}, {T1 if w < 4 else T2} offset:{(w%4)*16384 + i*1024}")
    e("s_waitcnt lgkmcnt(0)")
    for stp in (4, 2, 1):
        for w in range(stp):
            for i in range(0, 8, 2):
                e(f"v_pk_add_f32 {vr(V_BF+8*w+i,2)}, {vr(V_BF+8*w+i,2)}, {vr(V_BF+8*(w+stp)+i,2)}")
    e(f"s_lshl_b32 s{S_T0}, s{S_MB}, 6")
    e(f"s_bfe_u32 s{S_T1}, s{S_WAVE}, 0x10001")
    e(f"s_lshl_b32 s{S_T1}, s{S_T1}, 5")
    e(f"s_add_u32 s{S_T0}, s{S_T0}, s{S_T1}")
    e(f"v_and_b32 {T0}, 31, {L}")
    e(f"v_add_u32 {T0}, s{S_T0}, {T0}")
    e(f"s_movk_i32 s{S_T1}, 1152")
    e(f"v_mul_lo_u32 {T0}, {T0}, s{S_T1}")
    e(f"s_lshl_b32 s{S_T0}, s{S_NB}, 7")
    e(f"s_lshr_b32 s{S_T1}, s{S_WAVE}, 2")
    e(f"s_lshl_b32 s{S_T1}, s{S_T1}, 6")
    e(f"s_add_u32 s{S_T0}, s{S_T0}, s{S_T1}")
    e(f"s_and_b32 s{S_T1}, s{S_WAVE}, 1")
    e(f"s_lshl_b32 s{S_T1}, s{S_T1}, 5")
    e(f"s_add_u32 s{S_T0}, s{S_T0}, s{S_T1}")
    e(f"v_add_u32 {T0}, s{S_T0}, {T0}")
    e(f"v_lshrrev_b32 {T1}, 5, {L}")
    e(f"v_lshl_add_u32 v{V_OUT}, {T1}, 4, {T0}")
    q = V_AF
    for j in range(4):
        e(f"v_cvt_pk_bf16_f32 v{q+j}, v{V_BF+2*j}, v{V_BF+2*j+1}")
    e("s_nop 1")
    e(f"v_permlane32_swap_b32 v{q}, v{q+2}")
    e(f"v_permlane32_swap_b32 v{q+1}, v{q+3}")
    e("s_nop 1")
    e(f"buffer_store_dwordx4 {vr(q,4)}, v{V_OUT}, {sr(SRD_OUT,4)}, 0 offen")
    if STAMP:
        e("s_waitcnt vmcnt(0)")
    stamp(e, 4)
    stamp_flush(e, 5, S_WAVE, "o")
    e.label("oproj_end")
    e("s_endpgm")

def desc(name, nfv, acc, sgpr=102):
    return f""".amdhsa_kernel {name}
  .amdhsa_next_free_vgpr {nfv}
  .amdhsa_next_free_sgpr {sgpr}
  .amdhsa_accum_offset {acc}
  .amdhsa_group_segment_fixed_size 0
  .amdhsa_kernarg_size 64
  .amdhsa_user_sgpr_count 2
  .amdhsa_user_sgpr_kernarg_segment_ptr 1
  .amdhsa_system_sgpr_workgroup_id_x 1
.end_amdhsa_kernel
"""

def main():
    hdr = open("standalone__gqa_block_cached__near_ridge.s.ref").read().split("; Override launch")[0]
    e = Em()
    gen_attn(e)
    gen_oproj(e)
    out = hdr
    out += "; @launch kernel=attn_kernel grid=(256,1,1) block=(768,1,1) lds=163840\n"
    out += "; @launch kernel=oproj_kernel grid=(144,1,1) block=(512,1,1) lds=131072\n"
    out += '.amdgcn_target "amdgcn-amd-amdhsa--gfx950"\n.text\n'
    out += e.text()
    out += '.section .rodata,"a"\n.p2align 6\n'
    out += desc("attn_kernel", 168, 168)
    out += ".p2align 6\n"
    out += desc("oproj_kernel", 192, 192)
    path = sys.argv[1] if len(sys.argv) > 1 else "standalone__gqa_block_cached__near_ridge.s"
    open(path, "w").write(out)

main()
```

```python
import sys, struct

class Em:
    def __init__(self):
        self.lines = []
    def __call__(self, s):
        self.lines.append("    " + s)
    def label(self, s):
        self.lines.append(s + ":")
    def raw(self, s):
        self.lines.append(s)
    def nop(self, n):
        while n > 0:
            k = min(n, 16)
            self(f"s_nop {k-1}")
            n -= k
    def text(self):
        return "\n".join(self.lines) + "\n"

def vr(b, n=1):
    return f"v{b}" if n == 1 else f"v[{b}:{b+n-1}]"
def sr(b, n=1):
    return f"s{b}" if n == 1 else f"s[{b}:{b+n-1}]"
def f32hex(x):
    return "0x%08x" % struct.unpack("<I", struct.pack("<f", x))[0]

LOG2E = 1.4426950408889634
SCALE = 128 ** -0.5
OPT = sys.argv[2] if len(sys.argv) > 2 else ""
STAMP = "stamp" in OPT
NT_KV = " sc0 nt"
NT_W = " nt" if "ntw" in OPT else ""

def stamp(e, idx):
    if not STAMP: return
    e("s_memtime s[60:61]")
    e("s_waitcnt lgkmcnt(0)")
    e(f"s_mov_b32 s{62+idx}, s60")

def stamp_flush(e, n, wavereg, tag):
    if not STAMP: return
    e("s_load_dwordx2 s[56:57], s[0:1], 48")
    e("s_waitcnt lgkmcnt(0)")
    e("s_mov_b32 s52, s56")
    e("s_mov_b32 s53, s57")
    e("s_mov_b32 s54, 256")
    e("s_mov_b32 s55, 0x20000")
    e("s_cmp_lg_u32 s2, 5")
    e(f"s_cbranch_scc1 stamp_skip_{tag}")
    e(f"s_lshl_b32 s58, s{wavereg}, 5")
    for i in range(n):
        e(f"s_sub_u32 s59, s{62+i}, s62")
        e("v_mov_b32 v2, s59")
        e(f"v_mov_b32 v3, s58")
        e(f"buffer_store_dword v2, v3, s[52:55], 0 offen offset:{4*i}")
    e.label(f"stamp_skip_{tag}")

def rot18(e, dst, base_sgpr, add_const, rot_sgpr, tmp):
    if base_sgpr is None:
        e(f"s_add_u32 s{dst}, s{rot_sgpr}, {add_const}")
    else:
        e(f"s_add_u32 s{dst}, s{base_sgpr}, {add_const}")
        e(f"s_add_u32 s{dst}, s{dst}, s{rot_sgpr}")
    e(f"s_sub_u32 s{tmp}, s{dst}, 18")
    e(f"s_cmp_ge_u32 s{dst}, 18")
    e(f"s_cselect_b32 s{dst}, s{tmp}, s{dst}")

def gen_attn(e):
    name = "attn_kernel"
    e.raw(f".globl {name}")
    e.raw(".p2align 8")
    e.raw(f".type {name},@function")
    e.label(name)
    S_X, S_K, S_V, S_WQ, S_WS = 4, 6, 8, 10, 16
    SRD_K, SRD_X, SRD_WQ, SRD_O = 20, 28, 32, 36
    S_WAVE, S_HKV, S_B = 40, 41, 42
    S_T0, S_T1, S_T2, S_SOFF, S_C = 43, 44, 45, 46, 47
    S_CNT, S_STG, S_ROT, S_XOFF, S_QB, S_KH = 48, 49, 50, 51, 72, 73
    V_LANE = 1
    V_T0, V_T1, V_T2, V_T3 = 2, 3, 4, 5
    V_KW = 6
    V_VW = 14
    V_M, V_L = 18, 19
    V_AL2 = 20
    V_OO = 22
    V_XO = 23
    V_WA = 6
    V_D = 6
    V_O = 24
    V_S = 88
    V_Q = 104
    V_F = 136
    V_P = 160
    XSL = [V_O+32, V_O+40, V_O+48, V_O+56, V_S, V_S+8, V_Q, V_Q+8]
    STAGE = 32768
    WQ0 = 32768
    WNS = 6
    WAH = 5
    WSL = 20480
    def wslot(c): return (c + 2) % WNS
    QX0 = 131072
    NCH = 18

    e("s_cmp_ge_u32 s2, 256")
    e("s_cbranch_scc1 attn_end")
    e("s_load_dwordx4 s[4:7], s[0:1], 0")
    e("s_load_dwordx4 s[8:11], s[0:1], 16")
    e("s_load_dwordx2 s[16:17], s[0:1], 56")
    e("s_load_dwordx2 s[12:13], s[0:1], 32")
    stamp(e, 0)
    e(f"v_and_b32 v{V_LANE}, 63, v0")
    e(f"v_lshrrev_b32 v2, 6, v0")
    e("s_nop 0")
    e(f"v_readfirstlane_b32 s{S_WAVE}, v2")
    e(f"s_and_b32 s{S_HKV}, s2, 15")
    e(f"s_lshr_b32 s{S_B}, s2, 4")
    e(f"s_add_u32 s{S_ROT}, s{S_HKV}, s{S_B}")
    L = f"v{V_LANE}"
    T0, T1, T2, T3 = (f"v{x}" for x in (V_T0, V_T1, V_T2, V_T3))
    e("s_waitcnt lgkmcnt(0)")
    e(f"s_lshl_b32 s{S_T0}, s{S_HKV}, 9")
    e(f"s_add_u32 s{SRD_WQ}, s{S_WQ}, s{S_T0}")
    e(f"s_addc_u32 s{SRD_WQ+1}, s{S_WQ+1}, 0")
    e(f"s_sub_u32 s{SRD_WQ+2}, {576*8192}, s{S_T0}")
    e(f"s_mov_b32 s{SRD_WQ+3}, 0x20000")
    V_WD = 166
    e(f"v_lshrrev_b32 {T0}, 5, {L}")
    e(f"v_and_b32 {T1}, 31, {L}")
    e(f"v_lshlrev_b32 {T2}, 13, {T0}")
    for odd in range(2):
        e(f"v_add_u32 {T3}, {2*odd}, {T0}")
        e(f"v_lshlrev_b32 {T3}, 2, {T3}")
        e(f"v_xor_b32 {T3}, {T3}, {T1}")
        e(f"v_lshl_add_u32 v{V_WD+odd}, {T3}, 4, {T2}")
    S_WQR, S_WQL = 52, 53
    def wq_dma(chunk_sgpr, chunk_const, n_instr):
        rot18(e, S_SOFF, chunk_sgpr, chunk_const, S_B, S_T0)
        e(f"s_lshl_b32 s{S_SOFF}, s{S_SOFF}, 18")
        e(f"s_add_u32 s{S_SOFF}, s{S_SOFF}, s{S_WQR}")
        if chunk_sgpr is None:
            e(f"s_add_u32 m0, s{S_WQL}, {wslot(chunk_const)*WSL}")
        else:
            e(f"s_add_u32 s{S_STG}, s{chunk_sgpr}, {chunk_const}")
            e(f"s_and_b32 s{S_STG}, s{S_STG}, 7")
            e(f"s_lshl_b32 s{S_STG}, s{S_STG}, 14")
            e(f"s_add_u32 m0, s{S_STG}, s{S_WQL}")
        e("s_nop 0")
        e(f"buffer_load_dwordx4 v{V_WD}, {sr(SRD_WQ,4)}, s{S_SOFF} offen lds")
        if n_instr == 2:
            e(f"s_add_u32 s{S_SOFF}, s{S_SOFF}, {16384-1024}")
            e(f"buffer_load_dwordx4 v{V_WD+1}, {sr(SRD_WQ,4)}, s{S_SOFF} offen offset:1024 lds")
    e(f"s_cmp_ge_u32 s{S_WAVE}, 8")
    e("s_cbranch_scc1 attn_loader")
    e(f"s_add_u32 s{S_T0}, s{S_WAVE}, 8")
    e(f"s_lshl_b32 s{S_WQR}, s{S_T0}, 14")
    e(f"s_lshl_b32 s{S_WQL}, s{S_T0}, 10")
    e(f"s_add_u32 s{S_WQL}, s{S_WQL}, {WQ0}")
    e(f"s_and_b32 s{S_T0}, s{S_WAVE}, 1")
    e(f"s_cmp_eq_u32 s{S_T0}, 0")
    e("s_cbranch_scc1 attn_weven")
    e(f"v_mov_b32 v{V_WD}, v{V_WD+1}")
    e.label("attn_weven")

    e(f"s_and_b32 s{S_QB}, s{S_WAVE}, 3")
    e(f"s_lshr_b32 s{S_KH}, s{S_WAVE}, 2")
    e(f"s_mul_i32 s{S_T0}, s{S_B}, 73728")
    e(f"s_add_u32 s{SRD_X}, s{S_X}, s{S_T0}")
    e(f"s_addc_u32 s{SRD_X+1}, s{S_X+1}, 0")
    e(f"s_mov_b32 s{SRD_X+2}, 73728")
    e(f"s_mov_b32 s{SRD_X+3}, 0x20000")
    e(f"s_mov_b32 s{SRD_O}, s{S_WS}")
    e(f"s_mov_b32 s{SRD_O+1}, s{S_WS+1}")
    e(f"s_mov_b32 s{SRD_O+2}, 0x800000")
    e(f"s_mov_b32 s{SRD_O+3}, 0x20000")
    e(f"s_and_b32 s{S_T0}, s{S_QB}, 1")
    e(f"s_lshl_b32 s{S_T0}, s{S_T0}, 5")
    e(f"v_and_b32 {T0}, 31, {L}")
    e(f"v_add_u32 {T0}, s{S_T0}, {T0}")
    e(f"v_lshlrev_b32 {T0}, 6, {T0}")
    e(f"v_add_u32 {T0}, {WQ0+16384}, {T0}")
    e(f"v_lshrrev_b32 {T1}, 5, {L}")
    e(f"v_bfe_u32 {T2}, {L}, 2, 2")
    e(f"v_xor_b32 {T1}, {T1}, {T2}")
    V_XA = V_S
    for ks in range(2):
        e(f"v_xor_b32 {T2}, {2*ks}, {T1}")
        e(f"v_lshl_add_u32 v{V_XA+ks}, {T2}, 4, {T0}")
        e(f"v_add_u32 v{V_XA+2+ks}, {3*WSL}, v{V_XA+ks}")
    for c in range(WAH):
        wq_dma(None, c, 1)
    e(f"v_lshrrev_b32 {T0}, 5, {L}")
    e(f"v_bfe_u32 {T1}, {L}, 2, 2")
    e(f"v_lshl_add_u32 {T2}, {T0}, 3, {T1}")
    e(f"v_lshlrev_b32 {T2}, 9, {T2}")
    e(f"v_bfe_u32 {T0}, {L}, 4, 1")
    e(f"v_bfe_u32 {T3}, {L}, 1, 1")
    e(f"v_lshl_add_u32 {T0}, {T0}, 1, {T3}")
    e(f"v_lshl_add_u32 {T2}, {T0}, 4, {T2}")
    e(f"v_and_b32 {T3}, 1, {L}")
    e(f"v_lshl_add_u32 {T2}, {T3}, 3, {T2}")
    e(f"v_add_u32 {T2}, {WQ0}, {T2}")
    e(f"s_lshr_b32 s{S_T0}, s{S_QB}, 1")
    e(f"s_lshl_b32 s{S_T0}, s{S_T0}, 2")
    e(f"s_lshl_b32 s{S_T1}, s{S_KH}, 1")
    e(f"s_add_u32 s{S_T0}, s{S_T0}, s{S_T1}")
    for d2 in range(2):
        e(f"s_add_u32 s{S_T1}, s{S_T0}, {d2}")
        e(f"v_xor_b32 {T3}, s{S_T1}, {T1}")
        e(f"v_lshl_add_u32 v{V_WA+d2}, {T3}, 6, {T2}")
    e(f"s_and_b32 s{S_T0}, s{S_QB}, 1")
    e(f"s_lshl_b32 s{S_T1}, s{S_B}, 1")
    e(f"s_add_u32 s{S_T0}, s{S_T0}, s{S_T1}")
    e(f"s_lshl_b32 s{S_T0}, s{S_T0}, 18")
    e(f"s_lshl_b32 s{S_T1}, s{S_HKV}, 1")
    e(f"s_lshr_b32 s{S_T2}, s{S_QB}, 1")
    e(f"s_add_u32 s{S_T1}, s{S_T1}, s{S_T2}")
    e(f"s_lshl_b32 s{S_T1}, s{S_T1}, 13")
    e(f"s_add_u32 s{S_T0}, s{S_T0}, s{S_T1}")
    e(f"v_lshlrev_b32 {T0}, 4, {L}")
    e(f"v_add_u32 v{V_OO}, s{S_T0}, {T0}")
    for i in range(32):
        e(f"v_mov_b32 v{V_O+i}, 0")

    def qchunk(c, issue_next, wait_n):
        slot = wslot(c)
        e(f"s_waitcnt vmcnt({wait_n})")
        e("s_barrier")
        seq = [(ks, d2) for ks in range(2) for d2 in range(2)]
        hi = slot >= 3
        xs = XSL[c % 2]
        for ks in range(2):
            e(f"ds_read_b128 {vr(xs+4*ks,4)}, v{V_XA+ks+(2 if hi else 0)} offset:{(slot%3)*WSL}")
        for idx, (ks, d2) in enumerate(seq):
            f = V_F + 4*idx
            for u in range(2):
                e(f"ds_read_b64_tr_b16 {vr(f+2*u,2)}, v{V_WA+d2+(2 if hi else 0)} offset:{(slot%3)*WSL + (ks*16+4*u)*512}")
        if issue_next:
            wq_dma(None, c+WAH, 1)
        for idx, (ks, d2) in enumerate(seq):
            f = V_F + 4*idx
            e(f"s_waitcnt lgkmcnt({2*(3-idx)})")
            acc = vr(V_O + 16*d2, 16)
            e(f"v_mfma_f32_32x32x16_bf16 {acc}, {vr(f,4)}, {vr(xs+4*ks,4)}, {acc}")
    for d2 in range(2):
        e(f"v_add_u32 v{V_WA+2+d2}, {3*WSL}, v{V_WA+d2}")
    e(f"s_mov_b32 s{S_CNT}, 0")
    for c in range(NCH):
        if c == 8:
            e(f"s_mov_b32 s{S_CNT}, 8")
        if c == 16:
            e(f"s_mov_b32 s{S_CNT}, 16")
        n_after = min(NCH - 1, c + WAH - 1) - c
        if c == 0: stamp(e, 4)
        qchunk(c, c + WAH < NCH, n_after)
        if c in (0, 1, 9): stamp(e, {0:5, 1:6, 9:7}[c])
    stamp(e, 1)
    e.nop(16)
    e(f"s_lshl_b32 s{S_T0}, s{S_QB}, 13")
    e(f"s_add_u32 s{S_T0}, s{S_T0}, {QX0}")
    e(f"v_lshlrev_b32 {T0}, 4, {L}")
    e(f"v_add_u32 {T0}, s{S_T0}, {T0}")
    e(f"s_lshl_b32 s{S_T1}, s{S_KH}, 12")
    e(f"v_add_u32 {T1}, s{S_T1}, {T0}")
    for kl in range(4):
        d2, hf = kl // 2, kl % 2
        src = V_O + 16*d2 + 8*hf
        q = V_F + 4*kl
        for j in range(4):
            e(f"v_cvt_pk_bf16_f32 v{q+j}, v{src+2*j}, v{src+2*j+1}")
        e("s_nop 1")
        e(f"v_permlane32_swap_b32 v{q}, v{q+2}")
        e(f"v_permlane32_swap_b32 v{q+1}, v{q+3}")
        e("s_nop 1")
        e(f"ds_write_b128 {T1}, {vr(q,4)} offset:{kl*1024}")
    e("s_waitcnt lgkmcnt(0)")
    e("s_barrier")
    for ks in range(8):
        e(f"ds_read_b128 {vr(V_Q+4*ks,4)}, {T0} offset:{ks*1024}")
    e(f"v_lshrrev_b32 {T0}, 5, {L}")
    e(f"v_and_b32 {T1}, 15, {L}")
    e(f"v_xor_b32 {T0}, {T0}, {T1}")
    e(f"v_and_b32 {T1}, 31, {L}")
    e(f"v_lshlrev_b32 {T1}, 8, {T1}")
    e(f"s_lshl_b32 s{S_T0}, s{S_KH}, 13")
    e(f"v_add_u32 {T1}, s{S_T0}, {T1}")
    for ks in range(8):
        e(f"v_xor_b32 {T2}, {2*ks}, {T0}")
        e(f"v_lshl_add_u32 v{V_KW+ks}, {T2}, 4, {T1}")
    e(f"v_lshrrev_b32 {T0}, 5, {L}")
    e(f"v_bfe_u32 {T1}, {L}, 2, 2")
    e(f"v_lshl_add_u32 {T2}, {T0}, 2, {T1}")
    e(f"v_lshlrev_b32 {T2}, 8, {T2}")
    e(f"s_add_u32 s{S_T0}, s{S_T0}, 16384")
    e(f"v_add_u32 {T2}, s{S_T0}, {T2}")
    e(f"v_bfe_u32 {T0}, {L}, 4, 1")
    e(f"v_bfe_u32 {T3}, {L}, 1, 1")
    e(f"v_lshl_add_u32 {T0}, {T0}, 1, {T3}")
    e(f"v_lshl_add_u32 {T2}, {T0}, 4, {T2}")
    e(f"v_and_b32 {T3}, 1, {L}")
    e(f"v_lshl_add_u32 {T2}, {T3}, 3, {T2}")
    for db in range(4):
        e(f"v_xor_b32 {T3}, {db}, {T1}")
        e(f"v_lshl_add_u32 v{V_VW+db}, {T3}, 6, {T2}")
    e(f"v_mov_b32 v{V_M}, 0xff800000")
    e(f"v_mov_b32 v{V_L}, 0")
    for i in range(64):
        e(f"v_mov_b32 v{V_O+i}, 0")
    e(f"s_mov_b32 s{S_C}, {f32hex(SCALE*LOG2E)}")
    e(f"s_mov_b32 s{S_CNT}, 0")
    e(f"s_mov_b32 s{S_T2}, 0x1ffff")
    e("s_waitcnt lgkmcnt(0)")

    e.label("attn_loop")
    e("s_barrier")
    def rdk(ks):
        f = V_F + 4*(ks % 6)
        e(f"ds_read_b128 {vr(f,4)}, v{V_KW+ks}")
    for ks in range(6):
        rdk(ks)
    seqv = [(ks, db) for ks in range(2) for db in range(4)]
    def rdv(idx):
        ks, db = seqv[idx]
        f = V_F + 4*((8 + idx) % 6)
        for u in range(2):
            e(f"ds_read_b64_tr_b16 {vr(f+2*u,2)}, v{V_VW+db} offset:{ks*4096 + u*2048}")
    issued = 6
    for ks in range(8):
        f = V_F + 4*(ks % 6)
        later_k = max(0, min(8, issued) - ks - 1)
        later_v = max(0, issued - 8)
        e(f"s_waitcnt lgkmcnt({later_k + 2*later_v})")
        acc = vr(V_S, 16)
        cc = "0" if ks == 0 else acc
        e(f"v_mfma_f32_32x32x16_bf16 {acc}, {vr(f,4)}, {vr(V_Q+4*ks,4)}, {cc}")
        if issued < 8:
            rdk(issued)
        else:
            rdv(issued - 8)
        issued += 1
    for i in range(8):
        e(f"v_add_u32 v{V_KW+i}, 0x8000, v{V_KW+i}")
        e(f"v_and_b32 v{V_KW+i}, s{S_T2}, v{V_KW+i}")
    S = lambda i: f"v{V_S+i}"
    e(f"v_max3_f32 {T0}, {S(0)}, {S(1)}, {S(2)}")
    e(f"v_max3_f32 {T1}, {S(3)}, {S(4)}, {S(5)}")
    e(f"v_max3_f32 {T0}, {T0}, {S(6)}, {S(7)}")
    e(f"v_max3_f32 {T1}, {T1}, {S(8)}, {S(9)}")
    e(f"v_max3_f32 {T0}, {T0}, {S(10)}, {S(11)}")
    e(f"v_max3_f32 {T1}, {T1}, {S(12)}, {S(13)}")
    e(f"v_max3_f32 {T0}, {T0}, {S(14)}, {S(15)}")
    e(f"v_max_f32 {T0}, {T0}, {T1}")
    e(f"v_mov_b32 {T1}, {T0}")
    e("s_nop 1")
    e(f"v_permlane32_swap_b32 {T0}, {T1}")
    e("s_nop 1")
    e(f"v_max3_f32 {T0}, {T0}, {T1}, v{V_M}")
    e(f"v_cmp_neq_f32 vcc, {T0}, v{V_M}")
    e(f"v_sub_f32 {T1}, v{V_M}, {T0}")
    e(f"v_mul_f32 {T1}, s{S_C}, {T1}")
    e(f"v_exp_f32 v{V_AL2}, {T1}")
    e(f"v_mov_b32 v{V_M}, {T0}")
    e(f"v_mul_f32 {T0}, s{S_C}, {T0}")
    e(f"v_mov_b32 v{V_AL2+1}, v{V_AL2}")
    for i in range(16):
        e(f"v_fma_f32 {S(i)}, {S(i)}, s{S_C}, -{T0}")
    for i in range(16):
        e(f"v_exp_f32 {S(i)}, {S(i)}")
    e("s_cbranch_vccz attn_noresc")
    e(f"v_mul_f32 v{V_L}, v{V_L}, v{V_AL2}")
    for i in range(0, 64, 2):
        e(f"v_pk_mul_f32 {vr(V_O+i,2)}, {vr(V_O+i,2)}, {vr(V_AL2,2)}")
    e.label("attn_noresc")
    e(f"v_add_f32 {T1}, {S(0)}, {S(1)}")
    e(f"v_add_f32 {T2}, {S(2)}, {S(3)}")
    for i in range(4, 16, 2):
        tt = T1 if (i // 2) % 2 == 0 else T2
        e(f"v_add_f32 {tt}, {tt}, {S(i)}")
        e(f"v_add_f32 {tt}, {tt}, {S(i+1)}")
    e(f"v_add_f32 {T1}, {T1}, {T2}")
    e(f"v_add_f32 v{V_L}, v{V_L}, {T1}")
    for ks in range(2):
        for j in range(4):
            e(f"v_cvt_pk_bf16_f32 v{V_P+4*ks+j}, {S(8*ks+2*j)}, {S(8*ks+2*j+1)}")
    e("s_nop 1")
    for idx in range(8):
        ks, db = seqv[idx]
        f = V_F + 4*((8 + idx) % 6)
        later_v = max(0, (issued - 8) - idx - 1)
        e(f"s_waitcnt lgkmcnt({2*later_v})")
        acc = vr(V_O + 16*db, 16)
        e(f"v_mfma_f32_32x32x16_bf16 {acc}, {vr(f,4)}, {vr(V_P+4*ks,4)}, {acc}")
        if issued < 16:
            rdv(issued - 8)
            issued += 1
    for i in range(4):
        e(f"v_add_u32 v{V_VW+i}, 0x8000, v{V_VW+i}")
        e(f"v_and_b32 v{V_VW+i}, s{S_T2}, v{V_VW+i}")
    e(f"s_add_u32 s{S_CNT}, s{S_CNT}, 1")
    e(f"s_cmp_lt_u32 s{S_CNT}, 16")
    e("s_cbranch_scc1 attn_loop")
    stamp(e, 2)
    e.nop(16)
    e(f"v_mov_b32 {T0}, v{V_L}")
    e(f"v_mov_b32 {T1}, v{V_L}")
    e("s_nop 1")
    e(f"v_permlane32_swap_b32 {T0}, {T1}")
    e("s_nop 1")
    e(f"v_add_f32 v{V_L}, {T0}, {T1}")
    e("s_barrier")
    e(f"s_lshl_b32 s{S_T0}, s{S_QB}, 1")
    e(f"s_add_u32 s{S_T1}, s{S_T0}, s{S_KH}")
    e(f"s_xor_b32 s{S_T0}, s{S_T1}, 1")
    e(f"s_mul_i32 s{S_T1}, s{S_T1}, 8704")
    e(f"s_mul_i32 s{S_T0}, s{S_T0}, 8704")
    e(f"v_lshlrev_b32 {T0}, 4, {L}")
    e(f"v_lshlrev_b32 {T1}, 3, {L}")
    e(f"v_add_u32 {T2}, s{S_T1}, {T0}")
    e(f"v_add_u32 {T3}, s{S_T1}, {T1}")
    e(f"v_add_u32 {T0}, s{S_T0}, {T0}")
    e(f"v_add_u32 {T1}, s{S_T0}, {T1}")
    e(f"ds_write_b64 {T3}, {vr(V_M,2)} offset:8192")
    e(f"s_cmp_eq_u32 s{S_KH}, 0")
    e("s_cbranch_scc1 attn_merge0")
    def epi(keep, give, dbs):
        for i in range(8):
            e(f"ds_write_b128 {T2}, {vr(give+4*i,4)} offset:{i*1024}")
        e("s_waitcnt lgkmcnt(0)")
        e("s_barrier")
        e(f"ds_read_b64 {vr(V_P,2)}, {T1} offset:8192")
        for i in range(8):
            e(f"ds_read_b128 {vr(V_Q+4*i,4)}, {T0} offset:{i*1024}")
        e("s_waitcnt lgkmcnt(8)")
        e(f"v_max_f32 {T2}, v{V_M}, v{V_P}")
        e(f"v_sub_f32 {T3}, v{V_M}, {T2}")
        e(f"v_mul_f32 {T3}, s{S_C}, {T3}")
        e(f"v_exp_f32 v{V_AL2}, {T3}")
        e(f"v_sub_f32 {T3}, v{V_P}, {T2}")
        e(f"v_mul_f32 {T3}, s{S_C}, {T3}")
        e(f"v_exp_f32 v{V_P+2}, {T3}")
        e("s_nop 0")
        e(f"v_mul_f32 v{V_L}, v{V_L}, v{V_AL2}")
        e(f"v_fma_f32 v{V_L}, v{V_P+1}, v{V_P+2}, v{V_L}")
        e(f"v_rcp_f32 {T3}, v{V_L}")
        e("s_nop 0")
        e(f"v_mul_f32 v{V_AL2}, v{V_AL2}, {T3}")
        e(f"v_mul_f32 v{V_P+2}, v{V_P+2}, {T3}")
        e(f"v_mov_b32 v{V_AL2+1}, v{V_AL2}")
        e(f"v_mov_b32 v{V_P+3}, v{V_P+2}")
        e(f"s_movk_i32 s{S_T0}, {4096 if dbs[0] >= 2 else 0}")
        e("s_waitcnt lgkmcnt(0)")
        for i in range(0, 32, 2):
            o = keep + i
            e(f"v_pk_mul_f32 {vr(o,2)}, {vr(o,2)}, {vr(V_AL2,2)}")
            e(f"v_pk_fma_f32 {vr(o,2)}, {vr(V_Q+i,2)}, {vr(V_P+2,2)}, {vr(o,2)}")
        for db in dbs:
            for pr in range(2):
                src = V_O + 16*db + 8*pr
                q = V_F + 4*((2*db+pr) % 6)
                for j in range(4):
                    e(f"v_cvt_pk_bf16_f32 v{q+j}, v{src+2*j}, v{src+2*j+1}")
                e("s_nop 1")
                e(f"v_permlane32_swap_b32 v{q}, v{q+2}")
                e(f"v_permlane32_swap_b32 v{q+1}, v{q+3}")
                e("s_nop 1")
                e(f"buffer_store_dwordx4 {vr(q,4)}, v{V_OO}, {sr(SRD_O,4)}, s{S_T0} offen offset:{((2*db+pr)%4)*1024} sc0 sc1")
    epi(V_O+32, V_O, (2, 3))
    e("s_endpgm")
    e.label("attn_merge0")
    epi(V_O, V_O+32, (0, 1))
    if STAMP:
        e("s_waitcnt vmcnt(0)")
    stamp(e, 3)
    stamp_flush(e, 8, S_WAVE, "c")
    e("s_endpgm")

    e.label("attn_loader")
    SRD_V = 24
    S_J4K = 54
    e(f"s_sub_u32 s{S_T1}, s{S_WAVE}, 8")
    e(f"s_lshl_b32 s{S_J4K}, s{S_T1}, 12")
    e(f"s_lshl_b32 s{S_WQR}, s{S_T1}, 15")
    e(f"s_lshl_b32 s{S_WQL}, s{S_T1}, 11")
    e(f"s_add_u32 s{S_WQL}, s{S_WQL}, {WQ0}")
    e(f"s_lshl_b32 s{S_T0}, s{S_B}, 4")
    e(f"s_add_u32 s{S_T0}, s{S_T0}, s{S_HKV}")
    e(f"s_lshl_b32 s{S_T0}, s{S_T0}, 18")
    e(f"s_add_u32 s{SRD_K}, s{S_K}, s{S_T0}")
    e(f"s_addc_u32 s{SRD_K+1}, s{S_K+1}, 0")
    e(f"s_mov_b32 s{SRD_K+2}, 0x40000")
    e(f"s_mov_b32 s{SRD_K+3}, 0x20000")
    e(f"s_add_u32 s{SRD_V}, s{S_V}, s{S_T0}")
    e(f"s_addc_u32 s{SRD_V+1}, s{S_V+1}, 0")
    e(f"s_mov_b32 s{SRD_V+2}, 0x40000")
    e(f"s_mov_b32 s{SRD_V+3}, 0x20000")
    e(f"s_mul_i32 s{S_T0}, s{S_B}, 73728")
    e(f"s_add_u32 s{SRD_X}, s{S_X}, s{S_T0}")
    e(f"s_addc_u32 s{SRD_X+1}, s{S_X+1}, 0")
    e(f"s_mov_b32 s{SRD_X+2}, 73728")
    e(f"s_mov_b32 s{SRD_X+3}, 0x20000")
    V_XD = 11
    S_XL = 55
    e(f"s_lshl_b32 s{S_XL}, s{S_T1}, 10")
    e(f"s_add_u32 s{S_XL}, s{S_XL}, {WQ0+16384}")
    e(f"s_lshl_b32 s{S_T0}, s{S_T1}, 4")
    e(f"v_lshrrev_b32 {T0}, 2, {L}")
    e(f"v_add_u32 {T0}, s{S_T0}, {T0}")
    e(f"s_movk_i32 s{S_T0}, 1152")
    e(f"v_mul_lo_u32 {T0}, {T0}, s{S_T0}")
    e(f"v_and_b32 {T1}, 3, {L}")
    e(f"v_bfe_u32 {T2}, {L}, 4, 2")
    e(f"v_xor_b32 {T1}, {T1}, {T2}")
    e(f"v_lshl_add_u32 v{V_XD}, {T1}, 4, {T0}")
    def x_dma(c):
        rot18(e, S_XOFF, None, c, S_B, S_T0)
        e(f"s_lshl_b32 s{S_XOFF}, s{S_XOFF}, 6")
        e(f"s_add_u32 m0, s{S_XL}, {wslot(c)*WSL}")
        e("s_nop 0")
        e(f"buffer_load_dwordx4 v{V_XD}, {sr(SRD_X,4)}, s{S_XOFF} offen lds")
    for c in range(WAH):
        x_dma(c)
        wq_dma(None, c, 2)
    e(f"v_lshrrev_b32 {T0}, 4, {L}")
    e(f"v_and_b32 {T1}, 15, {L}")
    e(f"v_lshlrev_b32 {T2}, 8, {T0}")
    e(f"v_lshlrev_b32 {T3}, 2, {T0}")
    e(f"v_xor_b32 {T3}, {T1}, {T3}")
    e(f"v_lshl_add_u32 v{V_D+4}, {T3}, 4, {T2}")
    e(f"v_xor_b32 {T1}, {T1}, {T0}")
    for i in range(4):
        e(f"v_xor_b32 {T3}, {4*i}, {T1}")
        e(f"v_lshl_add_u32 v{V_D+i}, {T3}, 4, {T2}")
    def tile_issue():
        e(f"s_add_u32 s{S_SOFF}, s{S_ROT}, s{S_T2}")
        e(f"s_and_b32 s{S_SOFF}, s{S_SOFF}, 15")
        e(f"s_lshl_b32 s{S_SOFF}, s{S_SOFF}, 14")
        e(f"s_add_u32 s{S_SOFF}, s{S_SOFF}, s{S_J4K}")
        e(f"s_and_b32 s{S_STG}, s{S_T2}, 3")
        e(f"s_lshl_b32 s{S_STG}, s{S_STG}, 15")
        e(f"s_add_u32 m0, s{S_STG}, s{S_J4K}")
        e(f"s_add_u32 s{S_STG}, m0, 16384")
        for i in range(4):
            e(f"buffer_load_dwordx4 v{V_D+i}, {sr(SRD_K,4)}, s{S_SOFF} offen offset:{i*1024}{NT_KV} lds")
        e(f"s_mov_b32 m0, s{S_STG}")
        e("s_nop 0")
        for i in range(4):
            e(f"buffer_load_dwordx4 v{V_D+4}, {sr(SRD_V,4)}, s{S_SOFF} offen offset:{i*1024}{NT_KV} lds")
    e(f"s_mov_b32 s{S_T2}, 0")
    tile_issue()
    for c in range(NCH):
        n_after = min(NCH - 1, c + WAH - 1) - c
        e(f"s_waitcnt vmcnt({3*n_after + (8 if c < WAH else 0) + (5 if c >= NCH-WAH else 0)})")
        e("s_barrier")
        if c + WAH < NCH:
            x_dma(c + WAH)
            wq_dma(None, c + WAH, 2)
        if c == NCH-WAH-1:
            e("s_mov_b32 s76, s12")
            e("s_mov_b32 s77, s13")
            e(f"s_mov_b32 s78, {4096*1152}")
            e("s_mov_b32 s79, 0x20000")
            e(f"s_mul_i32 s{S_T0}, s2, 18432")
            e(f"s_mul_i32 s{S_SOFF}, s{S_WAVE}, 5120")
            e(f"s_add_u32 s{S_T0}, s{S_T0}, s{S_SOFF}")
            e(f"s_sub_u32 s{S_T0}, s{S_T0}, {8*5120}")
            e(f"v_lshlrev_b32 v12, 4, {L}")
            e(f"v_add_u32 v12, s{S_T0}, v12")
            e(f"v_add_u32 v13, 4096, v12")
            for k in range(4):
                e(f"buffer_load_dwordx4 v[{20+4*k}:{23+4*k}], v12, s[76:79], 0 offen offset:{k*1024}")
            e(f"buffer_load_dwordx4 v[36:39], v13, s[76:79], 0 offen")
    e("s_barrier")
    e(f"s_mov_b32 s{S_T2}, 1")
    e.label("attn_ldpro")
    tile_issue()
    e(f"s_add_u32 s{S_T2}, s{S_T2}, 1")
    e(f"s_cmp_lt_u32 s{S_T2}, 3")
    e("s_cbranch_scc1 attn_ldpro")
    e(f"s_mov_b32 s{S_CNT}, 0")
    e.label("attn_ldloop")
    e(f"s_cmp_lt_u32 s{S_CNT}, 14")
    e("s_cbranch_scc1 attn_ldw32")
    e(f"s_cmp_eq_u32 s{S_CNT}, 14")
    e("s_cbranch_scc1 attn_ldw16")
    e("s_waitcnt vmcnt(0)")
    e("s_branch attn_ldw")
    e.label("attn_ldw16")
    e("s_waitcnt vmcnt(8)")
    e("s_branch attn_ldw")
    e.label("attn_ldw32")
    e("s_waitcnt vmcnt(16)")
    e.label("attn_ldw")
    e("s_barrier")
    e(f"s_add_u32 s{S_T2}, s{S_CNT}, 3")
    e(f"s_cmp_ge_u32 s{S_T2}, 16")
    e("s_cbranch_scc1 attn_ldskip")
    tile_issue()
    e.label("attn_ldskip")
    e(f"s_add_u32 s{S_CNT}, s{S_CNT}, 1")
    e(f"s_cmp_lt_u32 s{S_CNT}, 16")
    e("s_cbranch_scc1 attn_ldloop")
    e("s_barrier")
    e("s_barrier")
    e.label("attn_end")
    e("s_endpgm")

def gen_oproj(e):
    name = "oproj_kernel"
    e.raw(f".globl {name}")
    e.raw(".p2align 8")
    e.raw(f".type {name},@function")
    e.label(name)
    SRD_O, SRD_W, SRD_OUT = 20, 24, 28
    S_WAVE, S_MB, S_NB, S_T0, S_T1, S_SOFF, S_KO, S_CNT, S_OOFF = 40, 41, 42, 43, 44, 46, 47, 49, 50
    V_LANE = 1
    V_T0, V_T1, V_T2, V_T3 = 2, 3, 4, 5
    V_WD = 6
    V_WA = 8
    V_OA = 10
    V_OUT = 13
    V_AF = 16
    V_ACC = 64
    V_BF = 128
    NS = 4
    AHEAD = 3
    NCH = 16
    L = f"v{V_LANE}"
    T0, T1, T2, T3 = (f"v{x}" for x in (V_T0, V_T1, V_T2, V_T3))
    e("s_cmp_ge_u32 s2, 144")
    e("s_cbranch_scc1 oproj_end")
    e("s_load_dwordx4 s[4:7], s[0:1], 32")
    e("s_load_dwordx2 s[16:17], s[0:1], 56")
    stamp(e, 0)
    e(f"v_and_b32 {L}, 63, v0")
    e(f"v_lshrrev_b32 v2, 6, v0")
    e("s_nop 0")
    e(f"v_readfirstlane_b32 s{S_WAVE}, v2")
    e(f"s_and_b32 s{S_MB}, s2, 15")
    e(f"s_lshr_b32 s{S_NB}, s2, 4")
    e("s_waitcnt lgkmcnt(0)")
    e(f"s_mov_b32 s{SRD_O}, s16")
    e(f"s_mov_b32 s{SRD_O+1}, s17")
    e(f"s_mov_b32 s{SRD_O+2}, 0x800000")
    e(f"s_mov_b32 s{SRD_O+3}, 0x20000")
    e(f"s_mov_b32 s{SRD_W}, s4")
    e(f"s_mov_b32 s{SRD_W+1}, s5")
    e(f"s_mov_b32 s{SRD_W+2}, {4096*1152}")
    e(f"s_mov_b32 s{SRD_W+3}, 0x20000")
    e(f"s_mov_b32 s{SRD_OUT}, s6")
    e(f"s_mov_b32 s{SRD_OUT+1}, s7")
    e(f"s_mov_b32 s{SRD_OUT+2}, {1024*1152}")
    e(f"s_mov_b32 s{SRD_OUT+3}, 0x20000")
    e(f"v_lshrrev_b32 {T0}, 3, {L}")
    e(f"s_movk_i32 s{S_T0}, 1152")
    e(f"v_mul_lo_u32 {T0}, {T0}, s{S_T0}")
    e(f"v_and_b32 {T1}, 7, {L}")
    e(f"v_bfe_u32 {T2}, {L}, 4, 1")
    e(f"v_lshlrev_b32 {T2}, 2, {T2}")
    e(f"v_xor_b32 {T1}, {T1}, {T2}")
    e(f"v_lshl_add_u32 v{V_WD}, {T1}, 4, {T0}")
    e(f"s_mul_i32 s{S_KO}, s{S_WAVE}, {512*1152}")
    e(f"s_lshl_b32 s{S_T0}, s{S_NB}, 7")
    e(f"s_add_u32 s{S_KO}, s{S_KO}, s{S_T0}")
    e(f"s_lshl_b32 s{S_T0}, s{S_MB}, 19")
    e(f"s_lshl_b32 s{S_T1}, s{S_WAVE}, 15")
    e(f"s_add_u32 s{S_T0}, s{S_T0}, s{S_T1}")
    e(f"v_lshlrev_b32 {T0}, 4, {L}")
    e(f"v_add_u32 v{V_OA}, s{S_T0}, {T0}")
    e(f"v_add_u32 v{V_OA+1}, 0x40000, v{V_OA}")
    S_M0W = 48
    e(f"s_lshl_b32 s{S_M0W}, s{S_WAVE}, 14")
    e(f"s_mov_b32 s{S_SOFF}, s{S_KO}")
    e(f"s_mov_b32 s{S_OOFF}, 0")
    def issue(slot):
        for j in range(4):
            e(f"s_add_u32 m0, s{S_M0W}, {slot*4096 + j*1024}")
            e("s_nop 0")
            e(f"buffer_load_dwordx4 v{V_WD}, {sr(SRD_W,4)}, s{S_SOFF} offen{NT_W} lds")
            e(f"s_add_u32 s{S_SOFF}, s{S_SOFF}, {8*1152}")
        for mb2 in range(2):
            for st in range(2):
                f = V_BF + 16*slot + 8*mb2 + 4*st
                e(f"buffer_load_dwordx4 {vr(f,4)}, v{V_OA+mb2}, {sr(SRD_O,4)}, s{S_OOFF} offen offset:{st*1024}{NT_W}")
        e(f"s_add_u32 s{S_OOFF}, s{S_OOFF}, 2048")
    for c in range(AHEAD):
        issue(c)
    e(f"v_lshrrev_b32 {T0}, 5, {L}")
    e(f"v_bfe_u32 {T1}, {L}, 2, 2")
    e(f"v_lshl_add_u32 {T2}, {T0}, 3, {T1}")
    e(f"v_lshlrev_b32 {T2}, 7, {T2}")
    e(f"v_bfe_u32 {T0}, {L}, 4, 1")
    e(f"v_bfe_u32 {T3}, {L}, 1, 1")
    e(f"v_lshl_add_u32 {T0}, {T0}, 1, {T3}")
    e(f"v_lshl_add_u32 {T2}, {T0}, 4, {T2}")
    e(f"v_and_b32 {T3}, 1, {L}")
    e(f"v_lshl_add_u32 {T2}, {T3}, 3, {T2}")
    e(f"v_add_u32 {T2}, s{S_M0W}, {T2}")
    e(f"v_bfe_u32 {T1}, {L}, 3, 1")
    for nb2 in range(2):
        e(f"v_xor_b32 {T3}, {nb2}, {T1}")
        e(f"v_lshl_add_u32 v{V_WA+nb2}, {T3}, 6, {T2}")
    for i in range(64):
        e(f"v_mov_b32 v{V_ACC+i}, 0")
    def rda(slot, par):
        ab = V_AF + 16*par
        for nb2 in range(2):
            for st in range(2):
                for u in range(2):
                    e(f"ds_read_b64_tr_b16 {vr(ab+8*nb2+4*st+2*u,2)}, v{V_WA+nb2} offset:{slot*4096 + (st*16+4*u)*128}")
    stamp(e, 1)
    e(f"s_waitcnt vmcnt({8*(AHEAD-1)})")
    rda(0, 0)
    def body(c, cmod):
        slot = cmod % NS
        par = cmod % 2
        e("s_waitcnt lgkmcnt(0)")
        if c + AHEAD < NCH:
            issue((slot + AHEAD) % NS)
        if c + 1 < NCH:
            n_after = min(NCH - 1, c + AHEAD) - (c + 1)
            e(f"s_waitcnt vmcnt({8*n_after})")
            rda((slot + 1) % NS, 1 - par)
        ab = V_AF + 16*par
        for st in range(2):
            for nb2 in range(2):
                for mb2 in range(2):
                    acc = vr(V_ACC + 32*nb2 + 16*mb2, 16)
                    e(f"v_mfma_f32_32x32x16_bf16 {acc}, {vr(ab+8*nb2+4*st,4)}, {vr(V_BF+16*slot+8*mb2+4*st,4)}, {acc}")
    e(f"s_mov_b32 s{S_CNT}, 0")
    e.label("oproj_loop")
    for cm in range(4):
        body(cm, cm)
    e(f"s_add_u32 s{S_CNT}, s{S_CNT}, 1")
    e(f"s_cmp_lt_u32 s{S_CNT}, 3")
    e("s_cbranch_scc1 oproj_loop")
    stamp(e, 2)
    for c in range(12, 16):
        body(c, c)
    stamp(e, 3)
    e.nop(16)
    e("s_barrier")
    e(f"v_lshlrev_b32 {T0}, 4, {L}")
    e(f"v_add_u32 {T1}, s{S_M0W}, {T0}")
    for i in range(16):
        e(f"ds_write_b128 {T1}, {vr(V_ACC+4*i,4)} offset:{i*1024}")
    e("s_waitcnt lgkmcnt(0)")
    e("s_barrier")
    e(f"s_lshl_b32 s{S_T0}, s{S_WAVE}, 11")
    e(f"v_add_u32 {T1}, s{S_T0}, {T0}")
    e(f"v_add_u32 {T2}, 0x10000, {T1}")
    for w in range(8):
        for i in range(2):
            e(f"ds_read_b128 {vr(V_BF+8*w+4*i,4)}, {T1 if w < 4 else T2} offset:{(w%4)*16384 + i*1024}")
    e("s_waitcnt lgkmcnt(0)")
    for stp in (4, 2, 1):
        for w in range(stp):
            for i in range(0, 8, 2):
                e(f"v_pk_add_f32 {vr(V_BF+8*w+i,2)}, {vr(V_BF+8*w+i,2)}, {vr(V_BF+8*(w+stp)+i,2)}")
    e(f"s_lshl_b32 s{S_T0}, s{S_MB}, 6")
    e(f"s_bfe_u32 s{S_T1}, s{S_WAVE}, 0x10001")
    e(f"s_lshl_b32 s{S_T1}, s{S_T1}, 5")
    e(f"s_add_u32 s{S_T0}, s{S_T0}, s{S_T1}")
    e(f"v_and_b32 {T0}, 31, {L}")
    e(f"v_add_u32 {T0}, s{S_T0}, {T0}")
    e(f"s_movk_i32 s{S_T1}, 1152")
    e(f"v_mul_lo_u32 {T0}, {T0}, s{S_T1}")
    e(f"s_lshl_b32 s{S_T0}, s{S_NB}, 7")
    e(f"s_lshr_b32 s{S_T1}, s{S_WAVE}, 2")
    e(f"s_lshl_b32 s{S_T1}, s{S_T1}, 6")
    e(f"s_add_u32 s{S_T0}, s{S_T0}, s{S_T1}")
    e(f"s_and_b32 s{S_T1}, s{S_WAVE}, 1")
    e(f"s_lshl_b32 s{S_T1}, s{S_T1}, 5")
    e(f"s_add_u32 s{S_T0}, s{S_T0}, s{S_T1}")
    e(f"v_add_u32 {T0}, s{S_T0}, {T0}")
    e(f"v_lshrrev_b32 {T1}, 5, {L}")
    e(f"v_lshl_add_u32 v{V_OUT}, {T1}, 4, {T0}")
    q = V_AF
    for j in range(4):
        e(f"v_cvt_pk_bf16_f32 v{q+j}, v{V_BF+2*j}, v{V_BF+2*j+1}")
    e("s_nop 1")
    e(f"v_permlane32_swap_b32 v{q}, v{q+2}")
    e(f"v_permlane32_swap_b32 v{q+1}, v{q+3}")
    e("s_nop 1")
    e(f"buffer_store_dwordx4 {vr(q,4)}, v{V_OUT}, {sr(SRD_OUT,4)}, 0 offen")
    if STAMP:
        e("s_waitcnt vmcnt(0)")
    stamp(e, 4)
    stamp_flush(e, 5, S_WAVE, "o")
    e.label("oproj_end")
    e("s_endpgm")

def desc(name, nfv, acc, sgpr=102):
    return f""".amdhsa_kernel {name}
  .amdhsa_next_free_vgpr {nfv}
  .amdhsa_next_free_sgpr {sgpr}
  .amdhsa_accum_offset {acc}
  .amdhsa_group_segment_fixed_size 0
  .amdhsa_kernarg_size 64
  .amdhsa_user_sgpr_count 2
  .amdhsa_user_sgpr_kernarg_segment_ptr 1
  .amdhsa_system_sgpr_workgroup_id_x 1
.end_amdhsa_kernel
"""

def main():
    hdr = open("standalone__gqa_block_cached__near_ridge.s.ref").read().split("; Override launch")[0]
    e = Em()
    gen_attn(e)
    gen_oproj(e)
    out = hdr
    out += "; @launch kernel=attn_kernel grid=(256,1,1) block=(768,1,1) lds=163840\n"
    out += "; @launch kernel=oproj_kernel grid=(144,1,1) block=(512,1,1) lds=131072\n"
    out += '.amdgcn_target "amdgcn-amd-amdhsa--gfx950"\n.text\n'
    out += e.text()
    out += '.section .rodata,"a"\n.p2align 6\n'
    out += desc("attn_kernel", 168, 168)
    out += ".p2align 6\n"
    out += desc("oproj_kernel", 192, 192)
    path = sys.argv[1] if len(sys.argv) > 1 else "standalone__gqa_block_cached__near_ridge.s"
    open(path, "w").write(out)

main()
```
